```python
import torch

def _softmax(x, axis=-1):
    return torch.softmax(x, dim=axis)
def _gelu(x):
    return torch.nn.functional.gelu(x, approximate="tanh")
def _silu(x):
    return torch.nn.functional.silu(x)
def _sigmoid(x):
    return torch.sigmoid(x)
def _layernorm(x, axis=-1, eps=1e-5):
    m = x.mean(dim=axis, keepdim=True)
    v = x.var(dim=axis, keepdim=True, unbiased=False)
    return (x - m) / torch.sqrt(v + eps)
def _scatter_add(tgt, idx, src, axis=0):
    return tgt.clone().index_add_(axis, idx, src)
def _segment_sum(src, seg, n):
    out = torch.zeros((n,) + src.shape[1:], dtype=src.dtype)
    return out.index_add_(0, seg, src)
def _pad(x, pw):
    flat = tuple(v for pair in reversed(pw) for v in pair)
    return torch.nn.functional.pad(x, flat)

kernel_name = 'gated_mix__spectral_fnet__mha_block__prompt'

def setup_inputs():

    _w = (lambda a: (lambda t: t.to(torch.bfloat16) if t.is_floating_point() else t)(torch.as_tensor(a)))
    def _A_setup():
        B, S, D = 1, 2048, 640
        ns = torch.arange(S)[:, None] * torch.arange(S)[None, :]
        nd = torch.arange(D)[:, None] * torch.arange(D)[None, :]
        Ws_re = torch.cos(-2.0 * torch.pi * ns / S).to(float)
        Ws_im = torch.sin(-2.0 * torch.pi * ns / S).to(float)
        Wd_re = torch.cos(-2.0 * torch.pi * nd / D).to(float)
        Wd_im = torch.sin(-2.0 * torch.pi * nd / D).to(float)
        return {
            "x": _w((lambda *s: torch.randn(*s, dtype=torch.bfloat16) * 0.05)(B, S, D)),
            "dft_seq_re": _w(Ws_re),
            "dft_seq_im": _w(Ws_im),
            "dft_hid_re": _w(Wd_re),
            "dft_hid_im": _w(Wd_im),
        }
    _A_in = _A_setup()

    def _B_setup():
        B, S, D, H = 1, 2048, 640, 32
        return {
            "x": _w((lambda *s: torch.randn(*s, dtype=torch.bfloat16) * 0.05)(B, S, D)),
            "wqkv": _w((lambda *s: torch.randn(*s, dtype=torch.bfloat16) * 1.6)(D, 3 * D)),
            "wo": _w((lambda *s: torch.randn(*s, dtype=torch.bfloat16) * 1.6)(D, D)),
        }
    _B_in = _B_setup()

    return {
        "A_x": _A_in["x"],
        "A_dft_seq_re": _A_in["dft_seq_re"],
        "A_dft_seq_im": _A_in["dft_seq_im"],
        "A_dft_hid_re": _A_in["dft_hid_re"],
        "A_dft_hid_im": _A_in["dft_hid_im"],
        "B_x": _B_in["x"],
        "B_wqkv": _B_in["wqkv"],
        "B_wo": _B_in["wo"],
        "gate_w": _w((lambda *s: torch.randn(*s, dtype=torch.bfloat16) * 0.05)(640) * 16.0),
    }

def reference(A_x, A_dft_seq_re, A_dft_seq_im, A_dft_hid_re, A_dft_hid_im, B_x, B_wqkv, B_wo, gate_w):
    def _A_ref(x, dft_seq_re, dft_seq_im, dft_hid_re, dft_hid_im):
        a = torch.einsum("bsd,ed->bse", x, dft_hid_re)
        b = torch.einsum("bsd,ed->bse", x, dft_hid_im)
        y = torch.einsum("ts,bse->bte", dft_seq_re, a) - torch.einsum("ts,bse->bte", dft_seq_im, b)
        return y

    def _B_ref(x, wqkv, wo):
        B, S, D = x.shape
        H = 32
        Dh = D // H
        qkv = (lambda x, *d: x.permute(*d))((x @ wqkv).reshape(B, S, 3, H, Dh), 2, 0, 3, 1, 4)
        q, k, v = qkv[0], qkv[1], qkv[2]
        scores = torch.einsum("bhqd,bhkd->bhqk", q, k) * (Dh ** -0.5)
        p = _softmax(scores, axis=-1)
        o = torch.einsum("bhqk,bhkd->bhqd", p, v)
        return (lambda x, *d: x.permute(*d))(o, 0, 2, 1, 3).reshape(B, S, D) @ wo

    x = A_x
    g = _sigmoid((x * gate_w).sum(-1, keepdims=True))
    a = _A_ref(x, A_dft_seq_re, A_dft_seq_im, A_dft_hid_re, A_dft_hid_im)
    b = _B_ref(x, B_wqkv, B_wo)
    return g * a + (1 - g) * b
```

```python
S, D, H, DH = 2048, 640, 32, 20

QIMG   = 0x0
Q_HS, Q_TS = 81920, 1280
KVIMG  = 0x300000
KV_HS, KV_TS = 167936, 2624
KMAX   = 0x840000
GATE   = 0x850000
FAC    = 0x860000
FAS    = 0x920000
FA_KS  = 11264
WOT    = 0x9E0000
OIMG   = 0xAC0000
YM     = 0xD40000
YP     = 0xEC0000
Y_PITCH = 352 * 4
WS_SIZE = 0x1100000

KA_X, KA_SRE, KA_SIM, KA_HRE, KA_HIM, KA_BX, KA_WQKV, KA_WO, KA_GATE, KA_OUT, KA_DBG, KA_WS = [8 * i for i in range(12)]


class Asm:
    def __init__(self):
        self.lines = []

    def __call__(self, s):
        for ln in s.strip("\n").split("\n"):
            self.lines.append(ln if ln.rstrip().endswith(":") else "    " + ln.strip())

    def label(self, l):
        self.lines.append(l + ":")

    def text(self):
        return "\n".join(self.lines) + "\n"


def vr(a, n=1):
    return f"v{a}" if n == 1 else f"v[{a}:{a+n-1}]"


def sr(a, n=1):
    return f"s{a}" if n == 1 else f"s[{a}:{a+n-1}]"


def srd(A, d, base, size):
    A(f"s_mov_b32 s{d}, s{base}")
    A(f"s_and_b32 s{d+1}, s{base+1}, 0xffff")
    A(f"s_mov_b32 s{d+2}, {size}")
    A(f"s_mov_b32 s{d+3}, 0x00020000")


def kd(name, vgpr, sgpr=96, agpr=0):
    acc = (vgpr + 3) // 4 * 4
    nfv = acc + agpr if agpr else vgpr
    return f""".p2align 6
.amdhsa_kernel {name}
  .amdhsa_next_free_vgpr {nfv}
  .amdhsa_next_free_sgpr {sgpr}
  .amdhsa_accum_offset {acc}
  .amdhsa_group_segment_fixed_size 0
  .amdhsa_kernarg_size 96
  .amdhsa_user_sgpr_count 2
  .amdhsa_user_sgpr_kernarg_segment_ptr 1
  .amdhsa_system_sgpr_workgroup_id_x 1
.end_amdhsa_kernel
"""


def khead(name):
    return f""".globl {name}
.p2align 8
.type {name},@function
{name}:
"""
```

```python
from common import *
import struct, math

def f32hex(x):
    return "0x%08x" % struct.unpack("<I", struct.pack("<f", x))[0]

QSCALE = (DH ** -0.5) * math.log2(math.e)

ACC = 16
SET = [96, 120]
XB, WB = 144, 148
XA, WA = 150, 154
K1_VGPR = 160
K1_LDS = 65536 + 4 * 20480


def k1_reads(kind, kap, st):
    b0 = SET[st]
    out = [f"ds_read_b128 {vr(b0,4)}, v{XA+kap}"]
    for b in range(5):
        for rd in range(2):
            if kind == 0:
                a = WA if b < 4 else WA + 1
                off = (16 * kap + 4 * rd) * 320 + (80 * b if b < 4 else 0)
            else:
                a = WA
                off = (16 * kap + 4 * rd) * 320 + 64 * b
            out.append(f"ds_read_b64_tr_b16 {vr(b0+4+4*b+2*rd,2)}, v{a} offset:{off}")
    return out


def k1_mfmas(kind, st):
    b0 = SET[st]
    out = []
    for b in range(5):
        acc = vr(ACC + 16 * b, 16)
        xf, wf = vr(b0, 4), vr(b0 + 4 + 4 * b, 4)
        if kind == 0:
            out.append(f"v_mfma_f32_32x32x16_bf16 {acc}, {wf}, {xf}, {acc}")
        else:
            out.append(f"v_mfma_f32_32x32x16_bf16 {acc}, {xf}, {wf}, {acc}")
    return out


def interleave(A, mf, rd, extra=()):
    chunks = [rd[0:4], rd[4:8], rd[8:11], list(extra), []]
    for m, c in zip(mf, chunks):
        A(m)
        for x in c:
            A(x)


def k1_mainloop(A, kind):
    L = f"K1_LOOP{kind}"
    A("v_and_b32 v1, 31, v0")
    A("v_lshrrev_b32 v2, 5, v0")
    A("s_lshl_b32 s48, s34, 12")
    A("v_lshlrev_b32 v3, 7, v1")
    A("v_add_u32 v3, s48, v3")
    A("v_bfe_u32 v4, v1, 1, 3")
    for kap in range(4):
        A(f"v_add_u32 v5, {2*kap}, v2")
        A("v_xor_b32 v5, v5, v4")
        A(f"v_lshl_add_u32 v{XB+kap}, v5, 4, v3")
    A("v_bfe_u32 v5, v0, 4, 1")
    A("v_bfe_u32 v6, v0, 2, 2")
    A("v_and_b32 v7, 3, v0")
    A("v_lshl_add_u32 v8, v2, 3, v6")
    A("v_mul_u32_u24 v8, 320, v8")
    A("v_add_u32 v8, 0x10000, v8")
    if kind == 1:
        A("v_lshl_add_u32 v9, v5, 5, v8")
        A(f"v_lshl_add_u32 v{WB}, v7, 3, v9")
        A(f"v_mov_b32 v{WB+1}, v{WB}")
    else:
        A("v_mul_u32_u24 v9, 40, v5")
        A("v_add_u32 v9, v9, v8")
        A("v_and_b32 v10, 1, v7")
        A("v_lshl_add_u32 v9, v10, 4, v9")
        A("v_lshrrev_b32 v10, 1, v7")
        A(f"v_lshl_add_u32 v{WB}, v10, 3, v9")
        A("v_lshl_add_u32 v10, v5, 2, v7")
        A("v_mul_u32_u24 v10, 40, v10")
        A("v_add3_u32 v%d, v10, v8, 32" % (WB + 1))
    for i in range(6):
        A(f"v_mov_b32 v{XA+i}, v{XB+i}")
    for i in range(80):
        A(f"v_mov_b32 v{ACC+i}, 0")
    for i in range(24):
        A(f"v_mov_b32 v{SET[1]+i}, 0")
    A("s_mov_b32 s60, 0")
    A.label(L)
    A("s_barrier")
    interleave(A, k1_mfmas(kind, 1), k1_reads(kind, 0, 0),
               extra=["s_add_u32 s60, s60, 1", "s_and_b32 s61, s60, 3", "s_lshl_b32 s62, s61, 14", "s_mul_i32 s63, s61, 20480"])
    A("s_waitcnt lgkmcnt(0)")
    interleave(A, k1_mfmas(kind, 0), k1_reads(kind, 1, 1))
    A("s_waitcnt lgkmcnt(0)")
    interleave(A, k1_mfmas(kind, 1), k1_reads(kind, 2, 0))
    A("s_waitcnt lgkmcnt(0)")
    upd = [f"v_add_u32 v{XA+i}, s62, v{XB+i}" for i in range(4)] + [f"v_add_u32 v{WA+i}, s63, v{WB+i}" for i in range(2)]
    interleave(A, k1_mfmas(kind, 0), k1_reads(kind, 3, 1), extra=upd)
    A("s_cmp_lt_u32 s60, 10")
    A("s_waitcnt lgkmcnt(0)")
    A(f"s_cbranch_scc1 {L}")
    for m in k1_mfmas(kind, 1):
        A(m)
    A("s_nop 15")
    A("s_nop 7")


def gen_k1(A):
    A(khead("k1_kernel"))
    A(f"""
s_cmp_ge_u32 s2, 256
s_cbranch_scc1 K1_END
s_load_dwordx2 s[4:5], s[0:1], {KA_X}
s_load_dwordx4 s[20:23], s[0:1], {KA_HRE}
s_load_dwordx4 s[24:27], s[0:1], {KA_WQKV}
s_load_dwordx2 s[28:29], s[0:1], {KA_GATE}
s_load_dwordx2 s[30:31], s[0:1], {KA_WS}
v_lshrrev_b32 v1, 6, v0
v_and_b32 v0, 63, v0
s_and_b32 s48, s2, 7
s_lshr_b32 s49, s2, 3
v_readfirstlane_b32 s34, v1
s_and_b32 s50, s48, 1
s_lshl_b32 s50, s50, 3
s_and_b32 s51, s49, 7
s_add_u32 s32, s50, s51
s_lshr_b32 s35, s48, 1
s_lshl_b32 s50, s35, 2
s_lshr_b32 s51, s49, 3
s_add_u32 s33, s50, s51
s_mov_b32 s52, 819200
s_mov_b32 s53, 2457600
s_movk_i32 s54, 1280
s_movk_i32 s55, 3840
s_and_b32 s56, s33, 1
s_waitcnt lgkmcnt(0)
s_cmp_lt_u32 s33, 14
s_cselect_b32 s6, s20, s22
s_cselect_b32 s7, s21, s23
s_cmp_eq_u32 s35, 3
s_cselect_b32 s12, s6, s24
s_cselect_b32 s13, s7, s25
s_cselect_b32 s14, s52, s53
s_cselect_b32 s36, s54, s55
s_cselect_b32 s37, s56, s33
s_and_b32 s13, s13, 0xffff
s_mov_b32 s15, 0x00020000
s_mul_i32 s37, s37, 320
""")
    srd(A, 8, 4, S * D * 2)
    srd(A, 16, 30, WS_SIZE)
    A("""
s_cmp_ge_u32 s34, 4
s_cbranch_scc1 K1_LOADER
s_cmp_ge_u32 s35, 2
s_cbranch_scc1 K1_VF
""")
    k1_mainloop(A, 0)
    A(f"""
s_lshl_b32 s48, s32, 2
s_add_u32 s48, s48, s34
s_and_b32 s49, s33, 3
s_lshl_b32 s49, s49, 3
s_mov_b32 s50, {Q_HS}
s_mov_b32 s51, {KV_HS}
s_mov_b32 s52, {f32hex(QSCALE)}
s_mov_b32 s53, 1.0
s_mul_i32 s54, s48, {Q_TS}
s_add_u32 s54, s54, {QIMG}
s_add_u32 s55, s48, 62
s_and_b32 s55, s55, 63
s_mul_i32 s55, s55, {KV_TS}
s_add_u32 s55, s55, {KVIMG}
s_cmp_eq_u32 s35, 0
s_cselect_b32 s56, s50, s51
s_cselect_b32 s58, s52, s53
s_cselect_b32 s59, s52, s53
s_cselect_b32 s57, s54, s55
s_mul_i32 s60, s49, s56
s_add_u32 s60, s60, s57
v_lshlrev_b32 v3, 4, v0
v_mul_lo_u32 v4, v2, s56
v_lshl_add_u32 v4, v1, 3, v4
v_add_u32 v4, 1024, v4
""")
    for i in range(40):
        A(f"v_pk_mul_f32 {vr(ACC+2*i,2)}, {vr(ACC+2*i,2)}, s[58:59]")
    PK = 96
    for i in range(40):
        A(f"v_cvt_pk_bf16_f32 v{PK+i}, v{ACC+2*i}, v{ACC+2*i+1}")
    A("s_mov_b32 s61, s60")
    for hd in range(8):
        A(f"buffer_store_dwordx4 {vr(PK+4*hd,4)}, v3, s[16:19], s61 offen")
        A("s_add_u32 s61, s61, s56")
    A("s_mov_b32 s61, s60")
    A("s_lshl_b32 s62, s56, 1")
    for i in range(4):
        A(f"buffer_store_dwordx2 {vr(PK+32+2*i,2)}, v4, s[16:19], s61 offen")
        A("s_add_u32 s61, s61, s62")
    A("s_cmp_eq_u32 s35, 0")
    A("s_cbranch_scc1 K1_END")
    for j in range(4):
        for hd in range(8):
            src = PK + 4 * hd + j
            c = "0" if j == 0 else f"v{16+hd}"
            A(f"v_dot2_f32_bf16 v{16+hd}, v{src}, v{src}, {c}")
    for j in range(2):
        for i in range(4):
            src = PK + 32 + 2 * i + j
            c = "0" if j == 0 else f"v{24+i}"
            A(f"v_dot2_f32_bf16 v{24+i}, v{src}, v{src}, {c}")
    A("s_nop 4")
    for i in range(4):
        A(f"v_permlane32_swap_b32 v{16+2*i}, v{17+2*i}")
    A("s_nop 1")
    for i in range(4):
        A(f"v_add_f32 v{16+2*i}, v{16+2*i}, v{17+2*i}")
    for i in range(4):
        A(f"v_add_f32 v{24+i}, v{24+i}, v{16+2*i}")
    for ror in (1, 2, 4, 8):
        A("s_nop 1")
        for i in range(4):
            A(f"v_max_f32_dpp v{24+i}, v{24+i}, v{24+i} row_ror:{ror} row_mask:0xf bank_mask:0xf")
    A("s_nop 1")
    for i in range(4):
        A(f"v_max_f32_dpp v{24+i}, v{24+i}, v{24+i} row_bcast:15 row_mask:0xa bank_mask:0xf")
    A(f"""
s_lshl_b32 s61, s49, 8
s_lshl_b32 s62, s48, 2
s_add_u32 s61, s61, s62
s_add_u32 s61, s61, {KMAX}
v_lshlrev_b32 v5, 8, v2
v_cmp_eq_u32 vcc, 31, v1
s_and_saveexec_b64 s[64:65], vcc
""")
    for i in range(4):
        A(f"buffer_store_dword v{24+i}, v5, s[16:19], s61 offen offset:{512*i}")
    A("s_branch K1_END")

    A.label("K1_VF")
    k1_mainloop(A, 1)
    A("s_cmp_eq_u32 s35, 3")
    A("s_cbranch_scc1 K1_F")
    PK = 96
    for i in range(40):
        A(f"v_cvt_pk_bf16_f32 v{PK+i}, v{ACC+2*i}, v{ACC+2*i+1}")
    A(f"""
s_lshl_b32 s48, s32, 2
s_add_u32 s48, s48, s34
s_and_b32 s49, s33, 3
s_mul_i32 s49, s49, {8*KV_HS}
s_mul_i32 s50, s48, {KV_TS}
s_add_u32 s60, s49, s50
s_add_u32 s60, s60, {KVIMG + 1280}
s_mov_b32 s51, {KV_HS}
v_mul_u32_u24 v3, 336, v2
""")
    for b in range(5):
        A(f"v_add_u32 v4, {32*b}, v1")
        A("v_mul_u32_u24 v5, 3277, v4")
        A("v_lshrrev_b32 v5, 16, v5")
        A("v_mul_u32_u24 v6, 20, v5")
        A("v_sub_u32 v6, v4, v6")
        A("v_mul_lo_u32 v5, v5, s51")
        A("v_lshl_add_u32 v6, v6, 4, v3")
        A(f"v_add_u32 v{8+b}, v5, v6")
    for b in range(5):
        A(f"buffer_store_dwordx4 {vr(PK+8*b,4)}, v{8+b}, s[16:19], s60 offen")
        A(f"buffer_store_dwordx4 {vr(PK+8*b+4,4)}, v{8+b}, s[16:19], s60 offen offset:672")
    A("""
v_lshrrev_b32 v4, 2, v0
v_mul_lo_u32 v4, v4, s51
v_and_b32 v5, 3, v0
v_mul_u32_u24 v5, 336, v5
v_add_u32 v4, v4, v5
v_mov_b32 v16, 0x3f803f80
v_mov_b32 v17, 0x3f803f80
v_mov_b32 v18, 0x3f803f80
v_mov_b32 v19, 0x3f803f80
v_cmp_gt_u32 vcc, 32, v0
s_and_saveexec_b64 s[64:65], vcc
buffer_store_dwordx4 v[16:19], v4, s[16:19], s60 offen offset:320
s_branch K1_END
""")
    A.label("K1_F")
    A(f"""
s_lshl_b32 s48, s32, 2
s_add_u32 s48, s48, s34
s_mov_b32 s50, {FAC}
s_mov_b32 s51, {FAS}
s_mov_b32 s52, 1.0
s_mov_b32 s53, -1.0
s_cmp_lt_u32 s33, 14
s_cselect_b32 s54, s50, s51
s_cselect_b32 s55, s52, s53
s_and_b32 s49, s33, 1
s_mul_i32 s49, s49, 5120
s_add_u32 s54, s54, s49
s_mul_i32 s60, s48, {FA_KS}
s_add_u32 s60, s60, s54
v_lshlrev_b32 v3, 4, v0
s_cmp_lg_u32 s48, 0
s_cbranch_scc1 K1_F_NOSPECIAL
s_add_u32 s61, s54, {64*FA_KS}
v_cmp_gt_u32 vcc, 32, v0
v_mov_b32 v5, 0
v_mov_b32 v6, 0
v_mov_b32 v7, 0
""")
    for b in range(5):
        r8 = ACC + 16 * b + 8
        A(f"v_cndmask_b32 v8, 0, v{r8}, vcc")
        A(f"v_cvt_pk_bf16_f32 v4, v8, 0")
        A(f"v_cndmask_b32 v{r8}, v{r8}, v5, vcc")
        A(f"buffer_store_dwordx4 v[4:7], v3, s[16:19], s61 offen offset:{0}")
        A("s_add_u32 s61, s61, 1024")
        A("s_nop 1")
    A.label("K1_F_NOSPECIAL")
    for b in range(5):
        for r in range(8):
            a = ACC + 16 * b + r
            A(f"v_fma_f32 v{a}, v{a+8}, s55, v{a}")
    for b in range(5):
        for i in range(4):
            a = ACC + 16 * b + 2 * i
            A(f"v_cvt_pk_bf16_f32 v{PK+4*b+i}, v{a}, v{a+1}")
    for b in range(4):
        A(f"buffer_store_dwordx4 {vr(PK+4*b,4)}, v3, s[16:19], s60 offen offset:{1024*b}")
    A("s_add_u32 s60, s60, 4096")
    A(f"buffer_store_dwordx4 {vr(PK+16,4)}, v3, s[16:19], s60 offen")
    A("s_branch K1_END")

    A.label("K1_LOADER")
    A("""
s_sub_u32 s34, s34, 4
v_lshrrev_b32 v1, 3, v0
v_and_b32 v2, 7, v0
v_lshrrev_b32 v3, 4, v0
v_xor_b32 v4, v2, v3
v_lshlrev_b32 v4, 4, v4
v_xor_b32 v5, 64, v4
s_movk_i32 s48, 1280
s_cmp_eq_u32 s35, 3
s_cbranch_scc1 K1_LD_F
s_lshl_b32 s49, s32, 7
s_lshl_b32 s50, s34, 5
s_add_u32 s49, s49, s50
v_add_u32 v6, s49, v1
v_mul_lo_u32 v6, v6, s48
v_add_u32 v10, v6, v4
v_add_u32 v11, v6, v5
v_add_u32 v11, 10240, v11
v_add_u32 v12, 20480, v10
v_add_u32 v13, 20480, v11
s_branch K1_LD_W
K1_LD_F:
s_lshl_b32 s49, s32, 6
s_lshl_b32 s50, s34, 3
s_add_u32 s49, s49, s50
v_and_b32 v6, 3, v1
v_and_b32 v7, 32, v0
v_add3_u32 v6, v6, v7, s49
v_add_u32 v7, 4, v6
v_sub_u32 v8, 2048, v6
v_sub_u32 v9, 2048, v7
v_cmp_eq_u32 vcc, 0, v6
v_mov_b32 v14, 1024
s_nop 1
v_cndmask_b32 v8, v8, v14, vcc
v_mul_lo_u32 v6, v6, s48
v_mul_lo_u32 v7, v7, s48
v_mul_lo_u32 v8, v8, s48
v_mul_lo_u32 v9, v9, s48
v_add_u32 v10, v6, v4
v_add_u32 v11, v7, v5
v_add_u32 v12, v8, v4
v_add_u32 v13, v9, v5
K1_LD_W:
s_mul_i32 s49, s34, 320
""")
    for q in range(5):
        A(f"v_add_u32 v6, s49, v0")
        if q:
            A(f"v_add_u32 v6, {64*q}, v6")
        A("v_mul_u32_u24 v7, 3277, v6")
        A("v_lshrrev_b32 v7, 16, v7")
        A("v_mul_u32_u24 v8, 20, v7")
        A("v_sub_u32 v8, v6, v8")
        A("v_mul_lo_u32 v7, v7, s36")
        A("v_lshl_add_u32 v8, v8, 4, s37")
        A(f"v_add_u32 v{14+q}, v7, v8")
    A("s_lshl_b32 s52, s34, 12")
    A("s_mul_i32 s53, s34, 5120")
    A("s_lshl_b32 s55, s36, 6")
    A("s_mov_b32 s54, 0")
    A("s_mov_b32 s51, 0")

    def issue(c):
        slot = c & 3
        for q in range(4):
            A(f"s_add_u32 m0, s52, {slot*16384 + q*1024}")
            A("s_nop 0")
            A(f"buffer_load_dwordx4 v{10+q}, s[8:11], s51 offen lds")
        for q in range(5):
            A(f"s_add_u32 m0, s53, {65536 + slot*20480 + q*1024}")
            A("s_nop 0")
            A(f"buffer_load_dwordx4 v{14+q}, s[12:15], s54 offen lds")
        A("s_add_u32 s51, s51, 128")
        A("s_add_u32 s54, s54, s55")

    for c in range(3):
        issue(c)
    srd(A, 40, 26, D * D * 2)
    srd(A, 44, 28, D * 2)
    A("""
s_lshl_b32 s56, s2, 2
s_add_u32 s56, s56, s34
s_sub_u32 s57, 2048, s56
s_cmp_eq_u32 s56, 0
s_cselect_b32 s57, 1024, s57
s_mul_i32 s58, s56, 1280
s_mul_i32 s59, s57, 1280
v_mul_u32_u24 v20, 20, v0
buffer_load_dwordx4 v[24:27], v20, s[8:11], s58 offen
buffer_load_dword v28, v20, s[8:11], s58 offen offset:16
buffer_load_dwordx4 v[32:35], v20, s[8:11], s59 offen
buffer_load_dword v36, v20, s[8:11], s59 offen offset:16
buffer_load_dwordx4 v[40:43], v20, s[44:47], 0 offen
buffer_load_dword v44, v20, s[44:47], 0 offen offset:16
""")
    A("""
s_mul_i32 s60, s56, 3277
s_lshr_b32 s60, s60, 16
s_mul_i32 s61, s60, 20
s_sub_u32 s61, s56, s61
v_lshrrev_b32 v21, 4, v0
v_and_b32 v22, 15, v0
s_cmp_lt_u32 s61, 16
s_cbranch_scc0 K1_WOT_HI
s_mul_i32 s62, s61, 40
v_lshrrev_b32 v23, 1, v21
v_mul_u32_u24 v23, 20, v23
v_and_b32 v29, 1, v21
v_lshl_add_u32 v23, v29, 2, v23
v_add_u32 v23, s62, v23
s_movk_i32 s63, 10240
s_branch K1_WOT_GO
K1_WOT_HI:
s_sub_u32 s62, s61, 16
s_mul_i32 s62, s62, 160
s_add_u32 s62, s62, 16
v_mul_u32_u24 v23, 40, v21
v_add_u32 v23, s62, v23
s_movk_i32 s63, 25600
K1_WOT_GO:
v_mul_lo_u32 v23, v23, s48
s_lshl_b32 s60, s60, 5
v_lshl_add_u32 v23, v22, 1, v23
v_add_u32 v23, s60, v23
v_add_u32 v29, s63, v23
""")
    for half, a in ((0, 23), (1, 29)):
        for j in range(4):
            reg = (68 if (j & 1) else 48) + 2 * half + (j >> 1)
            A(f"buffer_load_ushort v{reg}, v{a}, s[40:43], 0 offen offset:{1280*j}")
    NS = 14
    for c in range(10):
        if c <= 2:
            n = 18 + NS
        elif c <= 7:
            n = 18
        elif c == 8:
            n = 9
        else:
            n = 0
        A(f"s_waitcnt vmcnt({n})")
        A("s_barrier")
        if c + 3 <= 9:
            issue(c + 3)
        if c == 7:
            A("v_mov_b32 v56, 0xbf803f80")
            for i in range(4):
                A(f"v_lshl_or_b32 v{48+i}, v{68+i}, 16, v{48+i}")
            xs = [24, 25, 26, 27, 28]
            xm = [32, 33, 34, 35, 36]
            gw = [40, 41, 42, 43, 44]
            for j in range(5):
                for acc, a, b in ((52, xs[j], gw[j]), (53, xm[j], gw[j]), (54, xs[j], 56), (55, xm[j], 56)):
                    cc = "0" if j == 0 else f"v{acc}"
                    A(f"v_dot2_f32_bf16 v{acc}, v{a}, v{b}, {cc}")
            A("s_nop 3")
            for ror in (1, 2, 4, 8):
                for i in range(4):
                    A(f"v_add_f32_dpp v{52+i}, v{52+i}, v{52+i} row_ror:{ror} row_mask:0xf bank_mask:0xf")
                A("s_nop 1")
            for i in range(4):
                A(f"v_add_f32_dpp v{52+i}, v{52+i}, v{52+i} row_bcast:15 row_mask:0xa bank_mask:0xf")
            A("s_nop 1")
            for i in range(4):
                A(f"v_add_f32_dpp v{52+i}, v{52+i}, v{52+i} row_bcast:31 row_mask:0xc bank_mask:0xf")
            A("s_nop 1")
    A(f"""
s_lshl_b32 s60, s56, 10
s_add_u32 s60, s60, {WOT}
v_lshlrev_b32 v20, 4, v0
s_cmp_lt_u32 s56, 800
s_cbranch_scc0 K1_NO_WOT
buffer_store_dwordx4 v[48:51], v20, s[16:19], s60 offen
K1_NO_WOT:
v_mov_b32 v20, 0
v_cmp_eq_u32 vcc, 63, v0
s_and_saveexec_b64 s[64:65], vcc
s_lshl_b32 s60, s56, 2
s_add_u32 s60, s60, {GATE}
s_lshl_b32 s61, s57, 2
s_add_u32 s61, s61, {GATE}
buffer_store_dword v52, v20, s[16:19], s60 offen
buffer_store_dword v53, v20, s[16:19], s61 offen
""")
    A(f"""
s_lshr_b32 s60, s56, 6
s_lshl_b32 s60, s60, 2
s_bfe_u32 s61, s56, 0x20003
s_add_u32 s60, s60, s61
s_mul_i32 s60, s60, {FA_KS}
s_bfe_u32 s61, s56, 0x10005
s_lshl_b32 s61, s61, 9
s_add_u32 s60, s60, s61
s_and_b32 s61, s56, 7
s_lshl_b32 s61, s61, 1
s_add_u32 s60, s60, s61
s_add_u32 s60, s60, {FAC + 10*1024}
s_cmp_eq_u32 s56, 0
s_cbranch_scc1 K1_ALT0
v_add_f32 v54, v54, v55
v_cvt_pk_bf16_f32 v54, v54, v54
buffer_store_short v54, v20, s[16:19], s60 offen
s_branch K1_END
K1_ALT0:
v_cvt_pk_bf16_f32 v54, v54, v54
buffer_store_short v54, v20, s[16:19], s60 offen
v_cvt_pk_bf16_f32 v60, v55, 0
v_mov_b32 v61, 0
v_mov_b32 v62, 0
v_mov_b32 v63, 0
v_mov_b32 v64, 0
s_mov_b32 s60, {FAC + 64*FA_KS + 10*1024}
buffer_store_dwordx4 v[60:63], v20, s[16:19], s60 offen
v_mov_b32 v66, 0
v_mov_b32 v67, 0
v_mov_b32 v65, 0
buffer_store_dwordx4 v[64:67], v20, s[16:19], s60 offen offset:512
""")
    A.label("K1_END")
    A("s_endpgm")
```

```python
from common import *

SA, SB, PA, PB, OA, OB = 16, 32, 48, 56, 64, 80
QA1, QB1, QA2, QB2 = 96, 100, 104, 106
K1F, K2F, V0, V1 = 108, 112, 116, 120
KB1, KB2, VB = 6, 7, 8
KA1, KA2, VA = 9, 10, 11
DV = 12
K2_VGPR = 128
SLOT = 24576
CHUNK = 8 * KV_TS
XCH = 4 * SLOT
K2_LDS = XCH + 8 * 3072 + 64


def softmax_groups(Sx, Px):
    gs = []
    for g in range(4):
        l = [f"v_exp_f32 v{Sx+4*g+i}, v{Sx+4*g+i}" for i in range(4)]
        l += [f"v_cvt_pk_bf16_f32 v{Px+2*g+i}, v{Sx+4*g+2*i}, v{Sx+4*g+2*i+1}" for i in range(2)]
        gs.append(l)
    return gs


def qk(Sx, Q1, Q2):
    return [f"v_mfma_f32_32x32x8_bf16 {vr(Sx,16)}, {vr(K2F,2)}, {vr(Q2,2)}, 0",
            f"v_mfma_f32_32x32x16_bf16 {vr(Sx,16)}, {vr(K1F,4)}, {vr(Q1,4)}, {vr(Sx,16)}"]


def pv(Ox, Px):
    return [f"v_mfma_f32_32x32x16_bf16 {vr(Ox,16)}, {vr(V0,4)}, {vr(Px,4)}, {vr(Ox,16)}",
            f"v_mfma_f32_32x32x16_bf16 {vr(Ox,16)}, {vr(V1,4)}, {vr(Px+4,4)}, {vr(Ox,16)}"]


def dma_issue(A):
    A("s_mov_b32 m0, s40")
    A("s_nop 0")
    for q in range(3):
        A(f"buffer_load_dwordx4 v{DV}, s[12:15], s41 offen offset:{1024*q} lds")


def gen_k2(A):
    A(khead("k2_kernel"))
    A(f"""
s_cmp_ge_u32 s2, 256
s_cbranch_scc1 K2_END
s_load_dwordx2 s[4:5], s[0:1], {KA_WS}
v_lshrrev_b32 v1, 6, v0
v_and_b32 v0, 63, v0
s_and_b32 s20, s2, 7
s_lshl_b32 s20, s20, 2
v_readfirstlane_b32 s22, v1
s_bfe_u32 s21, s2, 0x20003
s_add_u32 s20, s20, s21
s_lshr_b32 s21, s2, 5
s_and_b32 s23, s22, 3
s_lshr_b32 s24, s22, 2
s_lshl_b32 s25, s21, 3
s_lshl_b32 s26, s23, 1
s_add_u32 s25, s25, s26
s_mul_i32 s27, s20, {KV_HS}
s_add_u32 s27, s27, {KVIMG}
v_and_b32 v1, 31, v0
v_lshrrev_b32 v2, 5, v0
v_lshlrev_b32 v3, 4, v0
v_lshlrev_b32 v4, 3, v1
v_lshlrev_b32 v5, 2, v0
s_waitcnt lgkmcnt(0)
""")
    srd(A, 8, 4, WS_SIZE)
    A(f"""
s_add_u32 s12, s4, s27
s_addc_u32 s13, s5, 0
s_and_b32 s13, s13, 0xffff
s_mov_b32 s14, {KV_HS}
s_mov_b32 s15, 0x00020000
s_mul_i32 s28, s20, {Q_HS}
s_mul_i32 s29, s25, {Q_TS}
s_add_u32 s28, s28, s29
s_add_u32 s28, s28, {QIMG}
s_add_u32 s29, s24, 62
s_mul_i32 s29, s29, {KV_TS}
s_lshl_b32 s30, s20, 8
s_add_u32 s30, s30, {KMAX}
buffer_load_dwordx4 {vr(QA1,4)}, v3, s[8:11], s28 offen
buffer_load_dwordx4 {vr(QB1,4)}, v3, s[8:11], s28 offen offset:1280
buffer_load_dwordx2 {vr(QA2,2)}, v4, s[8:11], s28 offen offset:1024
buffer_load_dwordx2 {vr(QB2,2)}, v4, s[8:11], s28 offen offset:2304
buffer_load_dword v13, v5, s[8:11], s30 offen
buffer_load_dwordx4 {vr(K1F,4)}, v3, s[12:15], s29 offen
buffer_load_dwordx2 {vr(K2F,2)}, v4, s[12:15], s29 offen offset:1024
s_mul_i32 s31, s22, 3072
v_add_u32 v{DV}, s31, v3
s_mov_b32 s40, s31
s_mov_b32 s41, 0
""")
    for c in range(3):
        dma_issue(A)
        A(f"s_add_u32 s40, s40, {SLOT}")
        A(f"s_add_u32 s41, s41, {CHUNK}")
    A(f"""
s_mul_i32 s32, s24, {KV_TS}
v_add_u32 v{KB1}, s32, v3
v_add_u32 v14, 1024, v4
v_mov_b32 v15, {1280+320}
v_cmp_gt_u32 vcc, 32, v0
v_mul_u32_u24 v16, 336, v2
v_lshl_add_u32 v16, v1, 4, v16
v_cndmask_b32 v14, v15, v14, vcc
v_add_u32 v{KB2}, s32, v14
v_add_u32 v16, 1280, v16
v_add_u32 v{VB}, s32, v16
v_mov_b32 v{KA1}, v{KB1}
v_mov_b32 v{KA2}, v{KB2}
v_mov_b32 v{VA}, v{VB}
""")
    for i in range(32):
        A(f"v_mov_b32 v{OA+i}, 0")
    for i in range(8):
        A(f"v_mov_b32 v{PB+i}, 0")
        A(f"v_mov_b32 v{V0+i}, 0")
    A("s_waitcnt vmcnt(9)")
    A("v_mov_b32 v15, 0x3f803f80")
    for r in (QA2, QA2 + 1, QB2, QB2 + 1):
        A(f"v_cndmask_b32 v{r}, 0, v{r}, vcc")
    for r in (K2F, K2F + 1):
        A(f"v_cndmask_b32 v{r}, v15, v{r}, vcc")
    for ror in (1, 2, 4, 8):
        A(f"v_max_f32_dpp v13, v13, v13 row_ror:{ror} row_mask:0xf bank_mask:0xf")
        A("s_nop 1")
    A("v_max_f32_dpp v13, v13, v13 row_bcast:15 row_mask:0xa bank_mask:0xf")
    A("s_nop 1")
    A("v_max_f32_dpp v13, v13, v13 row_bcast:31 row_mask:0xc bank_mask:0xf")
    for j, (ra, rb) in enumerate([(QA1 + i, QB1 + i) for i in range(4)] + [(QA2 + i, QB2 + i) for i in range(2)]):
        ca = "0" if j == 0 else "v16"
        cb = "0" if j == 0 else "v18"
        A(f"v_dot2_f32_bf16 v16, v{ra}, v{ra}, {ca}")
        A(f"v_dot2_f32_bf16 v18, v{rb}, v{rb}, {cb}")
    A("""
v_readlane_b32 s33, v13, 63
s_nop 3
v_mov_b32 v17, v16
v_mov_b32 v19, v18
s_nop 1
v_permlane32_swap_b32 v16, v17
v_permlane32_swap_b32 v18, v19
s_nop 1
v_add_f32 v16, v16, v17
v_add_f32 v18, v18, v19
v_mul_f32 v16, s33, v16
v_mul_f32 v18, s33, v18
v_sqrt_f32 v16, v16
v_sqrt_f32 v18, v18
s_nop 0
v_mul_f32 v16, -1.0, v16
v_mul_f32 v18, -1.0, v18
""")
    for (m, Q2) in ((16, QA2), (18, QB2)):
        A(f"""
v_and_b32 v20, 0xffff0000, v{m}
v_sub_f32 v21, v{m}, v20
v_and_b32 v22, 0xffff0000, v21
v_sub_f32 v23, v21, v22
v_lshrrev_b32 v20, 16, v20
v_or_b32 v20, v20, v22
v_lshrrev_b32 v23, 16, v23
v_cndmask_b32 v{Q2}, v20, v{Q2}, vcc
v_cndmask_b32 v{Q2+1}, v23, v{Q2+1}, vcc
""")
    A("s_nop 1")
    for m in qk(SA, QA1, QA2):
        A(m)
    A("s_mov_b32 s42, 0")
    A("s_nop 7")
    A("s_nop 7")
    A.label("K2_LOOP")
    A("s_waitcnt vmcnt(6)")
    A("s_barrier")
    A(f"""
s_add_u32 s43, s42, 3
s_and_b32 s43, s43, 3
s_mul_i32 s43, s43, {SLOT}
s_add_u32 s40, s43, s31
""")
    dma_issue(A)
    A(f"s_add_u32 s41, s41, {CHUNK}")
    A(f"""
s_add_u32 s42, s42, 1
s_and_b32 s43, s42, 3
s_mul_i32 s43, s43, {SLOT}
""")
    for t in range(4):
        off = t * 2 * KV_TS
        g = softmax_groups(SA, PA)
        m = qk(SB, QB1, QB2) + pv(OB, PB)
        A(m[0])
        A("\n".join(g[0]))
        A(m[1])
        A(f"ds_read_b128 {vr(K1F,4)}, v{KA1} offset:{off}")
        A(f"ds_read_b64 {vr(K2F,2)}, v{KA2} offset:{off}")
        A("\n".join(g[1]))
        A(m[2])
        A("\n".join(g[2]))
        A(m[3])
        A(f"ds_read_b128 {vr(V0,4)}, v{VA} offset:{off}")
        A(f"ds_read_b128 {vr(V1,4)}, v{VA} offset:{off+672}")
        A("\n".join(g[3]))
        g = softmax_groups(SB, PB)
        m = qk(SA, QA1, QA2) + pv(OA, PA)
        A("s_waitcnt lgkmcnt(2)")
        A(m[0])
        A("\n".join(g[0]))
        A(m[1])
        A("\n".join(g[1]))
        A("s_waitcnt lgkmcnt(0)")
        A(m[2])
        A("\n".join(g[2]))
        A(m[3])
        if t == 3:
            A(f"v_add_u32 v{KA1}, s43, v{KB1}")
            A(f"v_add_u32 v{KA2}, s43, v{KB2}")
            A(f"v_add_u32 v{VA}, s43, v{VB}")
        A("\n".join(g[3]))
    A("s_cmp_lt_u32 s42, 8")
    A("s_cbranch_scc1 K2_LOOP")
    for m in pv(OB, PB):
        A(m)
    A("s_nop 15")
    A("s_nop 3")
    A(f"""
v_add_u32 v13, {XCH}, v{DV}
s_xor_b32 s34, s22, 4
s_mul_i32 s34, s34, 3072
s_add_u32 s34, s34, {XCH}
v_add_u32 v14, s34, v3
s_cmp_eq_u32 s24, 0
s_cbranch_scc0 K2_X1
""")
    for q in range(3):
        A(f"ds_write_b128 v13, {vr(OB+4*q,4)} offset:{1024*q}")
    A("s_branch K2_X2")
    A.label("K2_X1")
    for q in range(3):
        A(f"ds_write_b128 v13, {vr(OA+4*q,4)} offset:{1024*q}")
    A("s_nop 4")
    for i in range(12):
        A(f"v_mov_b32 v{OA+i}, v{OB+i}")
    A.label("K2_X2")
    A("s_waitcnt lgkmcnt(0)")
    A("s_barrier")
    for q in range(3):
        A(f"ds_read_b128 {vr(16+4*q,4)}, v14 offset:{1024*q}")
    A(f"""
s_add_u32 s35, s25, s24
s_mul_i32 s35, s35, 40960
s_add_u32 s35, s35, {OIMG}
s_lshr_b32 s36, s20, 1
s_lshl_b32 s36, s36, 10
s_and_b32 s37, s20, 1
s_lshl_b32 s38, s37, 9
s_add_u32 s36, s36, s38
s_add_u32 s36, s36, s35
s_lshr_b32 s38, s20, 3
s_add_u32 s38, s38, 16
s_lshl_b32 s38, s38, 10
s_bfe_u32 s39, s20, 0x20001
s_lshl_b32 s39, s39, 8
s_add_u32 s38, s38, s39
s_lshl_b32 s39, s37, 3
s_add_u32 s38, s38, s39
s_add_u32 s38, s38, s35
v_lshrrev_b32 v30, 4, v1
v_mul_u32_u24 v30, 20480, v30
v_and_b32 v31, 15, v1
v_lshl_add_u32 v30, v31, 4, v30
v_lshl_add_u32 v31, v2, 8, v30
s_waitcnt lgkmcnt(0)
""")
    for i in range(12):
        A(f"v_add_f32 v{OA+i}, v{OA+i}, v{16+i}")
    A(f"""
v_mov_b32 v16, v{OA+8}
v_mov_b32 v17, v{OA+8}
s_nop 1
v_permlane32_swap_b32 v16, v17
s_nop 1
v_rcp_f32 v17, v17
s_nop 0
""")
    for i in range(12):
        A(f"v_mul_f32 v{OA+i}, v{OA+i}, v17")
    for i in range(6):
        A(f"v_cvt_pk_bf16_f32 v{20+i}, v{OA+2*i}, v{OA+2*i+1}")
    A("""
buffer_store_dwordx4 v[20:23], v31, s[8:11], s36 offen
v_cmp_gt_u32 vcc, 32, v0
s_and_saveexec_b64 s[44:45], vcc
buffer_store_dwordx2 v[24:25], v30, s[8:11], s38 offen
""")
    A.label("K2_END")
    A("s_endpgm")


KF_VGPR = 160
KF_LDS = 16384


def gen_kf(A):
    A(khead("kf_kernel"))
    A(f"""
s_cmp_ge_u32 s2, 363
s_cbranch_scc1 KF_END
s_load_dwordx4 s[4:7], s[0:1], {KA_SRE}
s_load_dwordx2 s[16:17], s[0:1], {KA_WS}
v_lshrrev_b32 v1, 6, v0
v_and_b32 v0, 63, v0
s_mul_i32 s20, s2, 5958
v_readfirstlane_b32 s22, v1
s_lshr_b32 s20, s20, 16
s_mul_i32 s21, s20, 11
s_sub_u32 s21, s2, s21
s_lshr_b32 s23, s22, 1
s_and_b32 s24, s22, 1
s_mov_b32 s26, {FAC}
s_mov_b32 s27, {FAS}
v_and_b32 v1, 31, v0
v_lshrrev_b32 v2, 5, v0
v_lshlrev_b32 v3, 4, v0
s_waitcnt lgkmcnt(0)
s_cmp_eq_u32 s23, 0
s_cselect_b32 s12, s4, s6
s_cselect_b32 s13, s5, s7
s_cselect_b32 s25, s26, s27
s_and_b32 s13, s13, 0xffff
s_mov_b32 s14, {S*S*2}
s_mov_b32 s15, 0x00020000
""")
    srd(A, 8, 16, WS_SIZE)
    A(f"""
s_lshl_b32 s28, s20, 5
v_add_u32 v4, s28, v1
v_lshlrev_b32 v5, 12, v4
v_lshl_add_u32 v5, v2, 6, v5
s_lshl_b32 s29, s24, 10
s_mul_i32 s30, s24, {32*FA_KS}
s_add_u32 s30, s30, s25
s_lshl_b32 s31, s21, 10
s_add_u32 s30, s30, s31
""")
    for i in range(16):
        A(f"v_mov_b32 v{16+i}, 0")
    A("s_cmp_eq_u32 s21, 10")
    A("s_cselect_b32 s32, s23, 0")
    A("s_cmp_eq_u32 s32, 1")
    A("s_cbranch_scc1 KF_COMB")
    FR = 32
    for half in range(2):
        for ks in range(16):
            kk = 16 * half + ks
            A(f"buffer_load_dwordx4 {vr(FR+8*ks,4)}, v5, s[12:15], s29 offen offset:{(kk>>2)*128 + (kk&3)*16}")
            A(f"buffer_load_dwordx4 {vr(FR+8*ks+4,4)}, v3, s[8:11], s30 offen")
            A(f"s_add_u32 s30, s30, {FA_KS}")
        for ks in range(16):
            A(f"s_waitcnt vmcnt({2*(15-ks)})")
            A(f"v_mfma_f32_32x32x16_bf16 v[16:31], {vr(FR+8*ks+4,4)}, {vr(FR+8*ks,4)}, v[16:31]")
    A(f"""
s_cmp_eq_u32 s22, 1
s_cbranch_scc0 KF_COMB
v_lshlrev_b32 v6, 12, v4
v_lshl_add_u32 v6, v2, 4, v6
buffer_load_dwordx4 v[32:35], v6, s[12:15], 0 offen offset:2048
buffer_load_dwordx4 v[36:39], v3, s[8:11], s30 offen
s_waitcnt vmcnt(0)
v_mfma_f32_32x32x16_bf16 v[16:31], v[36:39], v[32:35], v[16:31]
""")
    A.label("KF_COMB")
    A("s_nop 15")
    A("s_nop 3")
    A("s_lshl_b32 s33, s22, 12")
    A("v_add_u32 v7, s33, v3")
    for q in range(4):
        A(f"ds_write_b128 v7, {vr(16+4*q,4)} offset:{1024*q}")
    A("s_lshl_b32 s33, s22, 10")
    A("v_add_u32 v7, s33, v3")
    A("s_waitcnt lgkmcnt(0)")
    A("s_barrier")
    for q in range(4):
        A(f"ds_read_b128 {vr(32+4*q,4)}, v7 offset:{4096*q}")
    A(f"""
s_movk_i32 s34, {Y_PITCH}
v_mul_lo_u32 v8, v4, s34
v_lshl_add_u32 v8, v2, 4, v8
s_lshl_b32 s35, s21, 7
s_lshl_b32 s36, s22, 5
s_add_u32 s35, s35, s36
s_add_u32 s36, s35, {YP}
s_add_u32 s35, s35, {YM}
s_waitcnt lgkmcnt(0)
""")
    for i in range(4):
        A(f"v_add_f32 v{32+i}, v{32+i}, v{36+i}")
        A(f"v_add_f32 v{40+i}, v{40+i}, v{44+i}")
    for i in range(4):
        A(f"v_sub_f32 v{48+i}, v{32+i}, v{40+i}")
        A(f"v_add_f32 v{52+i}, v{32+i}, v{40+i}")
    A("buffer_store_dwordx4 v[48:51], v8, s[8:11], s35 offen")
    A("buffer_store_dwordx4 v[52:55], v8, s[8:11], s36 offen")
    A.label("KF_END")
    A("s_endpgm")
```

```python
from common import *
import struct

K3_VGPR = 224
K3_AGPR = 80
K3_LDS = 4 * 64 * 336
FR = 16
YR = 196
GL = 216


def gen_k3(A):
    A(khead("k3_kernel"))
    A(f"""
s_cmp_ge_u32 s2, 256
s_cbranch_scc1 K3_END
s_load_dwordx2 s[4:5], s[0:1], {KA_WS}
s_load_dwordx2 s[6:7], s[0:1], {KA_OUT}
v_lshrrev_b32 v1, 6, v0
v_and_b32 v2, 63, v0
s_and_b32 s20, s2, 7
s_lshl_b32 s20, s20, 2
v_readfirstlane_b32 s22, v1
s_bfe_u32 s21, s2, 0x20003
s_add_u32 s20, s20, s21
s_lshr_b32 s21, s2, 5
v_lshlrev_b32 v3, 4, v2
s_mul_i32 s23, s22, 5120
s_mul_i32 s24, s20, {4*20480}
s_add_u32 s24, s24, s23
s_add_u32 s24, s24, {OIMG}
s_mul_i32 s25, s21, {5*20480}
s_add_u32 s25, s25, s23
s_add_u32 s25, s25, {WOT}
s_waitcnt lgkmcnt(0)
""")
    srd(A, 8, 4, WS_SIZE)
    srd(A, 12, 6, S * D * 2)
    for j in range(4):
        A(f"s_add_u32 s{26+j}, s24, {20480*j}")
    for j in range(5):
        A(f"s_add_u32 s{30+j}, s25, {20480*j}")
    A("v_add_u32 v4, 4096, v3")
    for i in range(5):
        va, off = ("v3", 1024 * i) if i < 4 else ("v4", 0)
        for j in range(9):
            A(f"buffer_load_dwordx4 {vr(FR+36*i+4*j,4)}, {va}, s[8:11], s{26+j} offen offset:{off}")
    A(f"""
v_lshrrev_b32 v5, 2, v0
v_and_b32 v6, 3, v0
s_lshl_b32 s36, s20, 6
v_add_u32 v7, s36, v5
v_sub_u32 v8, 2048, v7
v_cmp_lt_u32 vcc, 1024, v7
s_mul_i32 s37, s21, 80
v_mul_u32_u24 v9, 20, v6
v_add_u32 v9, s37, v9
v_cndmask_b32 v8, v7, v8, vcc
s_movk_i32 s38, {Y_PITCH}
v_mul_lo_u32 v8, v8, s38
v_sub_u32 v10, 621, v9
s_mov_b32 s40, {YM}
s_mov_b32 s41, {YP}
s_cmp_ge_u32 s21, 4
s_cselect_b32 s42, s41, s40
s_cselect_b32 s43, s40, s41
s_cselect_b64 s[44:45], -1, 0
v_mov_b32 v11, s42
v_mov_b32 v12, s43
v_cndmask_b32 v11, v11, v12, vcc
v_cndmask_b32 v10, v9, v10, s[44:45]
v_lshl_add_u32 v8, v10, 2, v8
v_add_u32 v8, v8, v11
v_lshlrev_b32 v13, 2, v7
s_mov_b32 s46, {GATE}
""")
    for i in range(5):
        A(f"buffer_load_dwordx4 {vr(YR+4*i,4)}, v8, s[8:11], 0 offen offset:{16*i}")
    A(f"buffer_load_dword v{GL}, v13, s[8:11], s46 offen")
    for i in range(5):
        A(f"s_waitcnt vmcnt({6 + 9*(4-i)})")
        for rb in range(4):
            for cb in range(5):
                acc = f"a[{4*(5*rb+cb)}:{4*(5*rb+cb)+3}]"
                c = "0" if i == 0 else acc
                A(f"v_mfma_f32_16x16x32_bf16 {acc}, {vr(FR+36*i+16+4*cb,4)}, {vr(FR+36*i+4*rb,4)}, {c}")
    A("""
v_and_b32 v14, 15, v2
v_lshrrev_b32 v15, 4, v2
s_lshl_b32 s47, s22, 6
v_add_u32 v14, s47, v14
v_mul_u32_u24 v14, 336, v14
v_lshl_add_u32 v14, v15, 4, v14
v_mul_u32_u24 v15, 336, v5
v_mul_u32_u24 v16, 80, v6
v_add_u32 v15, v15, v16
s_nop 7
""")
    for rb in range(4):
        for cb in range(5):
            acc = f"a[{4*(5*rb+cb)}:{4*(5*rb+cb)+3}]"
            A(f"ds_write_b128 v14, {acc} offset:{rb*16*336 + cb*64}")
    A("s_waitcnt lgkmcnt(0)")
    A("s_barrier")
    for kq in range(4):
        for i in range(5):
            A(f"ds_read_b128 {vr(20+20*kq+4*i,4)}, v15 offset:{kq*64*336 + 16*i}")
    A(f"""
s_waitcnt vmcnt(0)
v_mul_f32 v16, 0xbfb8aa3b, v{GL}
v_exp_f32 v16, v16
s_nop 0
v_add_f32 v16, 1.0, v16
v_rcp_f32 v16, v16
s_movk_i32 s38, 1280
v_mul_lo_u32 v18, v7, s38
v_sub_f32 v17, 1.0, v16
v_lshl_add_u32 v18, v9, 1, v18
s_waitcnt lgkmcnt(0)
""")
    for i in range(20):
        A(f"v_add_f32 v{20+i}, v{20+i}, v{40+i}")
        A(f"v_add_f32 v{60+i}, v{60+i}, v{80+i}")
    for i in range(20):
        A(f"v_add_f32 v{20+i}, v{20+i}, v{60+i}")
    for i in range(20):
        A(f"v_mul_f32 v{20+i}, v{20+i}, v17")
    A("s_cmp_ge_u32 s21, 4")
    A("s_cbranch_scc1 K3_REV")
    for i in range(20):
        A(f"v_fmac_f32 v{20+i}, v{YR+i}, v16")
    A("s_branch K3_ST")
    A.label("K3_REV")
    for i in range(20):
        A(f"v_fmac_f32 v{20+i}, v{YR+19-i}, v16")
    A.label("K3_ST")
    for i in range(10):
        A(f"v_cvt_pk_bf16_f32 v{40+i}, v{20+2*i}, v{21+2*i}")
    A("""
buffer_store_dwordx4 v[40:43], v18, s[12:15], 0 offen
buffer_store_dwordx4 v[44:47], v18, s[12:15], 0 offen offset:16
buffer_store_dwordx2 v[48:49], v18, s[12:15], 0 offen offset:32
""")
    A.label("K3_END")
    A("s_endpgm")
```

```python
import sys, os
sys.path.insert(0, os.path.dirname(__file__))
from common import *
import k1, k2, k3

def build():
    A = Asm()
    k1.gen_k1(A)
    k2.gen_k2(A)
    k2.gen_kf(A)
    k3.gen_k3(A)
    head = f"""; gated_mix(spectral_fnet, mha_block): generated by gen/gen.py (hand-designed kernels)
; @launch kernel=k1_kernel grid=(256,1,1) block=(512,1,1) lds={k1.K1_LDS}
; @launch kernel=kf_kernel grid=(363,1,1) block=(256,1,1) lds={k2.KF_LDS}
; @launch kernel=k2_kernel grid=(256,1,1) block=(512,1,1) lds={k2.K2_LDS}
; @launch kernel=k3_kernel grid=(256,1,1) block=(256,1,1) lds={k3.K3_LDS}
.amdgcn_target "amdgcn-amd-amdhsa--gfx950"
.text
"""
    tail = '.section .rodata,"a"\n' + kd("k1_kernel", k1.K1_VGPR) + kd("k2_kernel", k2.K2_VGPR) + kd("kf_kernel", k2.KF_VGPR) + kd("k3_kernel", k3.K3_VGPR, agpr=k3.K3_AGPR)
    return head + A.text() + tail

if __name__ == "__main__":
    out = sys.argv[1] if len(sys.argv) > 1 else "gated_mix__spectral_fnet__mha_block__prompt.s"
    open(out, "w").write(build())
    print("wrote", out)
```

```python
S, D, H, DH = 2048, 640, 32, 20

QIMG   = 0x0
Q_HS, Q_TS = 81920, 1280
KVIMG  = 0x300000
KV_HS, KV_TS = 167936, 2624
KMAX   = 0x840000
GATE   = 0x850000
FAC    = 0x860000
FAS    = 0x920000
FA_KS  = 11264
WOT    = 0x9E0000
OIMG   = 0xAC0000
YM     = 0xD40000
YP     = 0xEC0000
Y_PITCH = 352 * 4
WS_SIZE = 0x1100000

KA_X, KA_SRE, KA_SIM, KA_HRE, KA_HIM, KA_BX, KA_WQKV, KA_WO, KA_GATE, KA_OUT, KA_DBG, KA_WS = [8 * i for i in range(12)]


class Asm:
    def __init__(self):
        self.lines = []

    def __call__(self, s):
        for ln in s.strip("\n").split("\n"):
            self.lines.append(ln if ln.rstrip().endswith(":") else "    " + ln.strip())

    def label(self, l):
        self.lines.append(l + ":")

    def text(self):
        return "\n".join(self.lines) + "\n"


def vr(a, n=1):
    return f"v{a}" if n == 1 else f"v[{a}:{a+n-1}]"


def sr(a, n=1):
    return f"s{a}" if n == 1 else f"s[{a}:{a+n-1}]"


def srd(A, d, base, size):
    A(f"s_mov_b32 s{d}, s{base}")
    A(f"s_and_b32 s{d+1}, s{base+1}, 0xffff")
    A(f"s_mov_b32 s{d+2}, {size}")
    A(f"s_mov_b32 s{d+3}, 0x00020000")


def kd(name, vgpr, sgpr=96, agpr=0):
    acc = (vgpr + 3) // 4 * 4
    nfv = acc + agpr if agpr else vgpr
    return f""".p2align 6
.amdhsa_kernel {name}
  .amdhsa_next_free_vgpr {nfv}
  .amdhsa_next_free_sgpr {sgpr}
  .amdhsa_accum_offset {acc}
  .amdhsa_group_segment_fixed_size 0
  .amdhsa_kernarg_size 96
  .amdhsa_user_sgpr_count 2
  .amdhsa_user_sgpr_kernarg_segment_ptr 1
  .amdhsa_system_sgpr_workgroup_id_x 1
.end_amdhsa_kernel
"""


def khead(name):
    return f""".globl {name}
.p2align 8
.type {name},@function
{name}:
"""


import os
PROF = os.environ.get("KPROF", "0") == "1"
PROF_BASE = 0x2000000


def stamp(A, i):
    if PROF:
        A(f"s_memtime s[{80+2*i}:{81+2*i}]")


def prof_begin(A):
    if PROF:
        A("s_memrealtime s[76:77]")
        A("s_mov_b32 s75, s2")
        A("v_lshrrev_b32 v1, 6, v0")
        A("s_nop 0")
        A("v_readfirstlane_b32 s74, v1")
        for i in range(1, 8):
            A(f"s_mov_b32 s{80+2*i}, 0")
        A("s_memtime s[80:81]")


def prof_end(A, kidx):
    if PROF:
        A("s_mov_b64 exec, -1")
        A("s_waitcnt vmcnt(0) lgkmcnt(0)")
        A("s_memtime s[94:95]")
        A("s_memrealtime s[78:79]")
        A(f"s_load_dwordx2 s[68:69], s[0:1], {KA_WS}")
        A("s_waitcnt lgkmcnt(0)")
        A("s_and_b32 s69, s69, 0xffff")
        A("s_mov_b32 s70, 0x10000000")
        A("s_mov_b32 s71, 0x00020000")
        A("s_lshl_b32 s72, s75, 4")
        A("s_add_u32 s72, s72, s74")
        A("s_lshl_b32 s72, s72, 6")
        A(f"s_add_u32 s72, s72, {PROF_BASE + kidx * 0x100000}")
        A("v_mov_b32 v0, 0")
        for i in range(8):
            A(f"v_mov_b32 v{4+i}, s{80+2*i}")
        A("v_mov_b32 v12, s76")
        A("v_mov_b32 v13, s78")
        A("s_getreg_b32 s73, hwreg(HW_REG_HW_ID)")
        A("v_mov_b32 v14, s73")
        A("s_getreg_b32 s73, hwreg(HW_REG_XCC_ID)")
        A("v_mov_b32 v15, s73")
        A("buffer_store_dwordx4 v[4:7], v0, s[68:71], s72 offen")
        A("buffer_store_dwordx4 v[8:11], v0, s[68:71], s72 offen offset:16")
        A("buffer_store_dwordx4 v[12:15], v0, s[68:71], s72 offen offset:32")
```

```python
from common import *
import struct, math

def f32hex(x):
    return "0x%08x" % struct.unpack("<I", struct.pack("<f", x))[0]

STF = os.environ.get("K1_STF", "")
QSCALE = (DH ** -0.5) * math.log2(math.e)

ACC = 16
SET = [96, 120]
XB, WB = 144, 148
XA, WA = 150, 154
K1_VGPR = 160
K1_LDS = 65536 + 4 * 20480


def k1_reads(kind, kap, st):
    b0 = SET[st]
    out = [f"ds_read_b128 {vr(b0,4)}, v{XA+kap}"]
    for b in range(5):
        for rd in range(2):
            if kind == 0:
                a = WA if b < 4 else WA + 1
                off = (16 * kap + 4 * rd) * 320 + (80 * b if b < 4 else 0)
            else:
                a = WA
                off = (16 * kap + 4 * rd) * 320 + 64 * b
            out.append(f"ds_read_b64_tr_b16 {vr(b0+4+4*b+2*rd,2)}, v{a} offset:{off}")
    return out


def k1_mfmas(kind, st):
    b0 = SET[st]
    out = []
    for b in range(5):
        acc = vr(ACC + 16 * b, 16)
        xf, wf = vr(b0, 4), vr(b0 + 4 + 4 * b, 4)
        if kind == 0:
            out.append(f"v_mfma_f32_32x32x16_bf16 {acc}, {wf}, {xf}, {acc}")
        else:
            out.append(f"v_mfma_f32_32x32x16_bf16 {acc}, {xf}, {wf}, {acc}")
    return out


def interleave(A, mf, rd, extra=()):
    chunks = [rd[0:4], rd[4:8], rd[8:11], list(extra), []]
    for m, c in zip(mf, chunks):
        A(m)
        for x in c:
            A(x)


def k1_mainloop(A, kind):
    L = f"K1_LOOP{kind}"
    A("v_and_b32 v1, 31, v0")
    A("v_lshrrev_b32 v2, 5, v0")
    A("s_lshl_b32 s48, s34, 12")
    A("v_lshlrev_b32 v3, 7, v1")
    A("v_add_u32 v3, s48, v3")
    A("v_bfe_u32 v4, v1, 1, 3")
    for kap in range(4):
        A(f"v_add_u32 v5, {2*kap}, v2")
        A("v_xor_b32 v5, v5, v4")
        A(f"v_lshl_add_u32 v{XB+kap}, v5, 4, v3")
    A("v_bfe_u32 v5, v0, 4, 1")
    A("v_bfe_u32 v6, v0, 2, 2")
    A("v_and_b32 v7, 3, v0")
    A("v_lshl_add_u32 v8, v2, 3, v6")
    A("v_mul_u32_u24 v8, 320, v8")
    A("v_add_u32 v8, 0x10000, v8")
    if kind == 1:
        A("v_lshl_add_u32 v9, v5, 5, v8")
        A(f"v_lshl_add_u32 v{WB}, v7, 3, v9")
        A(f"v_mov_b32 v{WB+1}, v{WB}")
    else:
        A("v_mul_u32_u24 v9, 40, v5")
        A("v_add_u32 v9, v9, v8")
        A("v_and_b32 v10, 1, v7")
        A("v_lshl_add_u32 v9, v10, 4, v9")
        A("v_lshrrev_b32 v10, 1, v7")
        A(f"v_lshl_add_u32 v{WB}, v10, 3, v9")
        A("v_lshl_add_u32 v10, v5, 2, v7")
        A("v_mul_u32_u24 v10, 40, v10")
        A("v_add3_u32 v%d, v10, v8, 32" % (WB + 1))
    for i in range(6):
        A(f"v_mov_b32 v{XA+i}, v{XB+i}")
    for i in range(80):
        A(f"v_mov_b32 v{ACC+i}, 0")
    for i in range(24):
        A(f"v_mov_b32 v{SET[1]+i}, 0")
    A("s_mov_b32 s60, 0")
    stamp(A, 1)
    if PROF:
        A("s_barrier")
        stamp(A, 2)
        A(f"s_branch {L}_B")
    A.label(L)
    A("s_barrier")
    A.label(L + "_B")
    interleave(A, k1_mfmas(kind, 1), k1_reads(kind, 0, 0),
               extra=["s_add_u32 s60, s60, 1", "s_and_b32 s61, s60, 3", "s_lshl_b32 s62, s61, 14", "s_mul_i32 s63, s61, 20480"])
    A("s_waitcnt lgkmcnt(0)")
    interleave(A, k1_mfmas(kind, 0), k1_reads(kind, 1, 1))
    A("s_waitcnt lgkmcnt(0)")
    interleave(A, k1_mfmas(kind, 1), k1_reads(kind, 2, 0))
    A("s_waitcnt lgkmcnt(0)")
    upd = [f"v_add_u32 v{XA+i}, s62, v{XB+i}" for i in range(4)] + [f"v_add_u32 v{WA+i}, s63, v{WB+i}" for i in range(2)]
    interleave(A, k1_mfmas(kind, 0), k1_reads(kind, 3, 1), extra=upd)
    A("s_cmp_lt_u32 s60, 10")
    A("s_waitcnt lgkmcnt(0)")
    A(f"s_cbranch_scc1 {L}")
    stamp(A, 3)
    for m in k1_mfmas(kind, 1):
        A(m)
    A("s_nop 15")
    A("s_nop 7")


def gen_k1(A):
    A(khead("k1_kernel"))
    A(f"""
s_cmp_ge_u32 s2, 256
s_cbranch_scc1 K1_EXIT
""")
    prof_begin(A)
    A(f"""
s_load_dwordx2 s[4:5], s[0:1], {KA_X}
s_load_dwordx4 s[20:23], s[0:1], {KA_HRE}
s_load_dwordx4 s[24:27], s[0:1], {KA_WQKV}
s_load_dwordx2 s[28:29], s[0:1], {KA_GATE}
s_load_dwordx2 s[30:31], s[0:1], {KA_WS}
v_lshrrev_b32 v1, 6, v0
v_and_b32 v0, 63, v0
s_and_b32 s48, s2, 7
s_lshr_b32 s49, s2, 3
v_readfirstlane_b32 s34, v1
s_and_b32 s50, s48, 1
s_lshl_b32 s50, s50, 3
s_and_b32 s51, s49, 7
s_add_u32 s32, s50, s51
s_lshr_b32 s35, s48, 1
s_lshl_b32 s50, s35, 2
s_lshr_b32 s52, s49, 3
s_add_u32 s33, s50, s52
s_cmp_lt_u32 s34, 4
s_cbranch_scc1 K1_COMPUTE
""")
    A("""
s_mul_i32 s38, s52, 3
s_add_u32 s38, s38, s51
s_add_u32 s38, s38, s35
s_sub_u32 s39, s38, 10
s_cmp_ge_u32 s38, 10
s_cselect_b32 s38, s39, s38
""")
    if os.environ.get("K1_STAGGER", "0") != "1":
        A("s_mov_b32 s38, 0")
    A("""
s_movk_i32 s54, 1280
s_movk_i32 s55, 3840
s_and_b32 s56, s33, 1
s_cmp_eq_u32 s35, 3
s_cselect_b32 s36, s54, s55
s_cselect_b32 s37, s56, s33
s_mul_i32 s37, s37, 320
s_sub_u32 s34, s34, 4
v_lshrrev_b32 v1, 3, v0
v_and_b32 v2, 7, v0
v_lshrrev_b32 v3, 4, v0
v_xor_b32 v4, v2, v3
v_lshlrev_b32 v4, 4, v4
v_xor_b32 v5, 64, v4
s_movk_i32 s48, 1280
s_cmp_eq_u32 s35, 3
s_cbranch_scc1 K1_LD_F
s_lshl_b32 s49, s32, 7
s_lshl_b32 s50, s34, 5
s_add_u32 s49, s49, s50
v_add_u32 v6, s49, v1
v_mul_u32_u24 v6, s48, v6
v_add_u32 v10, v6, v4
v_add_u32 v11, v6, v5
v_add_u32 v11, 10240, v11
v_add_u32 v12, 20480, v10
v_add_u32 v13, 20480, v11
s_branch K1_LD_W
K1_LD_F:
s_lshl_b32 s49, s32, 6
s_lshl_b32 s50, s34, 3
s_add_u32 s49, s49, s50
v_and_b32 v6, 3, v1
v_and_b32 v7, 32, v0
v_add3_u32 v6, v6, v7, s49
v_add_u32 v7, 4, v6
v_sub_u32 v8, 2048, v6
v_sub_u32 v9, 2048, v7
v_cmp_eq_u32 vcc, 0, v6
v_mov_b32 v14, 1024
v_mul_u32_u24 v6, s48, v6
v_mul_u32_u24 v7, s48, v7
v_cndmask_b32 v8, v8, v14, vcc
v_mul_u32_u24 v9, s48, v9
v_mul_u32_u24 v8, s48, v8
v_add_u32 v10, v6, v4
v_add_u32 v11, v7, v5
v_add_u32 v12, v8, v4
v_add_u32 v13, v9, v5
K1_LD_W:
s_mul_i32 s49, s34, 320
v_add_u32 v6, s49, v0
""")
    for q in range(5):
        if q:
            A(f"v_add_u32 v6, 64, v6")
        A("v_mul_u32_u24 v7, 3277, v6")
        A("v_lshrrev_b32 v7, 16, v7")
        A("v_mul_u32_u24 v8, 20, v7")
        A("v_sub_u32 v8, v6, v8")
        A("v_mul_u32_u24 v7, s36, v7")
        A("v_lshl_add_u32 v8, v8, 4, s37")
        A(f"v_add_u32 v{14+q}, v7, v8")
    A("""
s_lshl_b32 s52, s34, 12
s_mul_i32 s53, s34, 5120
s_lshl_b32 s55, s36, 6
s_lshl_b32 s51, s38, 7
s_mul_i32 s54, s38, s55
s_mov_b32 s56, 819200
s_mov_b32 s57, 2457600
s_mov_b32 s10, 2621440
s_mov_b32 s11, 0x00020000
s_mov_b32 s15, 0x00020000
s_waitcnt lgkmcnt(0)
s_mov_b32 s8, s4
s_and_b32 s9, s5, 0xffff
s_cmp_lt_u32 s33, 14
s_cselect_b32 s6, s20, s22
s_cselect_b32 s7, s21, s23
s_cmp_eq_u32 s35, 3
s_cselect_b32 s12, s6, s24
s_cselect_b32 s13, s7, s25
s_cselect_b32 s14, s56, s57
s_and_b32 s13, s13, 0xffff
""")

    def issue(c):
        slot = c & 3
        for q in range(4):
            A(f"s_add_u32 m0, s52, {slot*16384 + q*1024}")
            A("s_nop 0")
            A(f"buffer_load_dwordx4 v{10+q}, s[8:11], s51 offen lds")
        for q in range(5):
            A(f"s_add_u32 m0, s53, {65536 + slot*20480 + q*1024}")
            A("s_nop 0")
            A(f"buffer_load_dwordx4 v{14+q}, s[12:15], s54 offen lds")
        A("s_add_u32 s38, s38, 1")
        A("s_cmp_eq_u32 s38, 10")
        A("s_cselect_b32 s38, 0, s38")
        A("s_lshl_b32 s51, s38, 7")
        A("s_mul_i32 s54, s38, s55")

    def side_loads():
        srd(A, 16, 30, WS_SIZE)
        srd(A, 40, 26, D * D * 2)
        srd(A, 44, 28, D * 2)
        A("""
s_lshl_b32 s56, s2, 2
s_add_u32 s56, s56, s34
s_sub_u32 s57, 2048, s56
s_cmp_eq_u32 s56, 0
s_cselect_b32 s57, 1024, s57
s_mul_i32 s58, s56, 1280
s_mul_i32 s59, s57, 1280
v_mul_u32_u24 v20, 20, v0
buffer_load_dwordx4 v[24:27], v20, s[8:11], s58 offen
buffer_load_dword v28, v20, s[8:11], s58 offen offset:16
buffer_load_dwordx4 v[32:35], v20, s[8:11], s59 offen
buffer_load_dword v36, v20, s[8:11], s59 offen offset:16
buffer_load_dwordx4 v[40:43], v20, s[44:47], 0 offen
buffer_load_dword v44, v20, s[44:47], 0 offen offset:16
s_mul_i32 s60, s56, 3277
s_lshr_b32 s60, s60, 16
s_mul_i32 s61, s60, 20
s_sub_u32 s61, s56, s61
v_lshrrev_b32 v21, 4, v0
v_and_b32 v22, 15, v0
s_cmp_lt_u32 s61, 16
s_cbranch_scc0 K1_WOT_HI
s_mul_i32 s62, s61, 40
v_lshrrev_b32 v23, 1, v21
v_mul_u32_u24 v23, 20, v23
v_and_b32 v29, 1, v21
v_lshl_add_u32 v23, v29, 2, v23
v_add_u32 v23, s62, v23
s_movk_i32 s63, 10240
s_branch K1_WOT_GO
K1_WOT_HI:
s_sub_u32 s62, s61, 16
s_mul_i32 s62, s62, 160
s_add_u32 s62, s62, 16
v_mul_u32_u24 v23, 40, v21
v_add_u32 v23, s62, v23
s_movk_i32 s63, 25600
K1_WOT_GO:
v_mul_u32_u24 v23, s48, v23
s_lshl_b32 s60, s60, 5
v_lshl_add_u32 v23, v22, 1, v23
v_add_u32 v23, s60, v23
v_add_u32 v29, s63, v23
""")
        for half, a in ((0, 23), (1, 29)):
            for j in range(4):
                reg = (68 if (j & 1) else 48) + 2 * half + (j >> 1)
                A(f"buffer_load_ushort v{reg}, v{a}, s[40:43], 0 offen offset:{1280*j}")

    stamp(A, 1)
    issue(0)
    issue(1)
    stamp(A, 2)
    NS = 14
    for c in range(10):
        n = {0: 9, 1: 18, 2: 18 + NS, 3: 18 + NS, 4: 18 + NS, 5: 18, 6: 18, 7: 18, 8: 9, 9: 0}[c]
        A(f"s_waitcnt vmcnt({n})")
        if c in (0, 1, 4, 9):
            stamp(A, {0: 3, 1: 4, 4: 5, 9: 6}[c])
        A("s_barrier")
        if c == 0:
            issue(2)
        if c + 3 <= 9:
            issue(c + 3)
        if c == 1:
            side_loads()
        if c == 7:
            A("v_mov_b32 v56, 0xbf803f80")
            for i in range(4):
                A(f"v_lshl_or_b32 v{48+i}, v{68+i}, 16, v{48+i}")
            xs = [24, 25, 26, 27, 28]
            xm = [32, 33, 34, 35, 36]
            gw = [40, 41, 42, 43, 44]
            for j in range(5):
                for acc, a, b in ((52, xs[j], gw[j]), (53, xm[j], gw[j]), (54, xs[j], 56), (55, xm[j], 56)):
                    cc = "0" if j == 0 else f"v{acc}"
                    A(f"v_dot2_f32_bf16 v{acc}, v{a}, v{b}, {cc}")
            A("s_nop 3")
            for ror in (1, 2, 4, 8):
                for i in range(4):
                    A(f"v_add_f32_dpp v{52+i}, v{52+i}, v{52+i} row_ror:{ror} row_mask:0xf bank_mask:0xf")
                A("s_nop 1")
            for i in range(4):
                A(f"v_add_f32_dpp v{52+i}, v{52+i}, v{52+i} row_bcast:15 row_mask:0xa bank_mask:0xf")
            A("s_nop 1")
            for i in range(4):
                A(f"v_add_f32_dpp v{52+i}, v{52+i}, v{52+i} row_bcast:31 row_mask:0xc bank_mask:0xf")
            A("s_nop 1")
    A(f"""
s_lshl_b32 s60, s56, 10
s_add_u32 s60, s60, {WOT}
v_lshlrev_b32 v20, 4, v0
s_cmp_lt_u32 s56, 800
s_cbranch_scc0 K1_NO_WOT
buffer_store_dwordx4 v[48:51], v20, s[16:19], s60 offen
K1_NO_WOT:
v_mov_b32 v20, 0
v_cmp_eq_u32 vcc, 63, v0
s_and_saveexec_b64 s[64:65], vcc
s_lshl_b32 s60, s56, 2
s_add_u32 s60, s60, {GATE}
s_lshl_b32 s61, s57, 2
s_add_u32 s61, s61, {GATE}
buffer_store_dword v52, v20, s[16:19], s60 offen
buffer_store_dword v53, v20, s[16:19], s61 offen
""")
    A(f"""
s_lshr_b32 s60, s56, 6
s_lshl_b32 s60, s60, 2
s_bfe_u32 s61, s56, 0x20003
s_add_u32 s60, s60, s61
s_mul_i32 s60, s60, {FA_KS}
s_bfe_u32 s61, s56, 0x10005
s_lshl_b32 s61, s61, 9
s_add_u32 s60, s60, s61
s_and_b32 s61, s56, 7
s_lshl_b32 s61, s61, 1
s_add_u32 s60, s60, s61
s_add_u32 s60, s60, {FAC + 10*1024}
s_cmp_eq_u32 s56, 0
s_cbranch_scc1 K1_ALT0
v_add_f32 v54, v54, v55
v_cvt_pk_bf16_f32 v54, v54, v54
buffer_store_short v54, v20, s[16:19], s60 offen
s_branch K1_END
K1_ALT0:
v_cvt_pk_bf16_f32 v54, v54, v54
buffer_store_short v54, v20, s[16:19], s60 offen
v_cvt_pk_bf16_f32 v60, v55, 0
v_mov_b32 v61, 0
v_mov_b32 v62, 0
v_mov_b32 v63, 0
v_mov_b32 v64, 0
s_mov_b32 s60, {FAC + 64*FA_KS + 10*1024}
buffer_store_dwordx4 v[60:63], v20, s[16:19], s60 offen
v_mov_b32 v66, 0
v_mov_b32 v67, 0
v_mov_b32 v65, 0
buffer_store_dwordx4 v[64:67], v20, s[16:19], s60 offen offset:512
""")
    A("s_branch K1_END")
    A.label("K1_COMPUTE")
    if os.environ.get("K1_PREFETCH", "1") == "1":
        A("""
s_movk_i32 s54, 1280
s_movk_i32 s55, 3840
s_and_b32 s56, s33, 1
s_cmp_eq_u32 s35, 3
s_cselect_b32 s36, s54, s55
s_cselect_b32 s37, s56, s33
s_mul_i32 s37, s37, 320
v_and_b32 v1, 31, v0
v_lshrrev_b32 v2, 5, v0
s_cmp_eq_u32 s35, 3
s_cbranch_scc1 K1_PF_F
s_lshl_b32 s49, s32, 7
s_lshl_b32 s50, s52, 5
s_add_u32 s49, s49, s50
v_add_u32 v3, s49, v1
s_branch K1_PF_X
K1_PF_F:
s_lshl_b32 s49, s32, 6
s_lshl_b32 s50, s52, 3
s_add_u32 s49, s49, s50
v_and_b32 v3, 3, v1
v_bfe_u32 v4, v1, 2, 1
v_lshl_add_u32 v3, v4, 5, v3
v_bfe_u32 v4, v1, 3, 1
v_lshl_add_u32 v3, v4, 2, v3
v_add_u32 v3, s49, v3
v_sub_u32 v4, 2048, v3
v_and_b32 v4, 2047, v4
v_cmp_lt_u32 vcc, 15, v1
s_nop 1
v_cndmask_b32 v3, v3, v4, vcc
K1_PF_X:
v_mul_u32_u24 v3, s54, v3
v_lshl_add_u32 v3, v2, 7, v3
s_add_u32 s49, s34, 1
s_lshl_b32 s50, s49, 8
v_bfe_u32 v4, v0, 2, 3
v_lshl_add_u32 v4, v2, 6, v4
s_lshl_b32 s53, s51, 3
s_lshl_b32 s57, s49, 7
s_add_u32 s53, s53, s57
v_add_u32 v4, s53, v4
v_mul_u32_u24 v4, s36, v4
v_and_b32 v5, 3, v0
v_lshlrev_b32 v5, 7, v5
v_min_u32 v5, 316, v5
v_add3_u32 v4, v4, v5, s37
s_mov_b32 s56, 819200
s_mov_b32 s57, 2457600
s_mov_b32 s10, 2621440
s_mov_b32 s11, 0x00020000
s_mov_b32 s15, 0x00020000
s_waitcnt lgkmcnt(0)
s_mov_b32 s8, s4
s_and_b32 s9, s5, 0xffff
s_cmp_lt_u32 s33, 14
s_cselect_b32 s6, s20, s22
s_cselect_b32 s7, s21, s23
s_cmp_eq_u32 s35, 3
s_cselect_b32 s12, s6, s24
s_cselect_b32 s13, s7, s25
s_cselect_b32 s14, s56, s57
s_and_b32 s13, s13, 0xffff
buffer_load_dword v158, v3, s[8:11], s50 offen
buffer_load_dword v159, v4, s[12:15], 0 offen
""")
    A("s_waitcnt lgkmcnt(0)")
    srd(A, 16, 30, WS_SIZE)
    A("""
s_cmp_ge_u32 s35, 2
s_cbranch_scc1 K1_VF
""")
    k1_mainloop(A, 0)
    A(f"""
s_lshl_b32 s48, s32, 2
s_add_u32 s48, s48, s34
s_and_b32 s49, s33, 3
s_lshl_b32 s49, s49, 3
s_mov_b32 s50, {Q_HS}
s_mov_b32 s51, {KV_HS}
s_mov_b32 s52, {f32hex(QSCALE)}
s_mov_b32 s53, 1.0
s_mul_i32 s54, s48, {Q_TS}
s_add_u32 s54, s54, {QIMG}
s_add_u32 s55, s48, 62
s_and_b32 s55, s55, 63
s_mul_i32 s55, s55, {KV_TS}
s_add_u32 s55, s55, {KVIMG}
s_cmp_eq_u32 s35, 0
s_cselect_b32 s56, s50, s51
s_cselect_b32 s58, s52, s53
s_cselect_b32 s59, s52, s53
s_cselect_b32 s57, s54, s55
s_mul_i32 s60, s49, s56
s_add_u32 s60, s60, s57
v_lshlrev_b32 v3, 4, v0
v_mul_lo_u32 v4, v2, s56
v_lshl_add_u32 v4, v1, 3, v4
v_add_u32 v4, 1024, v4
""")
    for i in range(40):
        A(f"v_pk_mul_f32 {vr(ACC+2*i,2)}, {vr(ACC+2*i,2)}, s[58:59]")
    PK = 96
    for i in range(40):
        A(f"v_cvt_pk_bf16_f32 v{PK+i}, v{ACC+2*i}, v{ACC+2*i+1}")
    A("s_mov_b32 s61, s60")
    for hd in range(8):
        A(f"buffer_store_dwordx4 {vr(PK+4*hd,4)}, v3, s[16:19], s61 offen")
        A("s_add_u32 s61, s61, s56")
    A("s_mov_b32 s61, s60")
    A("s_lshl_b32 s62, s56, 1")
    for i in range(4):
        A(f"buffer_store_dwordx2 {vr(PK+32+2*i,2)}, v4, s[16:19], s61 offen")
        A("s_add_u32 s61, s61, s62")
    A("s_cmp_eq_u32 s35, 0")
    A("s_cbranch_scc1 K1_END")
    for j in range(4):
        for hd in range(8):
            src = PK + 4 * hd + j
            c = "0" if j == 0 else f"v{16+hd}"
            A(f"v_dot2_f32_bf16 v{16+hd}, v{src}, v{src}, {c}")
    for j in range(2):
        for i in range(4):
            src = PK + 32 + 2 * i + j
            c = "0" if j == 0 else f"v{24+i}"
            A(f"v_dot2_f32_bf16 v{24+i}, v{src}, v{src}, {c}")
    A("s_nop 4")
    for i in range(4):
        A(f"v_permlane32_swap_b32 v{16+2*i}, v{17+2*i}")
    A("s_nop 1")
    for i in range(4):
        A(f"v_add_f32 v{16+2*i}, v{16+2*i}, v{17+2*i}")
    for i in range(4):
        A(f"v_add_f32 v{24+i}, v{24+i}, v{16+2*i}")
    for ror in (1, 2, 4, 8):
        A("s_nop 1")
        for i in range(4):
            A(f"v_max_f32_dpp v{24+i}, v{24+i}, v{24+i} row_ror:{ror} row_mask:0xf bank_mask:0xf")
    A("s_nop 1")
    for i in range(4):
        A(f"v_max_f32_dpp v{24+i}, v{24+i}, v{24+i} row_bcast:15 row_mask:0xa bank_mask:0xf")
    A(f"""
s_lshl_b32 s61, s49, 8
s_lshl_b32 s62, s48, 2
s_add_u32 s61, s61, s62
s_add_u32 s61, s61, {KMAX}
v_lshlrev_b32 v5, 8, v2
v_cmp_eq_u32 vcc, 31, v1
s_and_saveexec_b64 s[64:65], vcc
""")
    for i in range(4):
        A(f"buffer_store_dword v{24+i}, v5, s[16:19], s61 offen offset:{512*i}")
    A("s_branch K1_END")

    A.label("K1_VF")
    k1_mainloop(A, 1)
    A("s_cmp_eq_u32 s35, 3")
    A("s_cbranch_scc1 K1_F")
    PK = 96
    for i in range(40):
        A(f"v_cvt_pk_bf16_f32 v{PK+i}, v{ACC+2*i}, v{ACC+2*i+1}")
    A(f"""
s_lshl_b32 s48, s32, 2
s_add_u32 s48, s48, s34
s_and_b32 s49, s33, 3
s_mul_i32 s49, s49, {8*KV_HS}
s_mul_i32 s50, s48, {KV_TS}
s_add_u32 s60, s49, s50
s_add_u32 s60, s60, {KVIMG + 1280}
s_mov_b32 s51, {KV_HS}
v_mul_u32_u24 v3, 336, v2
""")
    for b in range(5):
        A(f"v_add_u32 v4, {32*b}, v1")
        A("v_mul_u32_u24 v5, 3277, v4")
        A("v_lshrrev_b32 v5, 16, v5")
        A("v_mul_u32_u24 v6, 20, v5")
        A("v_sub_u32 v6, v4, v6")
        A("v_mul_lo_u32 v5, v5, s51")
        A("v_lshl_add_u32 v6, v6, 4, v3")
        A(f"v_add_u32 v{8+b}, v5, v6")
    for b in range(5):
        A(f"buffer_store_dwordx4 {vr(PK+8*b,4)}, v{8+b}, s[16:19], s60 offen")
        A(f"buffer_store_dwordx4 {vr(PK+8*b+4,4)}, v{8+b}, s[16:19], s60 offen offset:672")
    A("""
v_lshrrev_b32 v4, 2, v0
v_mul_lo_u32 v4, v4, s51
v_and_b32 v5, 3, v0
v_mul_u32_u24 v5, 336, v5
v_add_u32 v4, v4, v5
v_mov_b32 v16, 0x3f803f80
v_mov_b32 v17, 0x3f803f80
v_mov_b32 v18, 0x3f803f80
v_mov_b32 v19, 0x3f803f80
v_cmp_gt_u32 vcc, 32, v0
s_and_saveexec_b64 s[64:65], vcc
buffer_store_dwordx4 v[16:19], v4, s[16:19], s60 offen offset:320
s_branch K1_END
""")
    A.label("K1_F")
    A(f"""
s_lshl_b32 s48, s32, 2
s_add_u32 s48, s48, s34
s_mov_b32 s50, {FAC}
s_mov_b32 s51, {FAS}
s_mov_b32 s52, 1.0
s_mov_b32 s53, -1.0
s_cmp_lt_u32 s33, 14
s_cselect_b32 s54, s50, s51
s_cselect_b32 s55, s52, s53
s_and_b32 s49, s33, 1
s_mul_i32 s49, s49, 5120
s_add_u32 s54, s54, s49
s_mul_i32 s60, s48, {FA_KS}
s_add_u32 s60, s60, s54
v_lshlrev_b32 v3, 4, v0
s_cmp_lg_u32 s48, 0
s_cbranch_scc1 K1_F_NOSPECIAL
s_add_u32 s61, s54, {64*FA_KS}
v_cmp_gt_u32 vcc, 32, v0
v_mov_b32 v5, 0
v_mov_b32 v6, 0
v_mov_b32 v7, 0
""")
    for b in range(5):
        r8 = ACC + 16 * b + 8
        A(f"v_cndmask_b32 v8, 0, v{r8}, vcc")
        A(f"v_cvt_pk_bf16_f32 v4, v8, 0")
        A(f"v_cndmask_b32 v{r8}, v{r8}, v5, vcc")
        A(f"buffer_store_dwordx4 v[4:7], v3, s[16:19], s61 offen offset:{0}")
        A("s_add_u32 s61, s61, 1024")
        A("s_nop 1")
    A.label("K1_F_NOSPECIAL")
    for b in range(5):
        for r in range(8):
            a = ACC + 16 * b + r
            A(f"v_fma_f32 v{a}, v{a+8}, s55, v{a}")
    for b in range(5):
        for i in range(4):
            a = ACC + 16 * b + 2 * i
            A(f"v_cvt_pk_bf16_f32 v{PK+4*b+i}, v{a}, v{a+1}")
    for b in range(4):
        A(f"buffer_store_dwordx4 {vr(PK+4*b,4)}, v3, s[16:19], s60 offen offset:{1024*b}")
    A("s_add_u32 s60, s60, 4096")
    A(f"buffer_store_dwordx4 {vr(PK+16,4)}, v3, s[16:19], s60 offen")
    A("s_branch K1_END")

    A.label("K1_END")
    prof_end(A, 0)
    A.label("K1_EXIT")
    A("s_endpgm")
```

```python
from common import *

SA, SB, PA, PB, OA, OB = 16, 32, 48, 56, 64, 80
QA1, QB1, QA2, QB2 = 96, 100, 104, 106
K1F, K2F, V0, V1 = 108, 112, 116, 120
KA1, KA2, VA = 9, 10, 11
DV = 12
K2_VGPR = 128
SLOT = 21504
CHUNK = 8 * KV_TS
XCH = 2 * SLOT
K2_LDS = XCH + 8 * 3072 + 64
K2_GRID = 256 + 8 * 46
VMASK = os.environ.get("K2_VMASK", "1") == "1"


def softmax_groups(Sx, Px):
    gs = []
    for g in range(4):
        l = [f"v_exp_f32 v{Sx+4*g+i}, v{Sx+4*g+i}" for i in range(4)]
        l += [f"v_cvt_pk_bf16_f32 v{Px+2*g+i}, v{Sx+4*g+2*i}, v{Sx+4*g+2*i+1}" for i in range(2)]
        gs.append(l)
    return gs


def qk(Sx, Q1, Q2):
    return [f"v_mfma_f32_32x32x8_bf16 {vr(Sx,16)}, {vr(K2F,2)}, {vr(Q2,2)}, 0",
            f"v_mfma_f32_32x32x16_bf16 {vr(Sx,16)}, {vr(K1F,4)}, {vr(Q1,4)}, {vr(Sx,16)}"]


def pv(Ox, Px):
    return [f"v_mfma_f32_32x32x16_bf16 {vr(Ox,16)}, {vr(V0,4)}, {vr(Px,4)}, {vr(Ox,16)}",
            f"v_mfma_f32_32x32x16_bf16 {vr(Ox,16)}, {vr(V1,4)}, {vr(Px+4,4)}, {vr(Ox,16)}"]


def gen_k2(A):
    A(khead("k2_kernel"))
    A(f"""
s_cmp_ge_u32 s2, {256 + 8*46}
s_cbranch_scc1 K2_EXIT
""")
    prof_begin(A)
    A(f"""
s_cmp_ge_u32 s2, 256
s_cbranch_scc1 KF_START
s_load_dwordx2 s[4:5], s[0:1], {KA_WS}
v_lshrrev_b32 v1, 6, v0
v_and_b32 v0, 63, v0
s_and_b32 s20, s2, 7
s_lshl_b32 s20, s20, 2
v_readfirstlane_b32 s22, v1
s_bfe_u32 s21, s2, 0x20003
s_add_u32 s20, s20, s21
s_lshr_b32 s21, s2, 5
s_and_b32 s23, s22, 3
s_lshr_b32 s24, s22, 2
s_lshl_b32 s25, s21, 3
s_lshl_b32 s26, s23, 1
s_add_u32 s25, s25, s26
s_mul_i32 s27, s20, {KV_HS}
s_add_u32 s27, s27, {KVIMG}
v_and_b32 v1, 31, v0
v_lshrrev_b32 v2, 5, v0
v_lshlrev_b32 v3, 4, v0
v_lshlrev_b32 v4, 3, v1
v_lshlrev_b32 v5, 2, v0
s_mul_i32 s28, s20, {Q_HS}
s_mul_i32 s29, s25, {Q_TS}
s_add_u32 s28, s28, s29
s_add_u32 s28, s28, {QIMG}
s_add_u32 s29, s24, 62
s_mul_i32 s29, s29, {KV_TS}
s_lshl_b32 s30, s20, 8
s_add_u32 s30, s30, {KMAX}
s_mul_i32 s31, s22, 3072
v_add_u32 v{DV}, s31, v3
s_mov_b32 m0, s31
s_waitcnt lgkmcnt(0)
""")
    A(f"""
s_add_u32 s12, s4, s27
s_addc_u32 s13, s5, 0
s_and_b32 s13, s13, 0xffff
s_mov_b32 s14, {KV_HS}
s_mov_b32 s15, 0x00020000
""")
    srd(A, 8, 4, WS_SIZE)
    A("s_cmp_eq_u32 s22, 7")
    A("s_cbranch_scc1 K2_NODMA0")
    for q in range(3):
        A(f"buffer_load_dwordx4 v{DV}, s[12:15], 0 offen offset:{1024*q} lds")
    A.label("K2_NODMA0")
    A(f"""
buffer_load_dwordx4 {vr(QA1,4)}, v3, s[8:11], s28 offen
buffer_load_dwordx4 {vr(QB1,4)}, v3, s[8:11], s28 offen offset:1280
buffer_load_dwordx2 {vr(QA2,2)}, v4, s[8:11], s28 offen offset:1024
buffer_load_dwordx2 {vr(QB2,2)}, v4, s[8:11], s28 offen offset:2304
buffer_load_dword v13, v5, s[8:11], s30 offen
buffer_load_dwordx4 {vr(K1F,4)}, v3, s[12:15], s29 offen
buffer_load_dwordx2 {vr(K2F,2)}, v4, s[12:15], s29 offen offset:1024
""")
    A(f"""
s_mul_i32 s46, s23, 5120
v_add_u32 v6, s46, v3
v_add_u32 v7, 4096, v6
s_mov_b32 s41, {CHUNK}
s_mul_i32 s32, s24, {KV_TS}
v_add_u32 v{KA1}, s32, v3
v_add_u32 v14, 1024, v4
v_mov_b32 v15, {1280+320}
v_cmp_gt_u32 vcc, 32, v0
v_mul_u32_u24 v16, 336, v2
v_lshl_add_u32 v16, v1, 4, v16
v_cndmask_b32 v14, v15, v14, vcc
v_add_u32 v{KA2}, s32, v14
v_add_u32 v16, 1280, v16
v_add_u32 v{VA}, s32, v16
s_mov_b32 s48, 0x001fffff
s_mov_b32 s49, 0x001fffff
""")
    for i in range(32):
        A(f"v_mov_b32 v{OA+i}, 0")
    for i in range(8):
        A(f"v_mov_b32 v{PB+i}, 0")
        A(f"v_mov_b32 v{V0+i}, 0")
    stamp(A, 1)
    A("s_waitcnt vmcnt(0)")
    stamp(A, 2)
    A("v_mov_b32 v15, 0x3f803f80")
    for r in (QA2, QA2 + 1, QB2, QB2 + 1):
        A(f"v_cndmask_b32 v{r}, 0, v{r}, vcc")
    for r in (K2F, K2F + 1):
        A(f"v_cndmask_b32 v{r}, v15, v{r}, vcc")
    dpp = [f"v_max_f32_dpp v13, v13, v13 row_ror:{ror} row_mask:0xf bank_mask:0xf" for ror in (1, 2, 4, 8)]
    dpp += ["v_max_f32_dpp v13, v13, v13 row_bcast:15 row_mask:0xa bank_mask:0xf",
            "v_max_f32_dpp v13, v13, v13 row_bcast:31 row_mask:0xc bank_mask:0xf"]
    for j, (ra, rb) in enumerate([(QA1 + i, QB1 + i) for i in range(4)] + [(QA2 + i, QB2 + i) for i in range(2)]):
        ca = "0" if j == 0 else "v16"
        cb = "0" if j == 0 else "v18"
        A(dpp[j])
        A(f"v_dot2_f32_bf16 v16, v{ra}, v{ra}, {ca}")
        A(f"v_dot2_f32_bf16 v18, v{rb}, v{rb}, {cb}")
    A("""
v_readlane_b32 s33, v13, 63
s_nop 2
v_mov_b32 v17, v16
v_mov_b32 v19, v18
s_nop 1
v_permlane32_swap_b32 v16, v17
v_permlane32_swap_b32 v18, v19
s_nop 1
v_add_f32 v16, v16, v17
v_add_f32 v18, v18, v19
v_mul_f32 v16, s33, v16
v_mul_f32 v18, s33, v18
v_sqrt_f32 v16, v16
v_sqrt_f32 v18, v18
s_nop 0
v_mul_f32 v16, -1.0, v16
v_mul_f32 v18, -1.0, v18
""")
    for (m, Q2) in ((16, QA2), (18, QB2)):
        A(f"""
v_and_b32 v20, 0xffff0000, v{m}
v_sub_f32 v21, v{m}, v20
v_and_b32 v22, 0xffff0000, v21
v_sub_f32 v23, v21, v22
v_lshrrev_b32 v20, 16, v20
v_or_b32 v20, v20, v22
v_lshrrev_b32 v23, 16, v23
v_cndmask_b32 v{Q2}, v20, v{Q2}, vcc
v_cndmask_b32 v{Q2+1}, v23, v{Q2+1}, vcc
""")
    A("s_nop 1")
    for m in qk(SA, QA1, QA2):
        A(m)
    A("s_mov_b32 s42, 0")
    A(f"s_mov_b32 s43, {SLOT}")
    A(f"s_mov_b32 s40, {SLOT}")
    A("s_nop 7")
    A("s_nop 3")
    stamp(A, 3)
    A.label("K2_LOOP")
    A("s_waitcnt vmcnt(0)")
    A("s_barrier")
    if PROF:
        A("s_cmp_eq_u32 s42, 0")
        A("s_cbranch_scc0 K2_NOSTAMP")
        stamp(A, 4)
        A.label("K2_NOSTAMP")
    A(f"""
s_add_u32 s42, s42, 1
s_cmp_eq_u32 s24, 0
s_cbranch_scc1 K2_NODMA
s_cmp_eq_u32 s42, 8
s_cbranch_scc1 K2_NODMA
s_add_u32 m0, s40, s46
s_nop 0
""")
    for q in range(4):
        A(f"buffer_load_dwordx4 v6, s[12:15], s41 offen offset:{1024*q} lds")
    A("s_add_u32 m0, m0, 4096")
    A("s_cmp_eq_u32 s22, 7")
    A(f"buffer_load_dwordx4 v7, s[12:15], s41 offen lds")
    A("s_cbranch_scc0 K2_NODMA")
    A(f"buffer_load_dwordx4 v7, s[12:15], s41 offen offset:1024 lds")
    A.label("K2_NODMA")
    A(f"s_add_u32 s41, s41, {CHUNK}")
    A(f"s_sub_u32 s40, {SLOT}, s40")
    for t in range(4):
        off = t * 2 * KV_TS
        g = softmax_groups(SA, PA)
        m = qk(SB, QB1, QB2) + pv(OB, PB)
        A(m[0])
        A("\n".join(g[0]))
        A(m[1])
        A(f"ds_read_b128 {vr(K1F,4)}, v{KA1} offset:{off}")
        A(f"ds_read_b64 {vr(K2F,2)}, v{KA2} offset:{off}")
        A("\n".join(g[1]))
        A(m[2])
        A("\n".join(g[2]))
        A(m[3])
        if VMASK:
            A("s_mov_b64 exec, s[48:49]")
        A(f"ds_read_b128 {vr(V0,4)}, v{VA} offset:{off}")
        A(f"ds_read_b128 {vr(V1,4)}, v{VA} offset:{off+672}")
        if VMASK:
            A("s_mov_b64 exec, -1")
        A("\n".join(g[3]))
        g = softmax_groups(SB, PB)
        m = qk(SA, QA1, QA2) + pv(OA, PA)
        A("s_waitcnt lgkmcnt(2)")
        A(m[0])
        A("\n".join(g[0]))
        A(m[1])
        A("\n".join(g[1]))
        A("s_waitcnt lgkmcnt(0)")
        A(m[2])
        A("\n".join(g[2]))
        A(m[3])
        if t == 3:
            A(f"v_add_u32 v{KA1}, s43, v{KA1}")
            A(f"v_add_u32 v{KA2}, s43, v{KA2}")
            A(f"v_add_u32 v{VA}, s43, v{VA}")
            A("s_sub_u32 s43, 0, s43")
        A("\n".join(g[3]))
    A("s_cmp_lt_u32 s42, 8")
    A("s_cbranch_scc1 K2_LOOP")
    stamp(A, 5)
    for m in pv(OB, PB):
        A(m)
    A(f"""
v_add_u32 v13, {XCH}, v{DV}
s_xor_b32 s34, s22, 4
s_mul_i32 s34, s34, 3072
s_add_u32 s34, s34, {XCH}
v_add_u32 v14, s34, v3
s_add_u32 s35, s25, s24
s_mul_i32 s35, s35, 40960
s_add_u32 s35, s35, {OIMG}
s_lshr_b32 s36, s20, 1
s_lshl_b32 s36, s36, 10
s_and_b32 s37, s20, 1
s_lshl_b32 s38, s37, 9
s_add_u32 s36, s36, s38
s_add_u32 s36, s36, s35
s_lshr_b32 s38, s20, 3
s_add_u32 s38, s38, 16
s_lshl_b32 s38, s38, 10
s_bfe_u32 s39, s20, 0x20001
s_lshl_b32 s39, s39, 8
s_add_u32 s38, s38, s39
s_lshl_b32 s39, s37, 3
s_add_u32 s38, s38, s39
s_add_u32 s38, s38, s35
v_lshrrev_b32 v30, 4, v1
v_mul_u32_u24 v30, 20480, v30
v_and_b32 v31, 15, v1
v_lshl_add_u32 v30, v31, 4, v30
v_lshl_add_u32 v31, v2, 8, v30
s_cmp_eq_u32 s24, 0
s_cbranch_scc0 K2_X1
""")
    for q in range(3):
        A(f"ds_write_b128 v13, {vr(OB+4*q,4)} offset:{1024*q}")
    A("s_branch K2_X2")
    A.label("K2_X1")
    for q in range(3):
        A(f"ds_write_b128 v13, {vr(OA+4*q,4)} offset:{1024*q}")
    A("s_nop 4")
    for i in range(12):
        A(f"v_mov_b32 v{OA+i}, v{OB+i}")
    A.label("K2_X2")
    A("s_waitcnt lgkmcnt(0)")
    A("s_barrier")
    for q in range(3):
        A(f"ds_read_b128 {vr(16+4*q,4)}, v14 offset:{1024*q}")
    A("s_waitcnt lgkmcnt(0)")
    for i in (8, 0, 1, 2, 3, 4, 5, 6, 7, 9, 10, 11):
        A(f"v_add_f32 v{OA+i}, v{OA+i}, v{16+i}")
        if i == 8:
            A(f"v_mov_b32 v28, v{OA+8}")
            A(f"v_mov_b32 v29, v{OA+8}")
        if i == 1:
            A("v_permlane32_swap_b32 v28, v29")
        if i == 4:
            A("v_rcp_f32 v29, v29")
    for i in range(12):
        A(f"v_mul_f32 v{OA+i}, v{OA+i}, v29")
    for i in range(6):
        A(f"v_cvt_pk_bf16_f32 v{20+i}, v{OA+2*i}, v{OA+2*i+1}")
    A("""
buffer_store_dwordx4 v[20:23], v31, s[8:11], s36 offen
v_cmp_gt_u32 vcc, 32, v0
s_and_saveexec_b64 s[44:45], vcc
buffer_store_dwordx2 v[24:25], v30, s[8:11], s38 offen
""")
    prof_end(A, 2)
    A("s_endpgm")

    A.label("KF_START")
    A(f"""
s_load_dwordx4 s[4:7], s[0:1], {KA_SRE}
s_load_dwordx2 s[16:17], s[0:1], {KA_WS}
v_lshrrev_b32 v1, 6, v0
v_and_b32 v0, 63, v0
s_and_b32 s18, s2, 7
s_sub_u32 s19, s2, 256
s_lshr_b32 s19, s19, 3
v_readfirstlane_b32 s22, v1
s_mul_i32 s20, s19, 5958
s_lshr_b32 s20, s20, 16
s_mul_i32 s21, s20, 11
s_sub_u32 s21, s19, s21
s_lshl_b32 s23, s18, 2
s_add_u32 s20, s20, s23
s_cmp_lt_u32 s19, 44
s_cbranch_scc1 KF_JOBOK
s_mov_b32 s20, 32
s_sub_u32 s21, s19, 44
s_lshl_b32 s21, s21, 3
s_add_u32 s21, s21, s18
s_cmp_ge_u32 s21, 11
s_cbranch_scc1 K2_EXIT
KF_JOBOK:
s_lshr_b32 s23, s22, 2
s_and_b32 s24, s22, 3
s_mov_b32 s26, {FAC}
s_mov_b32 s27, {FAS}
v_and_b32 v1, 31, v0
v_lshrrev_b32 v2, 5, v0
v_lshlrev_b32 v3, 4, v0
s_waitcnt lgkmcnt(0)
s_cmp_eq_u32 s23, 0
s_cselect_b32 s12, s4, s6
s_cselect_b32 s13, s5, s7
s_cselect_b32 s25, s26, s27
s_and_b32 s13, s13, 0xffff
s_mov_b32 s14, {S*S*2}
s_mov_b32 s15, 0x00020000
""")
    srd(A, 8, 16, WS_SIZE)
    A(f"""
s_lshl_b32 s28, s20, 5
v_add_u32 v4, s28, v1
v_lshlrev_b32 v5, 12, v4
v_lshl_add_u32 v5, v2, 6, v5
s_lshl_b32 s29, s24, 9
s_mul_i32 s30, s24, {16*FA_KS}
s_add_u32 s30, s30, s25
s_lshl_b32 s31, s21, 10
s_add_u32 s30, s30, s31
""")
    for i in range(16):
        A(f"v_mov_b32 v{16+i}, 0")
    A("s_cmp_eq_u32 s21, 10")
    A("s_cselect_b32 s32, s23, 0")
    A("s_cmp_eq_u32 s32, 1")
    A("s_cbranch_scc1 KF_COMB")
    FR = 32
    NB = 12

    def ld(kk):
        r = FR + 8 * (kk % NB)
        A(f"buffer_load_dwordx4 {vr(r,4)}, v5, s[12:15], s29 offen offset:{(kk>>2)*128 + (kk&3)*16}")
        A(f"buffer_load_dwordx4 {vr(r+4,4)}, v3, s[8:11], s30 offen")
        A(f"s_add_u32 s30, s30, {FA_KS}")
    for kk in range(NB):
        ld(kk)
    stamp(A, 1)
    for kk in range(16):
        issued = min(16, NB + kk)
        A(f"s_waitcnt vmcnt({2*(issued-kk-1)})")
        r = FR + 8 * (kk % NB)
        A(f"v_mfma_f32_32x32x16_bf16 v[16:31], {vr(r+4,4)}, {vr(r,4)}, v[16:31]")
        if kk + NB < 16:
            ld(kk + NB)
    A(f"""
s_cmp_eq_u32 s22, 3
s_cbranch_scc0 KF_COMB
v_lshlrev_b32 v6, 12, v4
v_lshl_add_u32 v6, v2, 4, v6
buffer_load_dwordx4 v[32:35], v6, s[12:15], 0 offen offset:2048
buffer_load_dwordx4 v[36:39], v3, s[8:11], s30 offen
s_waitcnt vmcnt(0)
v_mfma_f32_32x32x16_bf16 v[16:31], v[36:39], v[32:35], v[16:31]
""")
    A.label("KF_COMB")
    stamp(A, 2)
    A("s_nop 15")
    A("s_nop 3")
    A("s_lshl_b32 s33, s22, 12")
    A("v_add_u32 v7, s33, v3")
    for q in range(4):
        A(f"ds_write_b128 v7, {vr(16+4*q,4)} offset:{1024*q}")
    A("s_lshl_b32 s33, s24, 10")
    A("v_add_u32 v7, s33, v3")
    A("s_waitcnt lgkmcnt(0)")
    A("s_barrier")
    for q in range(8):
        A(f"ds_read_b128 {vr(32+4*q,4)}, v7 offset:{4096*q}")
    A(f"""
s_movk_i32 s34, {Y_PITCH}
v_mul_lo_u32 v8, v4, s34
v_lshl_add_u32 v8, v2, 4, v8
s_lshl_b32 s35, s21, 7
s_lshl_b32 s36, s24, 5
s_add_u32 s35, s35, s36
s_mov_b32 s36, {YM}
s_mov_b32 s37, {YP}
s_mov_b32 s38, -1.0
s_mov_b32 s39, 1.0
s_cmp_eq_u32 s23, 0
s_cselect_b32 s36, s36, s37
s_cselect_b32 s38, s38, s39
s_add_u32 s35, s35, s36
s_waitcnt lgkmcnt(0)
""")
    for i in range(4):
        A(f"v_add_f32 v{32+i}, v{32+i}, v{36+i}")
        A(f"v_add_f32 v{40+i}, v{40+i}, v{44+i}")
        A(f"v_add_f32 v{48+i}, v{48+i}, v{52+i}")
        A(f"v_add_f32 v{56+i}, v{56+i}, v{60+i}")
    for i in range(4):
        A(f"v_add_f32 v{32+i}, v{32+i}, v{40+i}")
        A(f"v_add_f32 v{48+i}, v{48+i}, v{56+i}")
    for i in range(4):
        A(f"v_fma_f32 v{32+i}, v{48+i}, s38, v{32+i}")
    A("buffer_store_dwordx4 v[32:35], v8, s[8:11], s35 offen")
    prof_end(A, 1)
    A.label("K2_EXIT")
    A("s_endpgm")
```

```python
from common import *
import struct

K3_VGPR = 224
K3_AGPR = 80
K3_LDS = 4 * 64 * 336
FR = 16
YR = 196
GL = 216


def gen_k3(A):
    A(khead("k3_kernel"))
    A(f"""
s_cmp_ge_u32 s2, 256
s_cbranch_scc1 K3_EXIT
""")
    prof_begin(A)
    A(f"""
s_load_dwordx2 s[4:5], s[0:1], {KA_WS}
s_load_dwordx2 s[6:7], s[0:1], {KA_OUT}
v_lshrrev_b32 v1, 6, v0
v_and_b32 v2, 63, v0
s_and_b32 s20, s2, 7
s_lshl_b32 s20, s20, 2
v_readfirstlane_b32 s22, v1
s_bfe_u32 s21, s2, 0x20003
s_add_u32 s20, s20, s21
s_lshr_b32 s21, s2, 5
v_lshlrev_b32 v3, 4, v2
s_mul_i32 s23, s22, 5120
s_mul_i32 s24, s20, {4*20480}
s_add_u32 s24, s24, s23
s_add_u32 s24, s24, {OIMG}
s_mul_i32 s25, s21, {5*20480}
s_add_u32 s25, s25, s23
s_add_u32 s25, s25, {WOT}
s_waitcnt lgkmcnt(0)
""")
    srd(A, 8, 4, WS_SIZE)
    srd(A, 12, 6, S * D * 2)
    for j in range(4):
        A(f"s_add_u32 s{26+j}, s24, {20480*j}")
    for j in range(5):
        A(f"s_add_u32 s{30+j}, s25, {20480*j}")
    A("v_add_u32 v4, 4096, v3")
    for i in range(5):
        va, off = ("v3", 1024 * i) if i < 4 else ("v4", 0)
        for j in range(9):
            A(f"buffer_load_dwordx4 {vr(FR+36*i+4*j,4)}, {va}, s[8:11], s{26+j} offen offset:{off}")
    A(f"""
v_lshrrev_b32 v5, 2, v0
v_and_b32 v6, 3, v0
s_lshl_b32 s36, s20, 6
v_add_u32 v7, s36, v5
v_sub_u32 v8, 2048, v7
v_cmp_lt_u32 vcc, 1024, v7
s_mul_i32 s37, s21, 80
v_mul_u32_u24 v9, 20, v6
v_add_u32 v9, s37, v9
v_cndmask_b32 v8, v7, v8, vcc
s_movk_i32 s38, {Y_PITCH}
v_mul_lo_u32 v8, v8, s38
v_sub_u32 v10, 621, v9
s_mov_b32 s40, {YM}
s_mov_b32 s41, {YP}
s_cmp_ge_u32 s21, 4
s_cselect_b32 s42, s41, s40
s_cselect_b32 s43, s40, s41
s_cselect_b64 s[44:45], -1, 0
v_mov_b32 v11, s42
v_mov_b32 v12, s43
v_cndmask_b32 v11, v11, v12, vcc
v_cndmask_b32 v10, v9, v10, s[44:45]
v_lshl_add_u32 v8, v10, 2, v8
v_add_u32 v8, v8, v11
v_lshlrev_b32 v13, 2, v7
s_mov_b32 s46, {GATE}
""")
    for i in range(5):
        A(f"buffer_load_dwordx4 {vr(YR+4*i,4)}, v8, s[8:11], 0 offen offset:{16*i}")
    A(f"buffer_load_dword v{GL}, v13, s[8:11], s46 offen")
    stamp(A, 1)
    for i in range(5):
        A(f"s_waitcnt vmcnt({6 + 9*(4-i)})")
        if i in (0, 4):
            stamp(A, 2 if i == 0 else 3)
        for rb in range(4):
            for cb in range(5):
                acc = f"a[{4*(5*rb+cb)}:{4*(5*rb+cb)+3}]"
                c = "0" if i == 0 else acc
                A(f"v_mfma_f32_16x16x32_bf16 {acc}, {vr(FR+36*i+16+4*cb,4)}, {vr(FR+36*i+4*rb,4)}, {c}")
    A("""
v_and_b32 v14, 15, v2
v_lshrrev_b32 v15, 4, v2
s_lshl_b32 s47, s22, 6
v_add_u32 v14, s47, v14
v_mul_u32_u24 v14, 336, v14
v_lshl_add_u32 v14, v15, 4, v14
v_mul_u32_u24 v15, 336, v5
v_mul_u32_u24 v16, 80, v6
v_add_u32 v15, v15, v16
s_nop 7
""")
    for rb in range(4):
        for cb in range(5):
            acc = f"a[{4*(5*rb+cb)}:{4*(5*rb+cb)+3}]"
            A(f"ds_write_b128 v14, {acc} offset:{rb*16*336 + cb*64}")
    stamp(A, 4)
    A("s_waitcnt lgkmcnt(0)")
    A("s_barrier")
    stamp(A, 5)
    for kq in range(4):
        for i in range(5):
            A(f"ds_read_b128 {vr(20+20*kq+4*i,4)}, v15 offset:{kq*64*336 + 16*i}")
    A(f"""
s_waitcnt vmcnt(0)
v_mul_f32 v16, 0xbfb8aa3b, v{GL}
v_exp_f32 v16, v16
s_nop 0
v_add_f32 v16, 1.0, v16
v_rcp_f32 v16, v16
s_movk_i32 s38, 1280
v_mul_lo_u32 v18, v7, s38
v_sub_f32 v17, 1.0, v16
v_lshl_add_u32 v18, v9, 1, v18
s_waitcnt lgkmcnt(0)
""")
    for i in range(20):
        A(f"v_add_f32 v{20+i}, v{20+i}, v{40+i}")
        A(f"v_add_f32 v{60+i}, v{60+i}, v{80+i}")
    for i in range(20):
        A(f"v_add_f32 v{20+i}, v{20+i}, v{60+i}")
    for i in range(20):
        A(f"v_mul_f32 v{20+i}, v{20+i}, v17")
    A("s_cmp_ge_u32 s21, 4")
    A("s_cbranch_scc1 K3_REV")
    for i in range(20):
        A(f"v_fmac_f32 v{20+i}, v{YR+i}, v16")
    A("s_branch K3_ST")
    A.label("K3_REV")
    for i in range(20):
        A(f"v_fmac_f32 v{20+i}, v{YR+19-i}, v16")
    A.label("K3_ST")
    for i in range(10):
        A(f"v_cvt_pk_bf16_f32 v{40+i}, v{20+2*i}, v{21+2*i}")
    A("""
buffer_store_dwordx4 v[40:43], v18, s[12:15], 0 offen
buffer_store_dwordx4 v[44:47], v18, s[12:15], 0 offen offset:16
buffer_store_dwordx2 v[48:49], v18, s[12:15], 0 offen offset:32
""")
    A.label("K3_END")
    prof_end(A, 3)
    A.label("K3_EXIT")
    A("s_endpgm")
```

```python
import sys, os, re
sys.path.insert(0, os.path.dirname(__file__))
from common import *
import k1, k2, k3

def flag_stores(text, flags):
    if not flags:
        return text
    return re.sub(r"^(\s*buffer_store_\w+ .*?)\s*$", lambda m: m.group(1) + " " + flags, text, flags=re.M)

def build():
    parts = []
    for gen, env in ((k1.gen_k1, "K1_STF"), (k2.gen_k2, "K2_STF"), (k3.gen_k3, "K3_STF")):
        A = Asm()
        gen(A)
        parts.append(flag_stores(A.text(), os.environ.get(env, "")))
    head = f"""; gated_mix(spectral_fnet, mha_block): generated by gen/gen.py (hand-designed kernels)
; @launch kernel=k1_kernel grid=(256,1,1) block=(512,1,1) lds={k1.K1_LDS}
; @launch kernel=k2_kernel grid=({k2.K2_GRID},1,1) block=(512,1,1) lds={k2.K2_LDS}
; @launch kernel=k3_kernel grid=(256,1,1) block=(256,1,1) lds={k3.K3_LDS}
.amdgcn_target "amdgcn-amd-amdhsa--gfx950"
.text
"""
    tail = '.section .rodata,"a"\n' + kd("k1_kernel", k1.K1_VGPR) + kd("k2_kernel", k2.K2_VGPR) + kd("k3_kernel", k3.K3_VGPR, agpr=k3.K3_AGPR)
    return head + "".join(parts) + tail

if __name__ == "__main__":
    out = sys.argv[1] if len(sys.argv) > 1 else "gated_mix__spectral_fnet__mha_block__prompt.s"
    open(out, "w").write(build())
    print("wrote", out)
```

```python
S, D, H, DH = 2048, 640, 32, 20

QIMG   = 0x0
Q_HS, Q_TS = 81920, 1280
KVIMG  = 0x300000
KV_HS, KV_TS = 167936, 2624
KMAX   = 0x840000
GATE   = 0x850000
FAC    = 0x860000
FAS    = 0x920000
FA_KS  = 11264
WOT    = 0x9E0000
OIMG   = 0xAC0000
YM     = 0xD40000
YP     = 0xEC0000
Y_PITCH = 352 * 4
WS_SIZE = 0x1100000

KA_X, KA_SRE, KA_SIM, KA_HRE, KA_HIM, KA_BX, KA_WQKV, KA_WO, KA_GATE, KA_OUT, KA_DBG, KA_WS = [8 * i for i in range(12)]


class Asm:
    def __init__(self):
        self.lines = []

    def __call__(self, s):
        for ln in s.strip("\n").split("\n"):
            self.lines.append(ln if ln.rstrip().endswith(":") else "    " + ln.strip())

    def label(self, l):
        self.lines.append(l + ":")

    def text(self):
        return "\n".join(self.lines) + "\n"


def vr(a, n=1):
    return f"v{a}" if n == 1 else f"v[{a}:{a+n-1}]"


def sr(a, n=1):
    return f"s{a}" if n == 1 else f"s[{a}:{a+n-1}]"


def srd(A, d, base, size):
    A(f"s_mov_b32 s{d}, s{base}")
    A(f"s_and_b32 s{d+1}, s{base+1}, 0xffff")
    A(f"s_mov_b32 s{d+2}, {size}")
    A(f"s_mov_b32 s{d+3}, 0x00020000")


def kd(name, vgpr, sgpr=96, agpr=0):
    acc = (vgpr + 3) // 4 * 4
    nfv = acc + agpr if agpr else vgpr
    return f""".p2align 6
.amdhsa_kernel {name}
  .amdhsa_next_free_vgpr {nfv}
  .amdhsa_next_free_sgpr {sgpr}
  .amdhsa_accum_offset {acc}
  .amdhsa_group_segment_fixed_size 0
  .amdhsa_kernarg_size 96
  .amdhsa_user_sgpr_count 2
  .amdhsa_user_sgpr_kernarg_segment_ptr 1
  .amdhsa_system_sgpr_workgroup_id_x 1
.end_amdhsa_kernel
"""


def khead(name):
    return f""".globl {name}
.p2align 8
.type {name},@function
{name}:
"""


import os
PROF = os.environ.get("KPROF", "0") == "1"
PROF_BASE = 0x2000000


def stamp(A, i):
    if PROF:
        A(f"s_memtime s[{80+2*i}:{81+2*i}]")


def prof_begin(A):
    if PROF:
        A("s_memrealtime s[76:77]")
        A("s_mov_b32 s75, s2")
        A("v_lshrrev_b32 v1, 6, v0")
        A("s_nop 0")
        A("v_readfirstlane_b32 s74, v1")
        for i in range(1, 8):
            A(f"s_mov_b32 s{80+2*i}, 0")
        A("s_memtime s[80:81]")


def prof_end(A, kidx):
    if PROF:
        A("s_mov_b64 exec, -1")
        A("s_waitcnt vmcnt(0) lgkmcnt(0)")
        A("s_memtime s[94:95]")
        A("s_memrealtime s[78:79]")
        A(f"s_load_dwordx2 s[68:69], s[0:1], {KA_WS}")
        A("s_waitcnt lgkmcnt(0)")
        A("s_and_b32 s69, s69, 0xffff")
        A("s_mov_b32 s70, 0x10000000")
        A("s_mov_b32 s71, 0x00020000")
        A("s_lshl_b32 s72, s75, 4")
        A("s_add_u32 s72, s72, s74")
        A("s_lshl_b32 s72, s72, 6")
        A(f"s_add_u32 s72, s72, {PROF_BASE + kidx * 0x100000}")
        A("v_mov_b32 v0, 0")
        for i in range(8):
            A(f"v_mov_b32 v{4+i}, s{80+2*i}")
        A("v_mov_b32 v12, s76")
        A("v_mov_b32 v13, s78")
        A("s_getreg_b32 s73, hwreg(HW_REG_HW_ID)")
        A("v_mov_b32 v14, s73")
        A("s_getreg_b32 s73, hwreg(HW_REG_XCC_ID)")
        A("v_mov_b32 v15, s73")
        A("buffer_store_dwordx4 v[4:7], v0, s[68:71], s72 offen")
        A("buffer_store_dwordx4 v[8:11], v0, s[68:71], s72 offen offset:16")
        A("buffer_store_dwordx4 v[12:15], v0, s[68:71], s72 offen offset:32")


DBGT = os.environ.get("KDBGT", "0") == "1"
if DBGT:
    def prof_begin(A):
        A("s_memrealtime s[76:77]")
        A("s_memtime s[80:81]")

    def prof_end(A, kidx):
        li = {0: 0, 1: 1, 2: 1, 3: 2}[kidx]
        A("s_mov_b64 exec, 1")
        A("s_waitcnt vmcnt(0) lgkmcnt(0)")
        A("s_memtime s[94:95]")
        A("s_memrealtime s[78:79]")
        A(f"s_load_dwordx2 s[68:69], s[0:1], {KA_DBG}")
        A("s_waitcnt lgkmcnt(0)")
        A(f"s_sub_u32 s68, s68, {512*li}")
        A("s_subb_u32 s69, s69, 0")
        A("s_and_b32 s69, s69, 0xffff")
        A("s_mov_b32 s70, 256")
        A("s_mov_b32 s71, 0x00020000")
        A("s_not_b32 s72, s76")
        A("s_sub_u32 s73, s94, s80")
        A("s_sub_u32 s74, s78, s76")
        A("v_mov_b32 v0, 0")
        A("v_mov_b32 v4, s72")
        A("v_mov_b32 v5, s78")
        A("v_mov_b32 v6, s73")
        A("v_mov_b32 v7, s74")
        A(f"buffer_atomic_umax v4, v0, s[68:71], 0 offen offset:{16*kidx}")
        A(f"buffer_atomic_umax v5, v0, s[68:71], 0 offen offset:{16*kidx+4}")
        A(f"buffer_atomic_umax v6, v0, s[68:71], 0 offen offset:{16*kidx+8}")
        A(f"buffer_atomic_umax v7, v0, s[68:71], 0 offen offset:{16*kidx+12}")
```

```python
S, D, H, DH = 2048, 640, 32, 20

QIMG   = 0x0
Q_HS, Q_TS = 81920, 1280
KVIMG  = 0x300000
KV_HS, KV_TS = 167936, 2624
KMAX   = 0x840000
GATE   = 0x850000
FAC    = 0x860000
FAS    = 0x920000
FA_KS  = 11264
WOT    = 0x9E0000
OIMG   = 0xAC0000
YM     = 0xD40000
YP     = 0xEC0000
Y_PITCH = 352 * 4
WS_SIZE = 0x1100000

KA_X, KA_SRE, KA_SIM, KA_HRE, KA_HIM, KA_BX, KA_WQKV, KA_WO, KA_GATE, KA_OUT, KA_DBG, KA_WS = [8 * i for i in range(12)]


class Asm:
    def __init__(self):
        self.lines = []

    def __call__(self, s):
        for ln in s.strip("\n").split("\n"):
            self.lines.append(ln if ln.rstrip().endswith(":") else "    " + ln.strip())

    def label(self, l):
        self.lines.append(l + ":")

    def text(self):
        return "\n".join(self.lines) + "\n"


def vr(a, n=1):
    return f"v{a}" if n == 1 else f"v[{a}:{a+n-1}]"


def sr(a, n=1):
    return f"s{a}" if n == 1 else f"s[{a}:{a+n-1}]"


def srd(A, d, base, size):
    A(f"s_mov_b32 s{d}, s{base}")
    A(f"s_and_b32 s{d+1}, s{base+1}, 0xffff")
    A(f"s_mov_b32 s{d+2}, {size}")
    A(f"s_mov_b32 s{d+3}, 0x00020000")


def kd(name, vgpr, sgpr=96, agpr=0):
    acc = (vgpr + 3) // 4 * 4
    nfv = acc + agpr if agpr else vgpr
    return f""".p2align 6
.amdhsa_kernel {name}
  .amdhsa_next_free_vgpr {nfv}
  .amdhsa_next_free_sgpr {sgpr}
  .amdhsa_accum_offset {acc}
  .amdhsa_group_segment_fixed_size 0
  .amdhsa_kernarg_size 96
  .amdhsa_user_sgpr_count 2
  .amdhsa_user_sgpr_kernarg_segment_ptr 1
  .amdhsa_system_sgpr_workgroup_id_x 1
.end_amdhsa_kernel
"""


def khead(name):
    return f""".globl {name}
.p2align 8
.type {name},@function
{name}:
"""


import os
PROF = os.environ.get("KPROF", "0") == "1"
PROF_BASE = 0x2000000


def stamp(A, i):
    if PROF:
        A(f"s_memtime s[{80+2*i}:{81+2*i}]")


def prof_begin(A):
    if PROF:
        A("s_memrealtime s[76:77]")
        A("s_mov_b32 s75, s2")
        A("v_lshrrev_b32 v1, 6, v0")
        A("s_nop 0")
        A("v_readfirstlane_b32 s74, v1")
        for i in range(1, 8):
            A(f"s_mov_b32 s{80+2*i}, 0")
        A("s_memtime s[80:81]")


def prof_end(A, kidx):
    if PROF:
        A("s_mov_b64 exec, -1")
        A("s_waitcnt vmcnt(0) lgkmcnt(0)")
        A("s_memtime s[94:95]")
        A("s_memrealtime s[78:79]")
        A(f"s_load_dwordx2 s[68:69], s[0:1], {KA_WS}")
        A("s_waitcnt lgkmcnt(0)")
        A("s_and_b32 s69, s69, 0xffff")
        A("s_mov_b32 s70, 0x10000000")
        A("s_mov_b32 s71, 0x00020000")
        A("s_lshl_b32 s72, s75, 4")
        A("s_add_u32 s72, s72, s74")
        A("s_lshl_b32 s72, s72, 6")
        A(f"s_add_u32 s72, s72, {PROF_BASE + kidx * 0x100000}")
        A("v_mov_b32 v0, 0")
        for i in range(8):
            A(f"v_mov_b32 v{4+i}, s{80+2*i}")
        A("v_mov_b32 v12, s76")
        A("v_mov_b32 v13, s78")
        A("s_getreg_b32 s73, hwreg(HW_REG_HW_ID)")
        A("v_mov_b32 v14, s73")
        A("s_getreg_b32 s73, hwreg(HW_REG_XCC_ID)")
        A("v_mov_b32 v15, s73")
        A("buffer_store_dwordx4 v[4:7], v0, s[68:71], s72 offen")
        A("buffer_store_dwordx4 v[8:11], v0, s[68:71], s72 offen offset:16")
        A("buffer_store_dwordx4 v[12:15], v0, s[68:71], s72 offen offset:32")


DBGT = os.environ.get("KDBGT", "0") == "1"
if DBGT:
    def prof_begin(A):
        A("s_memrealtime s[76:77]")
        A("s_memtime s[80:81]")
        A("s_mov_b32 s75, s2")
        A("v_lshrrev_b32 v1, 6, v0")
        A("s_nop 0")
        A("v_readfirstlane_b32 s74, v1")

    def prof_end(A, kidx):
        wg = 5 if kidx != 1 else 256 + 5
        A(f"s_cmp_eq_u32 s75, {wg}")
        A(f"s_cbranch_scc0 DBGT_SKIP{kidx}")
        A(f"s_cmp_eq_u32 s74, 0")
        A(f"s_cbranch_scc0 DBGT_SKIP{kidx}")
        A("s_mov_b64 exec, -1")
        A("s_waitcnt vmcnt(0) lgkmcnt(0)")
        A("s_memtime s[94:95]")
        A("s_memrealtime s[78:79]")
        A(f"s_load_dwordx2 s[68:69], s[0:1], {KA_WS}")
        A(f"s_load_dwordx2 s[84:85], s[0:1], {KA_DBG}")
        A("s_waitcnt lgkmcnt(0)")
        A("s_and_b32 s69, s69, 0xffff")
        A("s_mov_b32 s70, 0x10000000")
        A("s_mov_b32 s71, 0x00020000")
        A("s_and_b32 s85, s85, 0xffff")
        A("s_mov_b32 s86, 256")
        A("s_mov_b32 s87, 0x00020000")
        A("s_sub_u32 s73, s94, s80")
        A(f"s_mov_b32 s72, {PROF_BASE}")
        A("v_mov_b32 v0, 0")
        A("v_mov_b32 v4, s76")
        A("v_mov_b32 v5, s78")
        A("v_mov_b32 v6, s73")
        A("v_mov_b32 v7, 0")
        A(f"buffer_store_dwordx4 v[4:7], v0, s[68:71], s72 offen offset:{16*kidx}")
        A(f"buffer_store_dwordx4 v[4:7], v0, s[84:87], 0 offen offset:{16*kidx}")
        if kidx == 3:
            for j in range(3):
                A(f"buffer_load_dwordx4 v[8:11], v0, s[68:71], s72 offen offset:{16*j}")
                A("s_waitcnt vmcnt(0)")
                A(f"buffer_store_dwordx4 v[8:11], v0, s[84:87], 0 offen offset:{16*j}")
                A("s_waitcnt vmcnt(0)")
        A.label(f"DBGT_SKIP{kidx}")

FLAGO = 0x844000
FLAGY = 0x846000
```

```python
from common import *
import struct, math

def f32hex(x):
    return "0x%08x" % struct.unpack("<I", struct.pack("<f", x))[0]

STF = os.environ.get("K1_STF", "")
PFM = os.environ.get("K1_PREFETCH", "0")
QSCALE = (DH ** -0.5) * math.log2(math.e)

ACC = 16
SET = [96, 120]
XB, WB = 144, 148
XA, WA = 150, 154
K1_VGPR = 160
K1_LDS = 65536 + 4 * 20480


def k1_reads(kind, kap, st):
    b0 = SET[st]
    out = [f"ds_read_b128 {vr(b0,4)}, v{XA+kap}"]
    for b in range(5):
        for rd in range(2):
            if kind == 0:
                a = WA if b < 4 else WA + 1
                off = (16 * kap + 4 * rd) * 320 + (80 * b if b < 4 else 0)
            else:
                a = WA
                off = (16 * kap + 4 * rd) * 320 + 64 * b
            out.append(f"ds_read_b64_tr_b16 {vr(b0+4+4*b+2*rd,2)}, v{a} offset:{off}")
    return out


def k1_mfmas(kind, st):
    b0 = SET[st]
    out = []
    for b in range(5):
        acc = vr(ACC + 16 * b, 16)
        xf, wf = vr(b0, 4), vr(b0 + 4 + 4 * b, 4)
        if kind == 0:
            out.append(f"v_mfma_f32_32x32x16_bf16 {acc}, {wf}, {xf}, {acc}")
        else:
            out.append(f"v_mfma_f32_32x32x16_bf16 {acc}, {xf}, {wf}, {acc}")
    return out


def interleave(A, mf, rd, extra=()):
    chunks = [rd[0:4], rd[4:8], rd[8:11], list(extra), []]
    for m, c in zip(mf, chunks):
        A(m)
        for x in c:
            A(x)


def k1_mainloop(A, kind):
    L = f"K1_LOOP{kind}"
    A("v_and_b32 v1, 31, v0")
    A("v_lshrrev_b32 v2, 5, v0")
    A("s_lshl_b32 s48, s34, 12")
    A("v_lshlrev_b32 v3, 7, v1")
    A("v_add_u32 v3, s48, v3")
    A("v_bfe_u32 v4, v1, 1, 3")
    for kap in range(4):
        A(f"v_add_u32 v5, {2*kap}, v2")
        A("v_xor_b32 v5, v5, v4")
        A(f"v_lshl_add_u32 v{XB+kap}, v5, 4, v3")
    A("v_bfe_u32 v5, v0, 4, 1")
    A("v_bfe_u32 v6, v0, 2, 2")
    A("v_and_b32 v7, 3, v0")
    A("v_lshl_add_u32 v8, v2, 3, v6")
    A("v_mul_u32_u24 v8, 320, v8")
    A("v_add_u32 v8, 0x10000, v8")
    if kind == 1:
        A("v_lshl_add_u32 v9, v5, 5, v8")
        A(f"v_lshl_add_u32 v{WB}, v7, 3, v9")
        A(f"v_mov_b32 v{WB+1}, v{WB}")
    else:
        A("v_mul_u32_u24 v9, 40, v5")
        A("v_add_u32 v9, v9, v8")
        A("v_and_b32 v10, 1, v7")
        A("v_lshl_add_u32 v9, v10, 4, v9")
        A("v_lshrrev_b32 v10, 1, v7")
        A(f"v_lshl_add_u32 v{WB}, v10, 3, v9")
        A("v_lshl_add_u32 v10, v5, 2, v7")
        A("v_mul_u32_u24 v10, 40, v10")
        A("v_add3_u32 v%d, v10, v8, 32" % (WB + 1))
    for i in range(6):
        A(f"v_mov_b32 v{XA+i}, v{XB+i}")
    for i in range(80):
        A(f"v_mov_b32 v{ACC+i}, 0")
    for i in range(24):
        A(f"v_mov_b32 v{SET[1]+i}, 0")
    A("s_mov_b32 s60, 0")
    stamp(A, 1)
    if PROF or PFM == "3":
        A("s_barrier")
        stamp(A, 2)
        if PFM == "3":
            A("s_cmp_lt_u32 s34, 2")
            A(f"s_cbranch_scc1 {L}_B")
            A("buffer_load_dword v158, v156, s[8:11], s66 offen")
            A("buffer_load_dword v159, v157, s[12:15], 0 offen")
        A(f"s_branch {L}_B")
    A.label(L)
    A("s_barrier")
    A.label(L + "_B")
    interleave(A, k1_mfmas(kind, 1), k1_reads(kind, 0, 0),
               extra=["s_add_u32 s60, s60, 1", "s_and_b32 s61, s60, 3", "s_lshl_b32 s62, s61, 14", "s_mul_i32 s63, s61, 20480"])
    A("s_waitcnt lgkmcnt(0)")
    interleave(A, k1_mfmas(kind, 0), k1_reads(kind, 1, 1))
    A("s_waitcnt lgkmcnt(0)")
    interleave(A, k1_mfmas(kind, 1), k1_reads(kind, 2, 0))
    A("s_waitcnt lgkmcnt(0)")
    upd = [f"v_add_u32 v{XA+i}, s62, v{XB+i}" for i in range(4)] + [f"v_add_u32 v{WA+i}, s63, v{WB+i}" for i in range(2)]
    interleave(A, k1_mfmas(kind, 0), k1_reads(kind, 3, 1), extra=upd)
    A("s_cmp_lt_u32 s60, 10")
    A("s_waitcnt lgkmcnt(0)")
    A(f"s_cbranch_scc1 {L}")
    stamp(A, 3)
    for m in k1_mfmas(kind, 1):
        A(m)
    A("s_nop 15")
    A("s_nop 7")


def gen_k1(A):
    A(khead("k1_kernel"))
    A(f"""
s_cmp_ge_u32 s2, 256
s_cbranch_scc1 K1_EXIT
""")
    prof_begin(A)
    A(f"""
s_load_dwordx2 s[4:5], s[0:1], {KA_X}
s_load_dwordx4 s[20:23], s[0:1], {KA_HRE}
s_load_dwordx4 s[24:27], s[0:1], {KA_WQKV}
s_load_dwordx2 s[28:29], s[0:1], {KA_GATE}
s_load_dwordx2 s[30:31], s[0:1], {KA_WS}
v_lshrrev_b32 v1, 6, v0
v_and_b32 v0, 63, v0
s_and_b32 s48, s2, 7
s_lshr_b32 s49, s2, 3
v_readfirstlane_b32 s34, v1
s_and_b32 s50, s48, 1
s_lshl_b32 s50, s50, 3
s_and_b32 s51, s49, 7
s_add_u32 s32, s50, s51
s_lshr_b32 s35, s48, 1
s_lshl_b32 s50, s35, 2
s_lshr_b32 s52, s49, 3
s_add_u32 s33, s50, s52
s_cmp_lt_u32 s34, 4
s_cbranch_scc1 K1_COMPUTE
""")
    A("""
s_mul_i32 s38, s52, 3
s_add_u32 s38, s38, s51
s_add_u32 s38, s38, s35
s_sub_u32 s39, s38, 10
s_cmp_ge_u32 s38, 10
s_cselect_b32 s38, s39, s38
""")
    if os.environ.get("K1_STAGGER", "1") != "1":
        A("s_mov_b32 s38, 0")
    A("""
s_movk_i32 s54, 1280
s_movk_i32 s55, 3840
s_and_b32 s56, s33, 1
s_cmp_eq_u32 s35, 3
s_cselect_b32 s36, s54, s55
s_cselect_b32 s37, s56, s33
s_mul_i32 s37, s37, 320
s_sub_u32 s34, s34, 4
v_lshrrev_b32 v1, 3, v0
v_and_b32 v2, 7, v0
v_lshrrev_b32 v3, 4, v0
v_xor_b32 v4, v2, v3
v_lshlrev_b32 v4, 4, v4
v_xor_b32 v5, 64, v4
s_movk_i32 s48, 1280
s_cmp_eq_u32 s35, 3
s_cbranch_scc1 K1_LD_F
s_lshl_b32 s49, s32, 7
s_lshl_b32 s50, s34, 5
s_add_u32 s49, s49, s50
v_add_u32 v6, s49, v1
v_mul_u32_u24 v6, s48, v6
v_add_u32 v10, v6, v4
v_add_u32 v11, v6, v5
v_add_u32 v11, 10240, v11
v_add_u32 v12, 20480, v10
v_add_u32 v13, 20480, v11
s_branch K1_LD_W
K1_LD_F:
s_lshl_b32 s49, s32, 6
s_lshl_b32 s50, s34, 3
s_add_u32 s49, s49, s50
v_and_b32 v6, 3, v1
v_and_b32 v7, 32, v0
v_add3_u32 v6, v6, v7, s49
v_add_u32 v7, 4, v6
v_sub_u32 v8, 2048, v6
v_sub_u32 v9, 2048, v7
v_cmp_eq_u32 vcc, 0, v6
v_mov_b32 v14, 1024
v_mul_u32_u24 v6, s48, v6
v_mul_u32_u24 v7, s48, v7
v_cndmask_b32 v8, v8, v14, vcc
v_mul_u32_u24 v9, s48, v9
v_mul_u32_u24 v8, s48, v8
v_add_u32 v10, v6, v4
v_add_u32 v11, v7, v5
v_add_u32 v12, v8, v4
v_add_u32 v13, v9, v5
K1_LD_W:
s_mul_i32 s49, s34, 320
v_add_u32 v6, s49, v0
""")
    for q in range(5):
        if q:
            A(f"v_add_u32 v6, 64, v6")
        A("v_mul_u32_u24 v7, 3277, v6")
        A("v_lshrrev_b32 v7, 16, v7")
        A("v_mul_u32_u24 v8, 20, v7")
        A("v_sub_u32 v8, v6, v8")
        A("v_mul_u32_u24 v7, s36, v7")
        A("v_lshl_add_u32 v8, v8, 4, s37")
        A(f"v_add_u32 v{14+q}, v7, v8")
    A("""
s_lshl_b32 s52, s34, 12
s_mul_i32 s53, s34, 5120
s_lshl_b32 s55, s36, 6
s_lshl_b32 s51, s38, 7
s_mul_i32 s54, s38, s55
s_mov_b32 s56, 819200
s_mov_b32 s57, 2457600
s_mov_b32 s10, 2621440
s_mov_b32 s11, 0x00020000
s_mov_b32 s15, 0x00020000
s_waitcnt lgkmcnt(0)
s_mov_b32 s8, s4
s_and_b32 s9, s5, 0xffff
s_cmp_lt_u32 s33, 14
s_cselect_b32 s6, s20, s22
s_cselect_b32 s7, s21, s23
s_cmp_eq_u32 s35, 3
s_cselect_b32 s12, s6, s24
s_cselect_b32 s13, s7, s25
s_cselect_b32 s14, s56, s57
s_and_b32 s13, s13, 0xffff
""")

    def issue(c):
        slot = c & 3
        for q in range(4):
            A(f"s_add_u32 m0, s52, {slot*16384 + q*1024}")
            A("s_nop 0")
            A(f"buffer_load_dwordx4 v{10+q}, s[8:11], s51 offen lds")
        for q in range(5):
            A(f"s_add_u32 m0, s53, {65536 + slot*20480 + q*1024}")
            A("s_nop 0")
            A(f"buffer_load_dwordx4 v{14+q}, s[12:15], s54 offen lds")
        A("s_add_u32 s38, s38, 1")
        A("s_cmp_eq_u32 s38, 10")
        A("s_cselect_b32 s38, 0, s38")
        A("s_lshl_b32 s51, s38, 7")
        A("s_mul_i32 s54, s38, s55")

    def side_loads():
        srd(A, 16, 30, WS_SIZE)
        srd(A, 40, 26, D * D * 2)
        srd(A, 44, 28, D * 2)
        A("""
s_lshl_b32 s56, s2, 2
s_add_u32 s56, s56, s34
s_sub_u32 s57, 2048, s56
s_cmp_eq_u32 s56, 0
s_cselect_b32 s57, 1024, s57
s_mul_i32 s58, s56, 1280
s_mul_i32 s59, s57, 1280
v_mul_u32_u24 v20, 20, v0
buffer_load_dwordx4 v[24:27], v20, s[8:11], s58 offen
buffer_load_dword v28, v20, s[8:11], s58 offen offset:16
buffer_load_dwordx4 v[32:35], v20, s[8:11], s59 offen
buffer_load_dword v36, v20, s[8:11], s59 offen offset:16
buffer_load_dwordx4 v[40:43], v20, s[44:47], 0 offen
buffer_load_dword v44, v20, s[44:47], 0 offen offset:16
s_mul_i32 s60, s56, 3277
s_lshr_b32 s60, s60, 16
s_mul_i32 s61, s60, 20
s_sub_u32 s61, s56, s61
v_lshrrev_b32 v21, 4, v0
v_and_b32 v22, 15, v0
s_cmp_lt_u32 s61, 16
s_cbranch_scc0 K1_WOT_HI
s_mul_i32 s62, s61, 40
v_lshrrev_b32 v23, 1, v21
v_mul_u32_u24 v23, 20, v23
v_and_b32 v29, 1, v21
v_lshl_add_u32 v23, v29, 2, v23
v_add_u32 v23, s62, v23
s_movk_i32 s63, 10240
s_branch K1_WOT_GO
K1_WOT_HI:
s_sub_u32 s62, s61, 16
s_mul_i32 s62, s62, 160
s_add_u32 s62, s62, 16
v_mul_u32_u24 v23, 40, v21
v_add_u32 v23, s62, v23
s_movk_i32 s63, 25600
K1_WOT_GO:
v_mul_u32_u24 v23, s48, v23
s_lshl_b32 s60, s60, 5
v_lshl_add_u32 v23, v22, 1, v23
v_add_u32 v23, s60, v23
v_add_u32 v29, s63, v23
""")
        for half, a in ((0, 23), (1, 29)):
            for j in range(4):
                reg = (68 if (j & 1) else 48) + 2 * half + (j >> 1)
                A(f"buffer_load_ushort v{reg}, v{a}, s[40:43], 0 offen offset:{1280*j}")

    stamp(A, 1)
    issue(0)
    if PFM == "3":
        A("s_barrier")
    EARLY = os.environ.get("K1_EARLY", "0") == "1"
    if EARLY:
        stamp(A, 2)
        A("s_waitcnt vmcnt(0)")
        stamp(A, 3)
        A("s_barrier")
    issue(1)
    if not EARLY:
        stamp(A, 2)
    NS = 14
    DIST = int(os.environ.get("K1_DIST", "2"))
    for c in range(10):
        if DIST == 3:
            n = {0: 9, 1: 18, 2: 18, 3: 18, 4: 18, 5: 18, 6: 18, 7: 18 + NS, 8: 9 + NS, 9: NS}[c]
        else:
            n = {0: 9, 1: 9, 2: 9, 3: 9, 4: 9, 5: 9, 6: 9, 7: 9, 8: 9 + NS, 9: NS}[c]
        if not (EARLY and c == 0):
            A(f"s_waitcnt vmcnt({n})")
            if c in (0, 1, 4, 9):
                stamp(A, {0: 3, 1: 4, 4: 5, 9: 6}[c])
            A("s_barrier")
        if DIST == 3:
            if c == 0:
                issue(2)
            if c + 3 <= 9:
                issue(c + 3)
            if c == 6:
                side_loads()
        else:
            if c + 2 <= 9:
                issue(c + 2)
            if c == 7:
                side_loads()
        if c == 9:
            A("s_waitcnt vmcnt(0)")
            A("v_mov_b32 v56, 0xbf803f80")
            for i in range(4):
                A(f"v_lshl_or_b32 v{48+i}, v{68+i}, 16, v{48+i}")
            xs = [24, 25, 26, 27, 28]
            xm = [32, 33, 34, 35, 36]
            gw = [40, 41, 42, 43, 44]
            for j in range(5):
                for acc, a, b in ((52, xs[j], gw[j]), (53, xm[j], gw[j]), (54, xs[j], 56), (55, xm[j], 56)):
                    cc = "0" if j == 0 else f"v{acc}"
                    A(f"v_dot2_f32_bf16 v{acc}, v{a}, v{b}, {cc}")
            A("s_nop 3")
            for ror in (1, 2, 4, 8):
                for i in range(4):
                    A(f"v_add_f32_dpp v{52+i}, v{52+i}, v{52+i} row_ror:{ror} row_mask:0xf bank_mask:0xf")
                A("s_nop 1")
            for i in range(4):
                A(f"v_add_f32_dpp v{52+i}, v{52+i}, v{52+i} row_bcast:15 row_mask:0xa bank_mask:0xf")
            A("s_nop 1")
            for i in range(4):
                A(f"v_add_f32_dpp v{52+i}, v{52+i}, v{52+i} row_bcast:31 row_mask:0xc bank_mask:0xf")
            A("s_nop 1")
    A(f"""
s_lshl_b32 s60, s56, 10
s_add_u32 s60, s60, {WOT}
v_lshlrev_b32 v20, 4, v0
s_cmp_lt_u32 s56, 800
s_cbranch_scc0 K1_NO_WOT
buffer_store_dwordx4 v[48:51], v20, s[16:19], s60 offen
K1_NO_WOT:
v_mov_b32 v20, 0
v_cmp_eq_u32 vcc, 63, v0
s_and_saveexec_b64 s[64:65], vcc
s_lshl_b32 s60, s56, 2
s_add_u32 s60, s60, {GATE}
s_lshl_b32 s61, s57, 2
s_add_u32 s61, s61, {GATE}
buffer_store_dword v52, v20, s[16:19], s60 offen
buffer_store_dword v53, v20, s[16:19], s61 offen
""")
    A(f"""
s_lshr_b32 s60, s56, 6
s_lshl_b32 s60, s60, 2
s_bfe_u32 s61, s56, 0x20003
s_add_u32 s60, s60, s61
s_mul_i32 s60, s60, {FA_KS}
s_bfe_u32 s61, s56, 0x10005
s_lshl_b32 s61, s61, 9
s_add_u32 s60, s60, s61
s_and_b32 s61, s56, 7
s_lshl_b32 s61, s61, 1
s_add_u32 s60, s60, s61
s_add_u32 s60, s60, {FAC + 10*1024}
s_cmp_eq_u32 s56, 0
s_cbranch_scc1 K1_ALT0
v_add_f32 v54, v54, v55
v_cvt_pk_bf16_f32 v54, v54, v54
buffer_store_short v54, v20, s[16:19], s60 offen
s_branch K1_END
K1_ALT0:
v_cvt_pk_bf16_f32 v54, v54, v54
buffer_store_short v54, v20, s[16:19], s60 offen
v_cvt_pk_bf16_f32 v60, v55, 0
v_mov_b32 v61, 0
v_mov_b32 v62, 0
v_mov_b32 v63, 0
v_mov_b32 v64, 0
s_mov_b32 s60, {FAC + 64*FA_KS + 10*1024}
buffer_store_dwordx4 v[60:63], v20, s[16:19], s60 offen
v_mov_b32 v66, 0
v_mov_b32 v67, 0
v_mov_b32 v65, 0
buffer_store_dwordx4 v[64:67], v20, s[16:19], s60 offen offset:512
""")
    A("s_branch K1_END")
    A.label("K1_COMPUTE")
    if PFM in ("1", "3"):
        A("""
s_movk_i32 s54, 1280
s_movk_i32 s55, 3840
s_and_b32 s56, s33, 1
s_cmp_eq_u32 s35, 3
s_cselect_b32 s36, s54, s55
s_cselect_b32 s37, s56, s33
s_mul_i32 s37, s37, 320
v_and_b32 v1, 31, v0
v_lshrrev_b32 v2, 5, v0
s_cmp_eq_u32 s35, 3
s_cbranch_scc1 K1_PF_F
s_lshl_b32 s49, s32, 7
s_lshl_b32 s50, s52, 5
s_add_u32 s49, s49, s50
v_add_u32 v3, s49, v1
s_branch K1_PF_X
K1_PF_F:
s_lshl_b32 s49, s32, 6
s_lshl_b32 s50, s52, 3
s_add_u32 s49, s49, s50
v_and_b32 v3, 3, v1
v_bfe_u32 v4, v1, 2, 1
v_lshl_add_u32 v3, v4, 5, v3
v_bfe_u32 v4, v1, 3, 1
v_lshl_add_u32 v3, v4, 2, v3
v_add_u32 v3, s49, v3
v_sub_u32 v4, 2048, v3
v_and_b32 v4, 2047, v4
v_cmp_lt_u32 vcc, 15, v1
s_nop 1
v_cndmask_b32 v3, v3, v4, vcc
K1_PF_X:
v_mul_u32_u24 v3, s54, v3
v_lshl_add_u32 v3, v2, 7, v3
s_add_u32 s49, s34, 1
s_lshl_b32 s50, s49, 8
v_bfe_u32 v4, v0, 2, 3
v_lshl_add_u32 v4, v2, 6, v4
s_lshl_b32 s53, s51, 3
s_lshl_b32 s57, s49, 7
s_add_u32 s53, s53, s57
v_add_u32 v4, s53, v4
v_mul_u32_u24 v4, s36, v4
v_and_b32 v5, 3, v0
v_lshlrev_b32 v5, 7, v5
v_min_u32 v5, 316, v5
v_add3_u32 v4, v4, v5, s37
s_mov_b32 s56, 819200
s_mov_b32 s57, 2457600
s_mov_b32 s10, 2621440
s_mov_b32 s11, 0x00020000
s_mov_b32 s15, 0x00020000
s_waitcnt lgkmcnt(0)
s_mov_b32 s8, s4
s_and_b32 s9, s5, 0xffff
s_cmp_lt_u32 s33, 14
s_cselect_b32 s6, s20, s22
s_cselect_b32 s7, s21, s23
s_cmp_eq_u32 s35, 3
s_cselect_b32 s12, s6, s24
s_cselect_b32 s13, s7, s25
s_cselect_b32 s14, s56, s57
s_and_b32 s13, s13, 0xffff
""")
        if PFM == "1":
            A("buffer_load_dword v158, v3, s[8:11], s50 offen")
            A("buffer_load_dword v159, v4, s[12:15], 0 offen")
        else:
            A("""
v_mov_b32 v156, v3
v_mov_b32 v157, v4
s_mov_b32 s66, s50
s_barrier
s_cmp_lt_u32 s34, 2
s_cbranch_scc0 K1_PF_LATER
buffer_load_dword v158, v156, s[8:11], s66 offen
buffer_load_dword v159, v157, s[12:15], 0 offen
K1_PF_LATER:
""")
    if os.environ.get("K1_PREFETCH", "0") == "2":
        A("""
s_lshl_b32 s49, s2, 2
s_add_u32 s49, s49, s34
s_mul_i32 s50, s49, 2560
s_mul_i32 s51, s49, 2400
s_mul_i32 s52, s49, 800
v_lshlrev_b32 v3, 4, v0
v_lshlrev_b32 v4, 3, v0
s_waitcnt lgkmcnt(0)
""")
        srd(A, 8, 4, S * D * 2)
        srd(A, 12, 24, D * 3 * D * 2)
        srd(A, 40, 20, D * D * 2)
        srd(A, 44, 22, D * D * 2)
        A("""
buffer_load_dwordx4 v[156:159], v3, s[12:15], s51 offen
buffer_load_dwordx4 v[156:159], v3, s[8:11], s50 offen
buffer_load_dwordx4 v[156:159], v3, s[12:15], s51 offen offset:1024
buffer_load_dwordx4 v[156:159], v3, s[8:11], s50 offen offset:1024
buffer_load_dwordx2 v[156:157], v4, s[12:15], s51 offen offset:2048
buffer_load_dwordx2 v[156:157], v4, s[8:11], s50 offen offset:2048
buffer_load_dwordx4 v[156:159], v3, s[40:43], s52 offen
buffer_load_dwordx4 v[156:159], v3, s[44:47], s52 offen
""")
    A("s_waitcnt lgkmcnt(0)")
    srd(A, 16, 30, WS_SIZE)
    A("""
s_cmp_ge_u32 s35, 2
s_cbranch_scc1 K1_VF
""")
    k1_mainloop(A, 0)
    A(f"""
s_lshl_b32 s48, s32, 2
s_add_u32 s48, s48, s34
s_and_b32 s49, s33, 3
s_lshl_b32 s49, s49, 3
s_mov_b32 s50, {Q_HS}
s_mov_b32 s51, {KV_HS}
s_mov_b32 s52, {f32hex(QSCALE)}
s_mov_b32 s53, 1.0
s_mul_i32 s54, s48, {Q_TS}
s_add_u32 s54, s54, {QIMG}
s_add_u32 s55, s48, 62
s_and_b32 s55, s55, 63
s_mul_i32 s55, s55, {KV_TS}
s_add_u32 s55, s55, {KVIMG}
s_cmp_eq_u32 s35, 0
s_cselect_b32 s56, s50, s51
s_cselect_b32 s58, s52, s53
s_cselect_b32 s59, s52, s53
s_cselect_b32 s57, s54, s55
s_mul_i32 s60, s49, s56
s_add_u32 s60, s60, s57
v_lshlrev_b32 v3, 4, v0
v_mul_lo_u32 v4, v2, s56
v_lshl_add_u32 v4, v1, 3, v4
v_add_u32 v4, 1024, v4
""")
    A("s_cmp_eq_u32 s35, 0")
    A("s_cbranch_scc0 K1_NOSCALE")
    for i in range(40):
        A(f"v_pk_mul_f32 {vr(ACC+2*i,2)}, {vr(ACC+2*i,2)}, s[58:59]")
    A.label("K1_NOSCALE")
    PK = 96
    for i in range(40):
        A(f"v_cvt_pk_bf16_f32 v{PK+i}, v{ACC+2*i}, v{ACC+2*i+1}")
    A("s_mov_b32 s61, s60")
    for hd in range(8):
        A(f"buffer_store_dwordx4 {vr(PK+4*hd,4)}, v3, s[16:19], s61 offen")
        A("s_add_u32 s61, s61, s56")
    A("s_mov_b32 s61, s60")
    A("s_lshl_b32 s62, s56, 1")
    for i in range(4):
        A(f"buffer_store_dwordx2 {vr(PK+32+2*i,2)}, v4, s[16:19], s61 offen")
        A("s_add_u32 s61, s61, s62")
    A("s_cmp_eq_u32 s35, 0")
    A("s_cbranch_scc1 K1_END")
    for j in range(4):
        for hd in range(8):
            src = PK + 4 * hd + j
            c = "0" if j == 0 else f"v{16+hd}"
            A(f"v_dot2_f32_bf16 v{16+hd}, v{src}, v{src}, {c}")
    for j in range(2):
        for i in range(4):
            src = PK + 32 + 2 * i + j
            c = "0" if j == 0 else f"v{24+i}"
            A(f"v_dot2_f32_bf16 v{24+i}, v{src}, v{src}, {c}")
    A("s_nop 4")
    for i in range(4):
        A(f"v_permlane32_swap_b32 v{16+2*i}, v{17+2*i}")
    A("s_nop 1")
    for i in range(4):
        A(f"v_add_f32 v{16+2*i}, v{16+2*i}, v{17+2*i}")
    for i in range(4):
        A(f"v_add_f32 v{24+i}, v{24+i}, v{16+2*i}")
    for ror in (1, 2, 4, 8):
        A("s_nop 1")
        for i in range(4):
            A(f"v_max_f32_dpp v{24+i}, v{24+i}, v{24+i} row_ror:{ror} row_mask:0xf bank_mask:0xf")
    A("s_nop 1")
    for i in range(4):
        A(f"v_max_f32_dpp v{24+i}, v{24+i}, v{24+i} row_bcast:15 row_mask:0xa bank_mask:0xf")
    A(f"""
s_lshl_b32 s61, s49, 8
s_lshl_b32 s62, s48, 2
s_add_u32 s61, s61, s62
s_add_u32 s61, s61, {KMAX}
v_lshlrev_b32 v5, 8, v2
v_cmp_eq_u32 vcc, 31, v1
s_and_saveexec_b64 s[64:65], vcc
""")
    for i in range(4):
        A(f"buffer_store_dword v{24+i}, v5, s[16:19], s61 offen offset:{512*i}")
    A("s_branch K1_END")

    A.label("K1_VF")
    k1_mainloop(A, 1)
    A("s_cmp_eq_u32 s35, 3")
    A("s_cbranch_scc1 K1_F")
    PK = 96
    for i in range(40):
        A(f"v_cvt_pk_bf16_f32 v{PK+i}, v{ACC+2*i}, v{ACC+2*i+1}")
    A(f"""
s_lshl_b32 s48, s32, 2
s_add_u32 s48, s48, s34
s_and_b32 s49, s33, 3
s_mul_i32 s49, s49, {8*KV_HS}
s_mul_i32 s50, s48, {KV_TS}
s_add_u32 s60, s49, s50
s_add_u32 s60, s60, {KVIMG + 1280}
s_mov_b32 s51, {KV_HS}
v_mul_u32_u24 v3, 336, v2
""")
    for b in range(5):
        A(f"v_add_u32 v4, {32*b}, v1")
        A("v_mul_u32_u24 v5, 3277, v4")
        A("v_lshrrev_b32 v5, 16, v5")
        A("v_mul_u32_u24 v6, 20, v5")
        A("v_sub_u32 v6, v4, v6")
        A("v_mul_lo_u32 v5, v5, s51")
        A("v_lshl_add_u32 v6, v6, 4, v3")
        A(f"v_add_u32 v{8+b}, v5, v6")
    for b in range(5):
        A(f"buffer_store_dwordx4 {vr(PK+8*b,4)}, v{8+b}, s[16:19], s60 offen")
        A(f"buffer_store_dwordx4 {vr(PK+8*b+4,4)}, v{8+b}, s[16:19], s60 offen offset:672")
    A("""
v_lshrrev_b32 v4, 2, v0
v_mul_lo_u32 v4, v4, s51
v_and_b32 v5, 3, v0
v_mul_u32_u24 v5, 336, v5
v_add_u32 v4, v4, v5
v_mov_b32 v16, 0x3f803f80
v_mov_b32 v17, 0x3f803f80
v_mov_b32 v18, 0x3f803f80
v_mov_b32 v19, 0x3f803f80
v_cmp_gt_u32 vcc, 32, v0
s_and_saveexec_b64 s[64:65], vcc
buffer_store_dwordx4 v[16:19], v4, s[16:19], s60 offen offset:320
s_branch K1_END
""")
    A.label("K1_F")
    A(f"""
s_lshl_b32 s48, s32, 2
s_add_u32 s48, s48, s34
s_mov_b32 s50, {FAC}
s_mov_b32 s51, {FAS}
s_mov_b32 s52, 1.0
s_mov_b32 s53, -1.0
s_cmp_lt_u32 s33, 14
s_cselect_b32 s54, s50, s51
s_cselect_b32 s55, s52, s53
s_and_b32 s49, s33, 1
s_mul_i32 s49, s49, 5120
s_add_u32 s54, s54, s49
s_mul_i32 s60, s48, {FA_KS}
s_add_u32 s60, s60, s54
v_lshlrev_b32 v3, 4, v0
s_cmp_lg_u32 s48, 0
s_cbranch_scc1 K1_F_NOSPECIAL
s_add_u32 s61, s54, {64*FA_KS}
v_cmp_gt_u32 vcc, 32, v0
v_mov_b32 v5, 0
v_mov_b32 v6, 0
v_mov_b32 v7, 0
""")
    for b in range(5):
        r8 = ACC + 16 * b + 8
        A(f"v_cndmask_b32 v8, 0, v{r8}, vcc")
        A(f"v_cvt_pk_bf16_f32 v4, v8, 0")
        A(f"v_cndmask_b32 v{r8}, v{r8}, v5, vcc")
        A(f"buffer_store_dwordx4 v[4:7], v3, s[16:19], s61 offen offset:{0}")
        A("s_add_u32 s61, s61, 1024")
        A("s_nop 1")
    A.label("K1_F_NOSPECIAL")
    for b in range(5):
        for r in range(8):
            a = ACC + 16 * b + r
            A(f"v_fma_f32 v{a}, v{a+8}, s55, v{a}")
    for b in range(5):
        for i in range(4):
            a = ACC + 16 * b + 2 * i
            A(f"v_cvt_pk_bf16_f32 v{PK+4*b+i}, v{a}, v{a+1}")
    for b in range(4):
        A(f"buffer_store_dwordx4 {vr(PK+4*b,4)}, v3, s[16:19], s60 offen offset:{1024*b}")
    A("s_add_u32 s60, s60, 4096")
    A(f"buffer_store_dwordx4 {vr(PK+16,4)}, v3, s[16:19], s60 offen")
    A("s_branch K1_END")

    A.label("K1_END")
    prof_end(A, 0)
    A.label("K1_EXIT")
    A("s_endpgm")
```

```python
from common import *

SA, SB, PA, PB, OA, OB = 16, 32, 48, 56, 64, 80
QA1, QB1, QA2, QB2 = 96, 100, 104, 106
K1F, K2F, V0, V1 = 108, 112, 116, 120
KA1, KA2, VA = 9, 10, 11
DV = 12
K2_VGPR = 128
SLOT = 24576
CHUNK = 8 * KV_TS
K2_LDS = 3 * SLOT
PRIO = os.environ.get("K2_PRIO", "1") == "1"
FPRIO = os.environ.get("K2_FPRIO", "0")
K2_GRID = 256 + 8 * 25
VMASK = os.environ.get("K2_VMASK", "1") == "1"


def softmax_groups(Sx, Px):
    gs = []
    for g in range(4):
        l = [f"v_exp_f32 v{Sx+4*g+i}, v{Sx+4*g+i}" for i in range(4)]
        l += [f"v_cvt_pk_bf16_f32 v{Px+2*g+i}, v{Sx+4*g+2*i}, v{Sx+4*g+2*i+1}" for i in range(2)]
        gs.append(l)
    return gs


def qk(Sx, Q1, Q2):
    return [f"v_mfma_f32_32x32x8_bf16 {vr(Sx,16)}, {vr(K2F,2)}, {vr(Q2,2)}, 0",
            f"v_mfma_f32_32x32x16_bf16 {vr(Sx,16)}, {vr(K1F,4)}, {vr(Q1,4)}, {vr(Sx,16)}"]


def pv(Ox, Px):
    return [f"v_mfma_f32_32x32x16_bf16 {vr(Ox,16)}, {vr(V0,4)}, {vr(Px,4)}, {vr(Ox,16)}",
            f"v_mfma_f32_32x32x16_bf16 {vr(Ox,16)}, {vr(V1,4)}, {vr(Px+4,4)}, {vr(Ox,16)}"]


def gen_k2(A):
    A(khead("k2_kernel"))
    A(f"""
s_cmp_ge_u32 s2, {K2_GRID}
s_cbranch_scc1 K2_EXIT
""")
    prof_begin(A)
    A(f"""
s_cmp_ge_u32 s2, 256
s_cbranch_scc1 KF_START
s_load_dwordx2 s[4:5], s[0:1], {KA_WS}
v_lshrrev_b32 v1, 6, v0
v_and_b32 v0, 63, v0
s_and_b32 s20, s2, 7
s_lshl_b32 s20, s20, 2
v_readfirstlane_b32 s22, v1
s_bfe_u32 s21, s2, 0x20003
s_add_u32 s20, s20, s21
s_lshr_b32 s21, s2, 5
s_and_b32 s23, s22, 3
s_lshr_b32 s24, s22, 2
s_lshl_b32 s25, s21, 3
s_lshl_b32 s26, s23, 1
s_add_u32 s25, s25, s26
s_mul_i32 s27, s20, {KV_HS}
s_add_u32 s27, s27, {KVIMG}
v_and_b32 v1, 31, v0
v_lshrrev_b32 v2, 5, v0
v_lshlrev_b32 v3, 4, v0
v_lshlrev_b32 v4, 3, v1
v_lshlrev_b32 v5, 2, v0
s_mul_i32 s28, s20, {Q_HS}
s_mul_i32 s29, s25, {Q_TS}
s_add_u32 s28, s28, s29
s_add_u32 s28, s28, {QIMG}
s_add_u32 s29, s24, 62
s_mul_i32 s29, s29, {KV_TS}
s_lshl_b32 s30, s20, 8
s_add_u32 s30, s30, {KMAX}
s_mul_i32 s31, s22, 3072
v_add_u32 v{DV}, s31, v3
s_mov_b32 m0, s31
s_waitcnt lgkmcnt(0)
""")
    A(f"""
s_add_u32 s12, s4, s27
s_addc_u32 s13, s5, 0
s_and_b32 s13, s13, 0xffff
s_mov_b32 s14, {KV_HS}
s_mov_b32 s15, 0x00020000
""")
    srd(A, 8, 4, WS_SIZE)
    for q in range(3):
        A(f"buffer_load_dwordx4 v{DV}, s[12:15], 0 offen offset:{1024*q} lds")
    A(f"""
buffer_load_dwordx4 {vr(QA1,4)}, v3, s[8:11], s28 offen
buffer_load_dwordx4 {vr(QB1,4)}, v3, s[8:11], s28 offen offset:1280
buffer_load_dwordx2 {vr(QA2,2)}, v4, s[8:11], s28 offen offset:1024
buffer_load_dwordx2 {vr(QB2,2)}, v4, s[8:11], s28 offen offset:2304
buffer_load_dword v13, v5, s[8:11], s30 offen
buffer_load_dwordx4 {vr(K1F,4)}, v3, s[12:15], s29 offen
buffer_load_dwordx2 {vr(K2F,2)}, v4, s[12:15], s29 offen offset:1024
""")
    A(f"""
s_mov_b32 s41, {CHUNK}
s_mul_i32 s32, s24, {KV_TS}
v_add_u32 v{KA1}, s32, v3
v_add_u32 v14, 1024, v4
v_mov_b32 v15, {1280+320}
v_cmp_gt_u32 vcc, 32, v0
v_mul_u32_u24 v16, 336, v2
v_lshl_add_u32 v16, v1, 4, v16
v_cndmask_b32 v14, v15, v14, vcc
v_add_u32 v{KA2}, s32, v14
v_add_u32 v16, 1280, v16
v_add_u32 v{VA}, s32, v16
s_mov_b32 s48, 0x001fffff
s_mov_b32 s49, 0x001fffff
""")
    for i in range(32):
        A(f"v_mov_b32 v{OA+i}, 0")
    for i in range(8):
        A(f"v_mov_b32 v{PB+i}, 0")
        A(f"v_mov_b32 v{V0+i}, 0")
    stamp(A, 1)
    A("s_waitcnt vmcnt(0)")
    A("v_mov_b32 v15, 0x3f803f80")
    for r in (QA2, QA2 + 1, QB2, QB2 + 1):
        A(f"v_cndmask_b32 v{r}, 0, v{r}, vcc")
    for r in (K2F, K2F + 1):
        A(f"v_cndmask_b32 v{r}, v15, v{r}, vcc")
    dpp = [f"v_max_f32_dpp v13, v13, v13 row_ror:{ror} row_mask:0xf bank_mask:0xf" for ror in (1, 2, 4, 8)]
    dpp += ["v_max_f32_dpp v13, v13, v13 row_bcast:15 row_mask:0xa bank_mask:0xf",
            "v_max_f32_dpp v13, v13, v13 row_bcast:31 row_mask:0xc bank_mask:0xf"]
    for j, (ra, rb) in enumerate([(QA1 + i, QB1 + i) for i in range(4)] + [(QA2 + i, QB2 + i) for i in range(2)]):
        ca = "0" if j == 0 else "v16"
        cb = "0" if j == 0 else "v18"
        A(dpp[j])
        A(f"v_dot2_f32_bf16 v16, v{ra}, v{ra}, {ca}")
        A(f"v_dot2_f32_bf16 v18, v{rb}, v{rb}, {cb}")
    A("""
v_readlane_b32 s33, v13, 63
s_nop 2
v_mov_b32 v17, v16
v_mov_b32 v19, v18
s_nop 1
v_permlane32_swap_b32 v16, v17
v_permlane32_swap_b32 v18, v19
s_nop 1
v_add_f32 v16, v16, v17
v_add_f32 v18, v18, v19
v_mul_f32 v16, s33, v16
v_mul_f32 v18, s33, v18
v_sqrt_f32 v16, v16
v_sqrt_f32 v18, v18
s_nop 0
v_mul_f32 v16, -1.0, v16
v_mul_f32 v18, -1.0, v18
""")
    for (m, Q2) in ((16, QA2), (18, QB2)):
        A(f"""
v_and_b32 v20, 0xffff0000, v{m}
v_sub_f32 v21, v{m}, v20
v_and_b32 v22, 0xffff0000, v21
v_sub_f32 v23, v21, v22
v_lshrrev_b32 v20, 16, v20
v_or_b32 v20, v20, v22
v_lshrrev_b32 v23, 16, v23
v_cndmask_b32 v{Q2}, v20, v{Q2}, vcc
v_cndmask_b32 v{Q2+1}, v23, v{Q2+1}, vcc
""")
    A("s_nop 1")
    for m in qk(SA, QA1, QA2):
        A(m)
    A("s_mov_b32 s42, 0")
    A("s_mov_b32 s44, 0")
    A(f"s_add_u32 s40, s31, {SLOT}")
    A(f"s_add_u32 s45, s31, {3*SLOT}")

    def dma_chunk():
        A("s_mov_b32 m0, s40")
        A(f"s_add_u32 s40, s40, {SLOT}")
        for q in range(3):
            A(f"buffer_load_dwordx4 v{DV}, s[12:15], s41 offen offset:{1024*q} lds")
        A(f"s_add_u32 s41, s41, {CHUNK}")
        A("s_cmp_eq_u32 s40, s45")
        A("s_cselect_b32 s40, s31, s40")

    def tile(t, mid_a=None, end_b=None):
        off = t * 2 * KV_TS
        if PRIO:
            A(f"s_setprio {3-t}")
        g = softmax_groups(SA, PA)
        m = qk(SB, QB1, QB2) + pv(OB, PB)
        A(m[0])
        A("\n".join(g[0]))
        A(m[1])
        A(f"ds_read_b128 {vr(K1F,4)}, v{KA1} offset:{off}")
        A(f"ds_read_b64 {vr(K2F,2)}, v{KA2} offset:{off}")
        A("\n".join(g[1]))
        A(m[2])
        A("\n".join(g[2]))
        A(m[3])
        if VMASK:
            A("s_mov_b64 exec, s[48:49]")
        A(f"ds_read_b128 {vr(V0,4)}, v{VA} offset:{off}")
        A(f"ds_read_b128 {vr(V1,4)}, v{VA} offset:{off+672}")
        if VMASK:
            A("s_mov_b64 exec, -1")
        A("\n".join(g[3]))
        if mid_a:
            mid_a()
        g = softmax_groups(SB, PB)
        m = qk(SA, QA1, QA2) + pv(OA, PA)
        A("s_waitcnt lgkmcnt(2)")
        A(m[0])
        A("\n".join(g[0]))
        A(m[1])
        A("\n".join(g[1]))
        A("s_waitcnt lgkmcnt(0)")
        A(m[2])
        A("\n".join(g[2]))
        A(m[3])
        if end_b:
            end_b()
        A("\n".join(g[3]))

    def dma_block():
        A("s_cmp_ge_u32 s42, 6")
        A("s_cbranch_scc1 K2_SKIPDMA")
        dma_chunk()
        A.label("K2_DMADONE")

    def ctl():
        A(f"""
s_add_u32 s42, s42, 1
s_add_u32 s44, s44, 1
s_cmp_eq_u32 s44, 3
s_cselect_b32 s44, 0, s44
s_mov_b32 s43, {SLOT}
s_cselect_b32 s43, {(-2*SLOT) & 0xffffffff}, s43
""")

    def upd():
        A(f"v_add_u32 v{KA1}, s43, v{KA1}")
        A(f"v_add_u32 v{KA2}, s43, v{KA2}")
        A(f"v_add_u32 v{VA}, s43, v{VA}")
        A("s_cmp_eq_u32 s42, 8")

    A("s_barrier")
    stamp(A, 2)
    dma_chunk()
    A("s_branch K2_MID")
    A.label("K2_SKIPDMA")
    A("s_waitcnt vmcnt(0)")
    A("s_branch K2_DMADONE")
    A.label("K2_LOOP")
    tile(2)
    tile(3, end_b=upd)
    A("s_cbranch_scc1 K2_LOOPEND")
    A("s_waitcnt vmcnt(3)")
    A("s_barrier")
    if PROF:
        for it, sl in ((1, 3), (2, 4), (4, 5)):
            A(f"s_cmp_eq_u32 s42, {it}")
            A(f"s_cbranch_scc0 K2_NS{it}")
            stamp(A, sl)
            A.label(f"K2_NS{it}")
    A.label("K2_MID")
    tile(0, mid_a=dma_block)
    tile(1, mid_a=ctl)
    A("s_branch K2_LOOP")
    A.label("K2_LOOPEND")
    stamp(A, 6)
    for m in pv(OB, PB):
        A(m)
    A(f"""
s_mul_i32 s34, s23, 3072
s_mul_i32 s47, s24, {2*SLOT}
s_add_u32 s50, s34, s47
v_add_u32 v13, s50, v3
s_sub_u32 s47, {2*SLOT}, s47
s_add_u32 s50, s34, s47
v_add_u32 v14, s50, v3
s_add_u32 s35, s25, s24
s_mul_i32 s35, s35, 40960
s_add_u32 s35, s35, {OIMG}
s_lshr_b32 s36, s20, 1
s_lshl_b32 s36, s36, 10
s_and_b32 s37, s20, 1
s_lshl_b32 s38, s37, 9
s_add_u32 s36, s36, s38
s_add_u32 s36, s36, s35
s_lshr_b32 s38, s20, 3
s_add_u32 s38, s38, 16
s_lshl_b32 s38, s38, 10
s_bfe_u32 s39, s20, 0x20001
s_lshl_b32 s39, s39, 8
s_add_u32 s38, s38, s39
s_lshl_b32 s39, s37, 3
s_add_u32 s38, s38, s39
s_add_u32 s38, s38, s35
v_lshrrev_b32 v30, 4, v1
v_mul_u32_u24 v30, 20480, v30
v_and_b32 v31, 15, v1
v_lshl_add_u32 v30, v31, 4, v30
v_lshl_add_u32 v31, v2, 8, v30
s_cmp_eq_u32 s24, 0
s_cbranch_scc0 K2_X1
""")
    for q in range(3):
        A(f"ds_write_b128 v13, {vr(OB+4*q,4)} offset:{1024*q}")
    A("s_branch K2_X2")
    A.label("K2_X1")
    for q in range(3):
        A(f"ds_write_b128 v13, {vr(OA+4*q,4)} offset:{1024*q}")
    A("s_nop 4")
    for i in range(12):
        A(f"v_mov_b32 v{OA+i}, v{OB+i}")
    A.label("K2_X2")
    A("s_waitcnt lgkmcnt(0)")
    A("s_barrier")
    for q in range(3):
        A(f"ds_read_b128 {vr(16+4*q,4)}, v14 offset:{1024*q}")
    A("s_waitcnt lgkmcnt(0)")
    for i in (8, 0, 1, 2, 3, 4, 5, 6, 7, 9, 10, 11):
        A(f"v_add_f32 v{OA+i}, v{OA+i}, v{16+i}")
        if i == 8:
            A(f"v_mov_b32 v28, v{OA+8}")
            A(f"v_mov_b32 v29, v{OA+8}")
        if i == 1:
            A("v_permlane32_swap_b32 v28, v29")
        if i == 4:
            A("v_rcp_f32 v29, v29")
    for i in range(12):
        A(f"v_mul_f32 v{OA+i}, v{OA+i}, v29")
    for i in range(6):
        A(f"v_cvt_pk_bf16_f32 v{20+i}, v{OA+2*i}, v{OA+2*i+1}")
    A("""
buffer_store_dwordx4 v[20:23], v31, s[8:11], s36 offen
v_cmp_gt_u32 vcc, 32, v0
s_and_saveexec_b64 s[44:45], vcc
buffer_store_dwordx2 v[24:25], v30, s[8:11], s38 offen
""")
    prof_end(A, 2)
    A("s_endpgm")

    A.label("KF_START")
    if FPRIO != "0":
        A(f"s_setprio {FPRIO}")
    A(f"""
s_load_dwordx4 s[4:7], s[0:1], {KA_SRE}
s_load_dwordx2 s[16:17], s[0:1], {KA_WS}
v_lshrrev_b32 v1, 6, v0
v_and_b32 v0, 63, v0
s_and_b32 s18, s2, 7
s_sub_u32 s19, s2, 256
s_lshr_b32 s19, s19, 3
v_readfirstlane_b32 s22, v1
s_mul_i32 s20, s19, 43
s_lshr_b32 s20, s20, 8
s_mul_i32 s21, s20, 6
s_sub_u32 s21, s19, s21
s_lshl_b32 s23, s18, 2
s_add_u32 s20, s20, s23
s_cmp_ge_u32 s22, 4
s_cbranch_scc1 K2_EXIT
s_cmp_lt_u32 s19, 24
s_cbranch_scc1 KF_JOBOK
s_mov_b32 s20, 32
s_mov_b32 s21, s18
s_cmp_ge_u32 s21, 6
s_cbranch_scc1 K2_EXIT
KF_JOBOK:
s_lshr_b32 s23, s22, 1
s_and_b32 s24, s22, 1
s_mov_b32 s26, {FAC}
s_mov_b32 s27, {FAS}
v_and_b32 v1, 31, v0
v_lshrrev_b32 v2, 5, v0
v_lshlrev_b32 v3, 4, v0
""")
    A(f"""
s_lshl_b32 s28, s20, 5
v_lshrrev_b32 v4, 3, v0
v_add_u32 v4, s28, v4
v_lshlrev_b32 v4, 12, v4
v_and_b32 v5, 7, v0
v_lshrrev_b32 v6, 4, v0
v_xor_b32 v5, v5, v6
v_lshl_add_u32 v8, v5, 4, v4
v_xor_b32 v9, 64, v8
v_add_u32 v9, 0x8000, v9
v_add_u32 v10, 0x10000, v8
v_add_u32 v11, 0x10000, v9
s_lshl_b32 s33, s22, 14
v_bfe_u32 v4, v1, 1, 3
v_lshlrev_b32 v5, 2, v2
v_lshl_add_u32 v6, v1, 7, s33
""")
    for u in range(4):
        A(f"v_add_u32 v7, {u}, v5")
        A("v_xor_b32 v7, v7, v4")
        A(f"v_lshl_add_u32 v{12+u}, v7, 4, v6")
    A(f"""
s_lshl_b32 s29, s24, 10
s_mul_i32 s30, s24, {32*FA_KS}
s_lshl_b32 s31, s21, 11
s_add_u32 s30, s30, s31
s_waitcnt lgkmcnt(0)
s_cmp_eq_u32 s23, 0
s_cselect_b32 s12, s4, s6
s_cselect_b32 s13, s5, s7
s_cselect_b32 s25, s26, s27
s_and_b32 s13, s13, 0xffff
s_mov_b32 s14, {S*S*2}
s_mov_b32 s15, 0x00020000
s_add_u32 s30, s30, s25
""")
    srd(A, 8, 16, WS_SIZE)
    ACC = 16
    CF = 48
    AF = 64
    A("s_cmp_eq_u32 s21, 5")
    A("s_cselect_b32 s32, s23, 0")
    A("s_cmp_eq_u32 s32, 1")
    A("s_cbranch_scc0 KF_GO")
    for i in range(32):
        A(f"v_mov_b32 v{ACC+i}, 0")
    A("s_branch KF_COMB")
    A.label("KF_GO")

    def issue_round(r):
        for q in range(4):
            A(f"s_add_u32 m0, s33, {(r & 3)*4096 + q*1024}")
            A("s_nop 0")
            A(f"buffer_load_dwordx4 v{8+q}, s[12:15], s29 offen lds")
        A("s_add_u32 s29, s29, 128")

    def issue_a(r):
        for u in range(4):
            reg = AF + 32 * (r & 1) + 8 * u
            A(f"buffer_load_dwordx4 {vr(reg,4)}, v3, s[8:11], s30 offen")
            A(f"buffer_load_dwordx4 {vr(reg+4,4)}, v3, s[8:11], s30 offen offset:1024")
            A(f"s_add_u32 s30, s30, {FA_KS}")

    order = []
    def rec(tag, n):
        order.append((tag, n))
    issue_round(0); rec("C0", 4)
    issue_a(0); rec("A0", 8)
    stamp(A, 1)
    nextc, nexta = 1, 1
    for r in range(8):
        idx = max(i for i, (t, n) in enumerate(order) if t in (f"C{r}", f"A{r}"))
        younger = sum(n for t, n in order[idx + 1:])
        A(f"s_waitcnt vmcnt({younger})")
        if r == 0:
            issue_round(1); rec("C1", 4)
            issue_a(1); rec("A1", 8)
            issue_round(2); rec("C2", 4)
            nextc, nexta = 3, 2
        for u in range(4):
            A(f"ds_read_b128 {vr(CF+4*u,4)}, v{12+u} offset:{(r & 3)*4096}")
        for u in range(4):
            A(f"s_waitcnt lgkmcnt({3-u})")
            reg = AF + 32 * (r & 1) + 8 * u
            for b in range(2):
                acc = vr(ACC + 16 * b, 16)
                c = "0" if (r == 0 and u == 0) else acc
                A(f"v_mfma_f32_32x32x16_bf16 {acc}, {vr(reg+4*b,4)}, {vr(CF+4*u,4)}, {c}")
        if nexta < 8:
            issue_a(nexta); rec(f"A{nexta}", 8); nexta += 1
        if nextc < 8:
            issue_round(nextc); rec(f"C{nextc}", 4); nextc += 1
    A(f"""
s_cmp_eq_u32 s22, 1
s_cbranch_scc0 KF_COMB
v_add_u32 v4, s28, v1
v_lshlrev_b32 v6, 12, v4
v_lshl_add_u32 v6, v2, 4, v6
buffer_load_dwordx4 {vr(CF,4)}, v6, s[12:15], 0 offen offset:2048
buffer_load_dwordx4 {vr(AF,4)}, v3, s[8:11], s30 offen
buffer_load_dwordx4 {vr(AF+4,4)}, v3, s[8:11], s30 offen offset:1024
s_waitcnt vmcnt(0)
v_mfma_f32_32x32x16_bf16 {vr(ACC,16)}, {vr(AF,4)}, {vr(CF,4)}, {vr(ACC,16)}
v_mfma_f32_32x32x16_bf16 {vr(ACC+16,16)}, {vr(AF+4,4)}, {vr(CF,4)}, {vr(ACC+16,16)}
""")
    A.label("KF_COMB")
    stamp(A, 2)
    A(f"""
v_add_u32 v7, s33, v3
s_lshl_b32 s34, s22, 11
v_add_u32 v5, s34, v3
v_add_u32 v4, s28, v1
s_movk_i32 s34, {Y_PITCH}
v_mul_u32_u24 v8, s34, v4
v_lshl_add_u32 v8, v2, 4, v8
s_lshl_b32 s35, s21, 8
s_lshl_b32 s36, s22, 6
s_add_u32 s35, s35, s36
s_add_u32 s36, s35, {YP}
s_add_u32 s35, s35, {YM}
s_nop 7
""")
    for q in range(8):
        A(f"ds_write_b128 v7, {vr(ACC+4*q,4)} offset:{1024*q}")
    A("s_waitcnt lgkmcnt(0)")
    A("s_barrier")
    for w in range(4):
        for j in range(2):
            A(f"ds_read_b128 {vr(48+8*w+4*j,4)}, v5 offset:{16384*w + 1024*j}")
    A("s_cmp_eq_u32 s32, 1")
    A("s_cbranch_scc1 KF_DONE")
    A("s_waitcnt lgkmcnt(0)")
    for i in range(8):
        A(f"v_add_f32 v{48+i}, v{48+i}, v{56+i}")
        A(f"v_add_f32 v{64+i}, v{64+i}, v{72+i}")
    for i in range(8):
        A(f"v_sub_f32 v{80+i}, v{48+i}, v{64+i}")
        A(f"v_add_f32 v{88+i}, v{48+i}, v{64+i}")
    A("buffer_store_dwordx4 v[80:83], v8, s[8:11], s35 offen")
    A("buffer_store_dwordx4 v[84:87], v8, s[8:11], s35 offen offset:32")
    A("buffer_store_dwordx4 v[88:91], v8, s[8:11], s36 offen")
    A("buffer_store_dwordx4 v[92:95], v8, s[8:11], s36 offen offset:32")
    A.label("KF_DONE")
    prof_end(A, 1)
    A.label("K2_EXIT")
    A("s_endpgm")
```

```python
from common import *
import struct, math

def f32hex(x):
    return "0x%08x" % struct.unpack("<I", struct.pack("<f", x))[0]

STF = os.environ.get("K1_STF", "")
CPF = os.environ.get("K1_CPF", "0") == "1"
PFM = os.environ.get("K1_PREFETCH", "0")
QSCALE = (DH ** -0.5) * math.log2(math.e)

ACC = 16
SET = [96, 120]
XB, WB = 144, 148
XA, WA = 150, 154
K1_VGPR = 160
K1_LDS = 65536 + 4 * 20480


def k1_reads(kind, kap, st):
    b0 = SET[st]
    out = [f"ds_read_b128 {vr(b0,4)}, v{XA+kap}"]
    for b in range(5):
        for rd in range(2):
            if kind == 0:
                a = WA if b < 4 else WA + 1
                off = (16 * kap + 4 * rd) * 320 + (80 * b if b < 4 else 0)
            else:
                a = WA
                off = (16 * kap + 4 * rd) * 320 + 64 * b
            out.append(f"ds_read_b64_tr_b16 {vr(b0+4+4*b+2*rd,2)}, v{a} offset:{off}")
    return out


def k1_mfmas(kind, st):
    b0 = SET[st]
    out = []
    for b in range(5):
        acc = vr(ACC + 16 * b, 16)
        xf, wf = vr(b0, 4), vr(b0 + 4 + 4 * b, 4)
        if kind == 0:
            out.append(f"v_mfma_f32_32x32x16_bf16 {acc}, {wf}, {xf}, {acc}")
        else:
            out.append(f"v_mfma_f32_32x32x16_bf16 {acc}, {xf}, {wf}, {acc}")
    return out


def interleave(A, mf, rd, extra=()):
    chunks = [rd[0:4], rd[4:8], rd[8:11], list(extra), []]
    for m, c in zip(mf, chunks):
        A(m)
        for x in c:
            A(x)


def k1_mainloop(A, kind):
    L = f"K1_LOOP{kind}"
    A("v_and_b32 v1, 31, v0")
    A("v_lshrrev_b32 v2, 5, v0")
    A("s_lshl_b32 s48, s34, 12")
    A("v_lshlrev_b32 v3, 7, v1")
    A("v_add_u32 v3, s48, v3")
    A("v_bfe_u32 v4, v1, 1, 3")
    for kap in range(4):
        A(f"v_add_u32 v5, {2*kap}, v2")
        A("v_xor_b32 v5, v5, v4")
        A(f"v_lshl_add_u32 v{XB+kap}, v5, 4, v3")
    A("v_bfe_u32 v5, v0, 4, 1")
    A("v_bfe_u32 v6, v0, 2, 2")
    A("v_and_b32 v7, 3, v0")
    A("v_lshl_add_u32 v8, v2, 3, v6")
    A("v_mul_u32_u24 v8, 320, v8")
    A("v_add_u32 v8, 0x10000, v8")
    if kind == 1:
        A("v_lshl_add_u32 v9, v5, 5, v8")
        A(f"v_lshl_add_u32 v{WB}, v7, 3, v9")
        A(f"v_mov_b32 v{WB+1}, v{WB}")
    else:
        A("v_mul_u32_u24 v9, 40, v5")
        A("v_add_u32 v9, v9, v8")
        A("v_and_b32 v10, 1, v7")
        A("v_lshl_add_u32 v9, v10, 4, v9")
        A("v_lshrrev_b32 v10, 1, v7")
        A(f"v_lshl_add_u32 v{WB}, v10, 3, v9")
        A("v_lshl_add_u32 v10, v5, 2, v7")
        A("v_mul_u32_u24 v10, 40, v10")
        A("v_add3_u32 v%d, v10, v8, 32" % (WB + 1))
    for i in range(6):
        A(f"v_mov_b32 v{XA+i}, v{XB+i}")
    for i in range(80):
        A(f"v_mov_b32 v{ACC+i}, 0")
    for i in range(24):
        A(f"v_mov_b32 v{SET[1]+i}, 0")
    A("s_mov_b32 s60, 0")
    stamp(A, 1)
    if PROF or PFM == "3":
        A("s_barrier")
        stamp(A, 2)
        if PFM == "3":
            A("s_cmp_lt_u32 s34, 2")
            A(f"s_cbranch_scc1 {L}_B")
            A("buffer_load_dword v158, v156, s[8:11], s66 offen")
            A("buffer_load_dword v159, v157, s[12:15], 0 offen")
        A(f"s_branch {L}_B")
    A.label(L)
    A("s_barrier")
    A.label(L + "_B")
    interleave(A, k1_mfmas(kind, 1), k1_reads(kind, 0, 0),
               extra=["s_add_u32 s60, s60, 1", "s_and_b32 s61, s60, 3", "s_lshl_b32 s62, s61, 14", "s_mul_i32 s63, s61, 20480"])
    A("s_waitcnt lgkmcnt(0)")
    interleave(A, k1_mfmas(kind, 0), k1_reads(kind, 1, 1))
    A("s_waitcnt lgkmcnt(0)")
    interleave(A, k1_mfmas(kind, 1), k1_reads(kind, 2, 0))
    A("s_waitcnt lgkmcnt(0)")
    upd = [f"v_add_u32 v{XA+i}, s62, v{XB+i}" for i in range(4)] + [f"v_add_u32 v{WA+i}, s63, v{WB+i}" for i in range(2)]
    interleave(A, k1_mfmas(kind, 0), k1_reads(kind, 3, 1), extra=upd)
    A("s_cmp_lt_u32 s60, 10")
    A("s_waitcnt lgkmcnt(0)")
    A(f"s_cbranch_scc1 {L}")
    stamp(A, 3)
    for m in k1_mfmas(kind, 1):
        A(m)
    A("s_nop 15")
    A("s_nop 7")


def gen_k1(A):
    A(khead("k1_kernel"))
    A(f"""
s_cmp_ge_u32 s2, 256
s_cbranch_scc1 K1_EXIT
""")
    prof_begin(A)
    A(f"""
s_load_dwordx2 s[4:5], s[0:1], {KA_X}
s_load_dwordx4 s[20:23], s[0:1], {KA_HRE}
s_load_dwordx4 s[24:27], s[0:1], {KA_WQKV}
s_load_dwordx2 s[28:29], s[0:1], {KA_GATE}
s_load_dwordx2 s[30:31], s[0:1], {KA_WS}
v_lshrrev_b32 v1, 6, v0
v_and_b32 v0, 63, v0
s_and_b32 s48, s2, 7
s_lshr_b32 s49, s2, 3
v_readfirstlane_b32 s34, v1
s_and_b32 s50, s48, 1
s_lshl_b32 s50, s50, 3
s_and_b32 s51, s49, 7
s_add_u32 s32, s50, s51
s_lshr_b32 s35, s48, 1
s_lshl_b32 s50, s35, 2
s_lshr_b32 s52, s49, 3
s_add_u32 s33, s50, s52
s_cmp_lt_u32 s34, 4
s_cbranch_scc1 K1_COMPUTE
""")
    A("""
s_mul_i32 s38, s52, 3
s_add_u32 s38, s38, s51
s_add_u32 s38, s38, s35
s_sub_u32 s39, s38, 10
s_cmp_ge_u32 s38, 10
s_cselect_b32 s38, s39, s38
""")
    if os.environ.get("K1_STAGGER", "1") != "1":
        A("s_mov_b32 s38, 0")
    A("""
s_movk_i32 s54, 1280
s_movk_i32 s55, 3840
s_and_b32 s56, s33, 1
s_cmp_eq_u32 s35, 3
s_cselect_b32 s36, s54, s55
s_cselect_b32 s37, s56, s33
s_mul_i32 s37, s37, 320
s_sub_u32 s34, s34, 4
v_lshrrev_b32 v1, 3, v0
v_and_b32 v2, 7, v0
v_lshrrev_b32 v3, 4, v0
v_xor_b32 v4, v2, v3
v_lshlrev_b32 v4, 4, v4
v_xor_b32 v5, 64, v4
s_movk_i32 s48, 1280
s_cmp_eq_u32 s35, 3
s_cbranch_scc1 K1_LD_F
s_lshl_b32 s49, s32, 7
s_lshl_b32 s50, s34, 5
s_add_u32 s49, s49, s50
v_add_u32 v6, s49, v1
v_mul_u32_u24 v6, s48, v6
v_add_u32 v10, v6, v4
v_add_u32 v11, v6, v5
v_add_u32 v11, 10240, v11
v_add_u32 v12, 20480, v10
v_add_u32 v13, 20480, v11
s_branch K1_LD_W
K1_LD_F:
s_lshl_b32 s49, s32, 6
s_lshl_b32 s50, s34, 3
s_add_u32 s49, s49, s50
v_and_b32 v6, 3, v1
v_and_b32 v7, 32, v0
v_add3_u32 v6, v6, v7, s49
v_add_u32 v7, 4, v6
v_sub_u32 v8, 2048, v6
v_sub_u32 v9, 2048, v7
v_cmp_eq_u32 vcc, 0, v6
v_mov_b32 v14, 1024
v_mul_u32_u24 v6, s48, v6
v_mul_u32_u24 v7, s48, v7
v_cndmask_b32 v8, v8, v14, vcc
v_mul_u32_u24 v9, s48, v9
v_mul_u32_u24 v8, s48, v8
v_add_u32 v10, v6, v4
v_add_u32 v11, v7, v5
v_add_u32 v12, v8, v4
v_add_u32 v13, v9, v5
K1_LD_W:
s_mul_i32 s49, s34, 320
v_add_u32 v6, s49, v0
""")
    for q in range(5):
        if q:
            A(f"v_add_u32 v6, 64, v6")
        A("v_mul_u32_u24 v7, 3277, v6")
        A("v_lshrrev_b32 v7, 16, v7")
        A("v_mul_u32_u24 v8, 20, v7")
        A("v_sub_u32 v8, v6, v8")
        A("v_mul_u32_u24 v7, s36, v7")
        A("v_lshl_add_u32 v8, v8, 4, s37")
        A(f"v_add_u32 v{14+q}, v7, v8")
    A("""
s_lshl_b32 s52, s34, 12
s_mul_i32 s53, s34, 5120
s_lshl_b32 s55, s36, 6
s_lshl_b32 s51, s38, 7
s_mul_i32 s54, s38, s55
s_mov_b32 s56, 819200
s_mov_b32 s57, 2457600
s_mov_b32 s10, 2621440
s_mov_b32 s11, 0x00020000
s_mov_b32 s15, 0x00020000
s_waitcnt lgkmcnt(0)
s_mov_b32 s8, s4
s_and_b32 s9, s5, 0xffff
s_cmp_lt_u32 s33, 14
s_cselect_b32 s6, s20, s22
s_cselect_b32 s7, s21, s23
s_cmp_eq_u32 s35, 3
s_cselect_b32 s12, s6, s24
s_cselect_b32 s13, s7, s25
s_cselect_b32 s14, s56, s57
s_and_b32 s13, s13, 0xffff
""")

    def issue(c):
        slot = c & 3
        for q in range(4):
            A(f"s_add_u32 m0, s52, {slot*16384 + q*1024}")
            A("s_nop 0")
            A(f"buffer_load_dwordx4 v{10+q}, s[8:11], s51 offen lds")
        for q in range(5):
            A(f"s_add_u32 m0, s53, {65536 + slot*20480 + q*1024}")
            A("s_nop 0")
            A(f"buffer_load_dwordx4 v{14+q}, s[12:15], s54 offen lds")
        A("s_add_u32 s38, s38, 1")
        A("s_cmp_eq_u32 s38, 10")
        A("s_cselect_b32 s38, 0, s38")
        A("s_lshl_b32 s51, s38, 7")
        A("s_mul_i32 s54, s38, s55")

    def side_loads():
        srd(A, 16, 30, WS_SIZE)
        srd(A, 40, 26, D * D * 2)
        srd(A, 44, 28, D * 2)
        A("""
s_lshl_b32 s56, s2, 2
s_add_u32 s56, s56, s34
s_sub_u32 s57, 2048, s56
s_cmp_eq_u32 s56, 0
s_cselect_b32 s57, 1024, s57
s_mul_i32 s58, s56, 1280
s_mul_i32 s59, s57, 1280
v_mul_u32_u24 v20, 20, v0
buffer_load_dwordx4 v[24:27], v20, s[8:11], s58 offen
buffer_load_dword v28, v20, s[8:11], s58 offen offset:16
buffer_load_dwordx4 v[32:35], v20, s[8:11], s59 offen
buffer_load_dword v36, v20, s[8:11], s59 offen offset:16
buffer_load_dwordx4 v[40:43], v20, s[44:47], 0 offen
buffer_load_dword v44, v20, s[44:47], 0 offen offset:16
s_mul_i32 s60, s56, 3277
s_lshr_b32 s60, s60, 16
s_mul_i32 s61, s60, 20
s_sub_u32 s61, s56, s61
v_lshrrev_b32 v21, 4, v0
v_and_b32 v22, 15, v0
s_cmp_lt_u32 s61, 16
s_cbranch_scc0 K1_WOT_HI
s_mul_i32 s62, s61, 40
v_lshrrev_b32 v23, 1, v21
v_mul_u32_u24 v23, 20, v23
v_and_b32 v29, 1, v21
v_lshl_add_u32 v23, v29, 2, v23
v_add_u32 v23, s62, v23
s_movk_i32 s63, 10240
s_branch K1_WOT_GO
K1_WOT_HI:
s_sub_u32 s62, s61, 16
s_mul_i32 s62, s62, 160
s_add_u32 s62, s62, 16
v_mul_u32_u24 v23, 40, v21
v_add_u32 v23, s62, v23
s_movk_i32 s63, 25600
K1_WOT_GO:
v_mul_u32_u24 v23, s48, v23
s_lshl_b32 s60, s60, 5
v_lshl_add_u32 v23, v22, 1, v23
v_add_u32 v23, s60, v23
v_add_u32 v29, s63, v23
""")
        for half, a in ((0, 23), (1, 29)):
            for j in range(4):
                reg = (68 if (j & 1) else 48) + 2 * half + (j >> 1)
                A(f"buffer_load_ushort v{reg}, v{a}, s[40:43], 0 offen offset:{1280*j}")
        if CPF:
            A(f"s_load_dwordx4 s[64:67], s[0:1], {KA_SRE}")
            A("s_lshl_b32 s60, s56, 12")
            A("v_lshlrev_b32 v76, 4, v0")
            A("s_waitcnt lgkmcnt(0)")
            srd(A, 40, 64, S * S * 2)
            srd(A, 44, 66, S * S * 2)
            for sr_ in ("s[40:43]", "s[44:47]"):
                for o in (0, 1024):
                    A(f"buffer_load_dwordx4 v[80:83], v76, {sr_}, s60 offen offset:{o}")

    stamp(A, 1)
    issue(0)
    if PFM == "3":
        A("s_barrier")
    EARLY = os.environ.get("K1_EARLY", "0") == "1"
    if EARLY:
        stamp(A, 2)
        A("s_waitcnt vmcnt(0)")
        stamp(A, 3)
        A("s_barrier")
    issue(1)
    if not EARLY:
        stamp(A, 2)
    NS = 18 if CPF else 14
    DIST = int(os.environ.get("K1_DIST", "2"))
    for c in range(10):
        if DIST == 3:
            n = {0: 9, 1: 18, 2: 18, 3: 18, 4: 18, 5: 18, 6: 18, 7: 18 + NS, 8: 9 + NS, 9: NS}[c]
        else:
            n = {0: 9, 1: 9, 2: 9, 3: 9, 4: 9, 5: 9, 6: 9, 7: 9, 8: 9 + NS, 9: NS}[c]
        if not (EARLY and c == 0):
            A(f"s_waitcnt vmcnt({n})")
            if c in (0, 1, 4, 9):
                stamp(A, {0: 3, 1: 4, 4: 5, 9: 6}[c])
            A("s_barrier")
        if DIST == 3:
            if c == 0:
                issue(2)
            if c + 3 <= 9:
                issue(c + 3)
            if c == 6:
                side_loads()
        else:
            if c + 2 <= 9:
                issue(c + 2)
            if c == 7:
                side_loads()
        if c == 9:
            A(f"s_waitcnt vmcnt({4 if CPF else 0})")
            A("v_mov_b32 v56, 0xbf803f80")
            for i in range(4):
                A(f"v_lshl_or_b32 v{48+i}, v{68+i}, 16, v{48+i}")
            xs = [24, 25, 26, 27, 28]
            xm = [32, 33, 34, 35, 36]
            gw = [40, 41, 42, 43, 44]
            for j in range(5):
                for acc, a, b in ((52, xs[j], gw[j]), (53, xm[j], gw[j]), (54, xs[j], 56), (55, xm[j], 56)):
                    cc = "0" if j == 0 else f"v{acc}"
                    A(f"v_dot2_f32_bf16 v{acc}, v{a}, v{b}, {cc}")
            A("s_nop 3")
            for ror in (1, 2, 4, 8):
                for i in range(4):
                    A(f"v_add_f32_dpp v{52+i}, v{52+i}, v{52+i} row_ror:{ror} row_mask:0xf bank_mask:0xf")
                A("s_nop 1")
            for i in range(4):
                A(f"v_add_f32_dpp v{52+i}, v{52+i}, v{52+i} row_bcast:15 row_mask:0xa bank_mask:0xf")
            A("s_nop 1")
            for i in range(4):
                A(f"v_add_f32_dpp v{52+i}, v{52+i}, v{52+i} row_bcast:31 row_mask:0xc bank_mask:0xf")
            A("s_nop 1")
    A(f"""
s_lshl_b32 s60, s56, 10
s_add_u32 s60, s60, {WOT}
v_lshlrev_b32 v20, 4, v0
s_cmp_lt_u32 s56, 800
s_cbranch_scc0 K1_NO_WOT
buffer_store_dwordx4 v[48:51], v20, s[16:19], s60 offen
K1_NO_WOT:
s_cmp_lt_u32 s56, 8
s_cbranch_scc0 K1_NO_FLG
s_lshl_b32 s60, s56, 11
s_add_u32 s60, s60, {FLAGO}
v_mov_b32 v72, 0
v_mov_b32 v73, 0
v_mov_b32 v74, 0
v_mov_b32 v75, 0
buffer_store_dwordx4 v[72:75], v20, s[16:19], s60 offen
buffer_store_dwordx4 v[72:75], v20, s[16:19], s60 offen offset:1024
K1_NO_FLG:
v_mov_b32 v20, 0
v_cmp_eq_u32 vcc, 63, v0
s_and_saveexec_b64 s[64:65], vcc
s_lshl_b32 s60, s56, 2
s_add_u32 s60, s60, {GATE}
s_lshl_b32 s61, s57, 2
s_add_u32 s61, s61, {GATE}
buffer_store_dword v52, v20, s[16:19], s60 offen
buffer_store_dword v53, v20, s[16:19], s61 offen
""")
    A(f"""
s_lshr_b32 s60, s56, 6
s_lshl_b32 s60, s60, 2
s_bfe_u32 s61, s56, 0x20003
s_add_u32 s60, s60, s61
s_mul_i32 s60, s60, {FA_KS}
s_bfe_u32 s61, s56, 0x10005
s_lshl_b32 s61, s61, 9
s_add_u32 s60, s60, s61
s_and_b32 s61, s56, 7
s_lshl_b32 s61, s61, 1
s_add_u32 s60, s60, s61
s_add_u32 s60, s60, {FAC + 10*1024}
s_cmp_eq_u32 s56, 0
s_cbranch_scc1 K1_ALT0
v_add_f32 v54, v54, v55
v_cvt_pk_bf16_f32 v54, v54, v54
buffer_store_short v54, v20, s[16:19], s60 offen
s_branch K1_END
K1_ALT0:
v_cvt_pk_bf16_f32 v54, v54, v54
buffer_store_short v54, v20, s[16:19], s60 offen
v_cvt_pk_bf16_f32 v60, v55, 0
v_mov_b32 v61, 0
v_mov_b32 v62, 0
v_mov_b32 v63, 0
v_mov_b32 v64, 0
s_mov_b32 s60, {FAC + 64*FA_KS + 10*1024}
buffer_store_dwordx4 v[60:63], v20, s[16:19], s60 offen
v_mov_b32 v66, 0
v_mov_b32 v67, 0
v_mov_b32 v65, 0
buffer_store_dwordx4 v[64:67], v20, s[16:19], s60 offen offset:512
""")
    A("s_branch K1_END")
    A.label("K1_COMPUTE")
    if PFM in ("1", "3"):
        A("""
s_movk_i32 s54, 1280
s_movk_i32 s55, 3840
s_and_b32 s56, s33, 1
s_cmp_eq_u32 s35, 3
s_cselect_b32 s36, s54, s55
s_cselect_b32 s37, s56, s33
s_mul_i32 s37, s37, 320
v_and_b32 v1, 31, v0
v_lshrrev_b32 v2, 5, v0
s_cmp_eq_u32 s35, 3
s_cbranch_scc1 K1_PF_F
s_lshl_b32 s49, s32, 7
s_lshl_b32 s50, s52, 5
s_add_u32 s49, s49, s50
v_add_u32 v3, s49, v1
s_branch K1_PF_X
K1_PF_F:
s_lshl_b32 s49, s32, 6
s_lshl_b32 s50, s52, 3
s_add_u32 s49, s49, s50
v_and_b32 v3, 3, v1
v_bfe_u32 v4, v1, 2, 1
v_lshl_add_u32 v3, v4, 5, v3
v_bfe_u32 v4, v1, 3, 1
v_lshl_add_u32 v3, v4, 2, v3
v_add_u32 v3, s49, v3
v_sub_u32 v4, 2048, v3
v_and_b32 v4, 2047, v4
v_cmp_lt_u32 vcc, 15, v1
s_nop 1
v_cndmask_b32 v3, v3, v4, vcc
K1_PF_X:
v_mul_u32_u24 v3, s54, v3
v_lshl_add_u32 v3, v2, 7, v3
s_add_u32 s49, s34, 1
s_lshl_b32 s50, s49, 8
v_bfe_u32 v4, v0, 2, 3
v_lshl_add_u32 v4, v2, 6, v4
s_lshl_b32 s53, s51, 3
s_lshl_b32 s57, s49, 7
s_add_u32 s53, s53, s57
v_add_u32 v4, s53, v4
v_mul_u32_u24 v4, s36, v4
v_and_b32 v5, 3, v0
v_lshlrev_b32 v5, 7, v5
v_min_u32 v5, 316, v5
v_add3_u32 v4, v4, v5, s37
s_mov_b32 s56, 819200
s_mov_b32 s57, 2457600
s_mov_b32 s10, 2621440
s_mov_b32 s11, 0x00020000
s_mov_b32 s15, 0x00020000
s_waitcnt lgkmcnt(0)
s_mov_b32 s8, s4
s_and_b32 s9, s5, 0xffff
s_cmp_lt_u32 s33, 14
s_cselect_b32 s6, s20, s22
s_cselect_b32 s7, s21, s23
s_cmp_eq_u32 s35, 3
s_cselect_b32 s12, s6, s24
s_cselect_b32 s13, s7, s25
s_cselect_b32 s14, s56, s57
s_and_b32 s13, s13, 0xffff
""")
        if PFM == "1":
            A("buffer_load_dword v158, v3, s[8:11], s50 offen")
            A("buffer_load_dword v159, v4, s[12:15], 0 offen")
        else:
            A("""
v_mov_b32 v156, v3
v_mov_b32 v157, v4
s_mov_b32 s66, s50
s_barrier
s_cmp_lt_u32 s34, 2
s_cbranch_scc0 K1_PF_LATER
buffer_load_dword v158, v156, s[8:11], s66 offen
buffer_load_dword v159, v157, s[12:15], 0 offen
K1_PF_LATER:
""")
    if os.environ.get("K1_PREFETCH", "0") == "2":
        A("""
s_lshl_b32 s49, s2, 2
s_add_u32 s49, s49, s34
s_mul_i32 s50, s49, 2560
s_mul_i32 s51, s49, 2400
s_mul_i32 s52, s49, 800
v_lshlrev_b32 v3, 4, v0
v_lshlrev_b32 v4, 3, v0
s_waitcnt lgkmcnt(0)
""")
        srd(A, 8, 4, S * D * 2)
        srd(A, 12, 24, D * 3 * D * 2)
        srd(A, 40, 20, D * D * 2)
        srd(A, 44, 22, D * D * 2)
        A("""
buffer_load_dwordx4 v[156:159], v3, s[12:15], s51 offen
buffer_load_dwordx4 v[156:159], v3, s[8:11], s50 offen
buffer_load_dwordx4 v[156:159], v3, s[12:15], s51 offen offset:1024
buffer_load_dwordx4 v[156:159], v3, s[8:11], s50 offen offset:1024
buffer_load_dwordx2 v[156:157], v4, s[12:15], s51 offen offset:2048
buffer_load_dwordx2 v[156:157], v4, s[8:11], s50 offen offset:2048
buffer_load_dwordx4 v[156:159], v3, s[40:43], s52 offen
buffer_load_dwordx4 v[156:159], v3, s[44:47], s52 offen
""")
    A("s_waitcnt lgkmcnt(0)")
    srd(A, 16, 30, WS_SIZE)
    A("""
s_cmp_ge_u32 s35, 2
s_cbranch_scc1 K1_VF
""")
    k1_mainloop(A, 0)
    A(f"""
s_lshl_b32 s48, s32, 2
s_add_u32 s48, s48, s34
s_and_b32 s49, s33, 3
s_lshl_b32 s49, s49, 3
s_mov_b32 s50, {Q_HS}
s_mov_b32 s51, {KV_HS}
s_mov_b32 s52, {f32hex(QSCALE)}
s_mov_b32 s53, 1.0
s_mul_i32 s54, s48, {Q_TS}
s_add_u32 s54, s54, {QIMG}
s_add_u32 s55, s48, 62
s_and_b32 s55, s55, 63
s_mul_i32 s55, s55, {KV_TS}
s_add_u32 s55, s55, {KVIMG}
s_cmp_eq_u32 s35, 0
s_cselect_b32 s56, s50, s51
s_cselect_b32 s58, s52, s53
s_cselect_b32 s59, s52, s53
s_cselect_b32 s57, s54, s55
s_mul_i32 s60, s49, s56
s_add_u32 s60, s60, s57
v_lshlrev_b32 v3, 4, v0
v_mul_lo_u32 v4, v2, s56
v_lshl_add_u32 v4, v1, 3, v4
v_add_u32 v4, 1024, v4
""")
    A("s_cmp_eq_u32 s35, 0")
    A("s_cbranch_scc0 K1_NOSCALE")
    for i in range(40):
        A(f"v_pk_mul_f32 {vr(ACC+2*i,2)}, {vr(ACC+2*i,2)}, s[58:59]")
    A.label("K1_NOSCALE")
    PK = 96
    for i in range(40):
        A(f"v_cvt_pk_bf16_f32 v{PK+i}, v{ACC+2*i}, v{ACC+2*i+1}")
    A("s_mov_b32 s61, s60")
    for hd in range(8):
        A(f"buffer_store_dwordx4 {vr(PK+4*hd,4)}, v3, s[16:19], s61 offen")
        A("s_add_u32 s61, s61, s56")
    A("s_mov_b32 s61, s60")
    A("s_lshl_b32 s62, s56, 1")
    for i in range(4):
        A(f"buffer_store_dwordx2 {vr(PK+32+2*i,2)}, v4, s[16:19], s61 offen")
        A("s_add_u32 s61, s61, s62")
    A("s_cmp_eq_u32 s35, 0")
    A("s_cbranch_scc1 K1_END")
    for j in range(4):
        for hd in range(8):
            src = PK + 4 * hd + j
            c = "0" if j == 0 else f"v{16+hd}"
            A(f"v_dot2_f32_bf16 v{16+hd}, v{src}, v{src}, {c}")
    for j in range(2):
        for i in range(4):
            src = PK + 32 + 2 * i + j
            c = "0" if j == 0 else f"v{24+i}"
            A(f"v_dot2_f32_bf16 v{24+i}, v{src}, v{src}, {c}")
    A("s_nop 4")
    for i in range(4):
        A(f"v_permlane32_swap_b32 v{16+2*i}, v{17+2*i}")
    A("s_nop 1")
    for i in range(4):
        A(f"v_add_f32 v{16+2*i}, v{16+2*i}, v{17+2*i}")
    for i in range(4):
        A(f"v_add_f32 v{24+i}, v{24+i}, v{16+2*i}")
    for ror in (1, 2, 4, 8):
        A("s_nop 1")
        for i in range(4):
            A(f"v_max_f32_dpp v{24+i}, v{24+i}, v{24+i} row_ror:{ror} row_mask:0xf bank_mask:0xf")
    A("s_nop 1")
    for i in range(4):
        A(f"v_max_f32_dpp v{24+i}, v{24+i}, v{24+i} row_bcast:15 row_mask:0xa bank_mask:0xf")
    A(f"""
s_lshl_b32 s61, s49, 8
s_lshl_b32 s62, s48, 2
s_add_u32 s61, s61, s62
s_add_u32 s61, s61, {KMAX}
v_lshlrev_b32 v5, 8, v2
v_cmp_eq_u32 vcc, 31, v1
s_and_saveexec_b64 s[64:65], vcc
""")
    for i in range(4):
        A(f"buffer_store_dword v{24+i}, v5, s[16:19], s61 offen offset:{512*i}")
    A("s_branch K1_END")

    A.label("K1_VF")
    k1_mainloop(A, 1)
    A("s_cmp_eq_u32 s35, 3")
    A("s_cbranch_scc1 K1_F")
    PK = 96
    for i in range(40):
        A(f"v_cvt_pk_bf16_f32 v{PK+i}, v{ACC+2*i}, v{ACC+2*i+1}")
    A(f"""
s_lshl_b32 s48, s32, 2
s_add_u32 s48, s48, s34
s_and_b32 s49, s33, 3
s_mul_i32 s49, s49, {8*KV_HS}
s_mul_i32 s50, s48, {KV_TS}
s_add_u32 s60, s49, s50
s_add_u32 s60, s60, {KVIMG + 1280}
s_mov_b32 s51, {KV_HS}
v_mul_u32_u24 v3, 336, v2
""")
    for b in range(5):
        A(f"v_add_u32 v4, {32*b}, v1")
        A("v_mul_u32_u24 v5, 3277, v4")
        A("v_lshrrev_b32 v5, 16, v5")
        A("v_mul_u32_u24 v6, 20, v5")
        A("v_sub_u32 v6, v4, v6")
        A("v_mul_lo_u32 v5, v5, s51")
        A("v_lshl_add_u32 v6, v6, 4, v3")
        A(f"v_add_u32 v{8+b}, v5, v6")
    for b in range(5):
        A(f"buffer_store_dwordx4 {vr(PK+8*b,4)}, v{8+b}, s[16:19], s60 offen")
        A(f"buffer_store_dwordx4 {vr(PK+8*b+4,4)}, v{8+b}, s[16:19], s60 offen offset:672")
    A("""
v_lshrrev_b32 v4, 2, v0
v_mul_lo_u32 v4, v4, s51
v_and_b32 v5, 3, v0
v_mul_u32_u24 v5, 336, v5
v_add_u32 v4, v4, v5
v_mov_b32 v16, 0x3f803f80
v_mov_b32 v17, 0x3f803f80
v_mov_b32 v18, 0x3f803f80
v_mov_b32 v19, 0x3f803f80
v_cmp_gt_u32 vcc, 32, v0
s_and_saveexec_b64 s[64:65], vcc
buffer_store_dwordx4 v[16:19], v4, s[16:19], s60 offen offset:320
s_branch K1_END
""")
    A.label("K1_F")
    A(f"""
s_lshl_b32 s48, s32, 2
s_add_u32 s48, s48, s34
s_mov_b32 s50, {FAC}
s_mov_b32 s51, {FAS}
s_mov_b32 s52, 1.0
s_mov_b32 s53, -1.0
s_cmp_lt_u32 s33, 14
s_cselect_b32 s54, s50, s51
s_cselect_b32 s55, s52, s53
s_and_b32 s49, s33, 1
s_mul_i32 s49, s49, 5120
s_add_u32 s54, s54, s49
s_mul_i32 s60, s48, {FA_KS}
s_add_u32 s60, s60, s54
v_lshlrev_b32 v3, 4, v0
s_cmp_lg_u32 s48, 0
s_cbranch_scc1 K1_F_NOSPECIAL
s_add_u32 s61, s54, {64*FA_KS}
v_cmp_gt_u32 vcc, 32, v0
v_mov_b32 v5, 0
v_mov_b32 v6, 0
v_mov_b32 v7, 0
""")
    for b in range(5):
        r8 = ACC + 16 * b + 8
        A(f"v_cndmask_b32 v8, 0, v{r8}, vcc")
        A(f"v_cvt_pk_bf16_f32 v4, v8, 0")
        A(f"v_cndmask_b32 v{r8}, v{r8}, v5, vcc")
        A(f"buffer_store_dwordx4 v[4:7], v3, s[16:19], s61 offen offset:{0}")
        A("s_add_u32 s61, s61, 1024")
        A("s_nop 1")
    A.label("K1_F_NOSPECIAL")
    for b in range(5):
        for r in range(8):
            a = ACC + 16 * b + r
            A(f"v_fma_f32 v{a}, v{a+8}, s55, v{a}")
    for b in range(5):
        for i in range(4):
            a = ACC + 16 * b + 2 * i
            A(f"v_cvt_pk_bf16_f32 v{PK+4*b+i}, v{a}, v{a+1}")
    for b in range(4):
        A(f"buffer_store_dwordx4 {vr(PK+4*b,4)}, v3, s[16:19], s60 offen offset:{1024*b}")
    A("s_add_u32 s60, s60, 4096")
    A(f"buffer_store_dwordx4 {vr(PK+16,4)}, v3, s[16:19], s60 offen")
    A("s_branch K1_END")

    A.label("K1_END")
    prof_end(A, 0)
    A.label("K1_EXIT")
    A("s_endpgm")
```

```python
from common import *

SA, SB, PA, PB, OA, OB = 16, 32, 48, 56, 64, 80
QA1, QB1, QA2, QB2 = 96, 100, 104, 106
K1F, K2F, V0, V1 = 108, 112, 116, 120
KA1, KA2, VA = 9, 10, 11
DV, PW, PRD, PV_, PCK = 12, 124, 125, 126, 127
K23_VGPR = 168
SLOT = 21504
CHUNK = 8 * KV_TS
PROG = 3 * SLOT
XR = PROG + 1024
WOTL = XR - 4096
K23_LDS = 163840
SC = "sc1"
LOCAL = os.environ.get("K23_LOCAL", "0") == "1"
OSC = os.environ.get("K23_OSC", "sc1")
LSC = os.environ.get("K23_LSC", "sc1")
LPROF = os.environ.get("LPROF", "0") == "1"
DIAG = os.environ.get("DIAG", "")
P3 = os.environ.get("P3PROF", "0") == "1"
PRIO = os.environ.get("K23_PRIO", "1") == "1"
PSLEEP = int(os.environ.get("K23_PSLEEP", "4"))
assert WOTL + 100 * 1024 == K23_LDS


def softmax_groups(Sx, Px):
    gs = []
    for g in range(4):
        l = [f"v_exp_f32 v{Sx+4*g+i}, v{Sx+4*g+i}" for i in range(4)]
        l += [f"v_cvt_pk_bf16_f32 v{Px+2*g+i}, v{Sx+4*g+2*i}, v{Sx+4*g+2*i+1}" for i in range(2)]
        gs.append(l)
    return gs


def qk(Sx, Q1, Q2):
    return [f"v_mfma_f32_32x32x8_bf16 {vr(Sx,16)}, {vr(K2F,2)}, {vr(Q2,2)}, 0",
            f"v_mfma_f32_32x32x16_bf16 {vr(Sx,16)}, {vr(K1F,4)}, {vr(Q1,4)}, {vr(Sx,16)}"]


def pv(Ox, Px):
    return [f"v_mfma_f32_32x32x16_bf16 {vr(Ox,16)}, {vr(V0,4)}, {vr(Px,4)}, {vr(Ox,16)}",
            f"v_mfma_f32_32x32x16_bf16 {vr(Ox,16)}, {vr(V1,4)}, {vr(Px+4,4)}, {vr(Ox,16)}"]


def poll(A, tag, vaddr, vtmp, sc):
    A(f"""
s_mov_b32 s{sc}, 0
{tag}:
buffer_load_dword v{vtmp}, v{vaddr}, s[8:11], 0 offen {SC}
s_add_u32 s{sc}, s{sc}, 1
s_waitcnt vmcnt(0)
v_cmp_eq_u32 vcc, 1, v{vtmp}
s_cmp_gt_u32 s{sc}, 0x40000
s_cbranch_scc1 {tag}_X
s_cmp_eq_u64 vcc, exec
s_cbranch_scc0 {tag}
{tag}_X:
""")


YR, GL = 152, 164


def y_loads(A):
    A(f"""
v_and_b32 v128, 15, v0
v_lshrrev_b32 v129, 4, v0
s_lshl_b32 s57, s20, 6
s_lshl_b32 s58, s23, 4
s_add_u32 s57, s57, s58
v_add_u32 v130, s57, v128
v_sub_u32 v131, 2048, v130
v_cmp_lt_u32 vcc, 1024, v130
s_mul_i32 s58, s21, 80
s_mul_i32 s59, s24, 48
s_add_u32 s58, s58, s59
v_lshl_add_u32 v132, v129, 2, s58
v_cndmask_b32 v131, v130, v131, vcc
s_movk_i32 s59, {Y_PITCH}
v_mul_u32_u24 v131, s59, v131
v_sub_u32 v133, {640-3-32}, v132
s_mov_b32 s60, {YM}
s_mov_b32 s61, {YP}
s_cmp_ge_u32 s21, 4
s_cselect_b32 s62, s61, s60
s_cselect_b32 s63, s60, s61
s_cselect_b64 s[64:65], -1, 0
v_mov_b32 v134, s62
v_mov_b32 v135, s63
v_cndmask_b32 v134, v134, v135, vcc
v_cndmask_b32 v133, v132, v133, s[64:65]
v_lshl_add_u32 v131, v133, 2, v131
v_add_u32 v131, v131, v134
v_lshlrev_b32 v133, 2, v130
s_mov_b32 s66, {GATE}
buffer_load_dword v{GL}, v133, s[8:11], s66 offen
""")
    for j in range(3):
        A(f"buffer_load_dwordx4 {vr(YR+4*j,4)}, v131, s[8:11], 0 offen offset:{64*j} {SC}")


def gen_k23(A):
    A(khead("k23_kernel"))
    A("""
s_cmp_ge_u32 s2, 256
s_cbranch_scc1 K2_EXIT
""")
    prof_begin(A)
    A(f"""
s_load_dwordx2 s[4:5], s[0:1], {KA_WS}
s_load_dwordx2 s[6:7], s[0:1], {KA_OUT}
s_load_dwordx4 s[52:55], s[0:1], {KA_SRE}
v_lshrrev_b32 v1, 6, v0
v_and_b32 v0, 63, v0
s_and_b32 s18, s2, 7
s_lshr_b32 s19, s2, 3
v_readfirstlane_b32 s22, v1
s_lshl_b32 s20, s18, 2
s_and_b32 s21, s19, 3
s_add_u32 s20, s20, s21
s_lshr_b32 s21, s2, 5
s_mov_b32 s16, {"s19" if LOCAL else "s20"}
s_mov_b32 s17, {"s18" if LOCAL else "s21"}
s_mul_i32 s27, s16, {KV_HS}
s_add_u32 s27, s27, {KVIMG}
v_and_b32 v1, 31, v0
v_lshrrev_b32 v2, 5, v0
v_lshlrev_b32 v3, 4, v0
s_mov_b32 s15, 0x00020000
s_mov_b32 s10, {WS_SIZE}
s_mov_b32 s11, 0x00020000
s_cmp_ge_u32 s22, 8
s_cbranch_scc1 K2_AUX
""")
    A(f"""
s_and_b32 s23, s22, 3
s_lshr_b32 s24, s22, 2
s_lshl_b32 s25, s17, 3
s_lshl_b32 s26, s23, 1
s_add_u32 s25, s25, s26
v_lshlrev_b32 v4, 3, v1
v_lshlrev_b32 v5, 2, v0
s_mul_i32 s28, s16, {Q_HS}
s_mul_i32 s29, s25, {Q_TS}
s_add_u32 s28, s28, s29
s_add_u32 s28, s28, {QIMG}
s_add_u32 s29, s24, 62
s_mul_i32 s29, s29, {KV_TS}
s_add_u32 s29, s29, s27
s_lshl_b32 s30, s16, 8
s_add_u32 s30, s30, {KMAX}
s_waitcnt lgkmcnt(0)
s_mov_b32 s8, s4
s_and_b32 s9, s5, 0xffff
buffer_load_dwordx4 {vr(QA1,4)}, v3, s[8:11], s28 offen
buffer_load_dwordx2 {vr(QA2,2)}, v4, s[8:11], s28 offen offset:1024
buffer_load_dword v13, v5, s[8:11], s30 offen
buffer_load_dwordx4 {vr(QB1,4)}, v3, s[8:11], s28 offen offset:1280
buffer_load_dwordx2 {vr(QB2,2)}, v4, s[8:11], s28 offen offset:2304
buffer_load_dwordx4 {vr(K1F,4)}, v3, s[8:11], s29 offen
buffer_load_dwordx2 {vr(K2F,2)}, v4, s[8:11], s29 offen offset:1024
s_mul_i32 s32, s24, {KV_TS}
v_add_u32 v{KA1}, s32, v3
v_add_u32 v14, 1024, v4
v_mov_b32 v15, {1280+320}
v_cmp_gt_u32 s[50:51], 32, v0
v_mul_u32_u24 v16, 336, v2
v_lshl_add_u32 v16, v1, 4, v16
v_cndmask_b32 v14, v15, v14, s[50:51]
v_add_u32 v{KA2}, s32, v14
v_add_u32 v16, 1280, v16
v_add_u32 v{VA}, s32, v16
s_mov_b32 s48, 0x001fffff
s_mov_b32 s49, 0x001fffff
v_mov_b32 v{DV}, {PROG + 32}
s_lshl_b32 s33, s22, 2
s_add_u32 s33, s33, {PROG}
v_mov_b32 v{PW}, s33
v_and_b32 v{PRD}, 7, v0
v_lshlrev_b32 v{PRD}, 2, v{PRD}
v_add_u32 v{PRD}, {PROG}, v{PRD}
v_mov_b32 v{PV_}, 0
ds_write_b32 v{PW}, v{PV_}
""")
    for i in range(32):
        A(f"v_mov_b32 v{OA+i}, 0")
    for i in range(8):
        A(f"v_mov_b32 v{PB+i}, 0")
        A(f"v_mov_b32 v{V0+i}, 0")
    stamp(A, 1)
    A("s_waitcnt vmcnt(0)")
    A("v_mov_b32 v15, 0x3f803f80")
    for r in (QA2, QA2 + 1, QB2, QB2 + 1):
        A(f"v_cndmask_b32 v{r}, 0, v{r}, s[50:51]")
    for r in (K2F, K2F + 1):
        A(f"v_cndmask_b32 v{r}, v15, v{r}, s[50:51]")
    dpp = [f"v_max_f32_dpp v13, v13, v13 row_ror:{ror} row_mask:0xf bank_mask:0xf" for ror in (1, 2, 4, 8)]
    dpp += ["v_max_f32_dpp v13, v13, v13 row_bcast:15 row_mask:0xa bank_mask:0xf",
            "v_max_f32_dpp v13, v13, v13 row_bcast:31 row_mask:0xc bank_mask:0xf"]
    for j, (ra, rb) in enumerate([(QA1 + i, QB1 + i) for i in range(4)] + [(QA2 + i, QB2 + i) for i in range(2)]):
        ca = "0" if j == 0 else "v16"
        cb = "0" if j == 0 else "v18"
        A(dpp[j])
        A(f"v_dot2_f32_bf16 v16, v{ra}, v{ra}, {ca}")
        A(f"v_dot2_f32_bf16 v18, v{rb}, v{rb}, {cb}")
    A("""
v_readlane_b32 s33, v13, 63
s_nop 2
v_mov_b32 v17, v16
v_mov_b32 v19, v18
s_nop 1
v_permlane32_swap_b32 v16, v17
v_permlane32_swap_b32 v18, v19
s_nop 1
v_add_f32 v16, v16, v17
v_add_f32 v18, v18, v19
v_mul_f32 v16, s33, v16
v_mul_f32 v18, s33, v18
v_sqrt_f32 v16, v16
v_sqrt_f32 v18, v18
s_nop 0
v_mul_f32 v16, -1.0, v16
v_mul_f32 v18, -1.0, v18
""")
    for (m, Q2) in ((16, QA2), (18, QB2)):
        A(f"""
v_and_b32 v20, 0xffff0000, v{m}
v_sub_f32 v21, v{m}, v20
v_and_b32 v22, 0xffff0000, v21
v_sub_f32 v23, v21, v22
v_lshrrev_b32 v20, 16, v20
v_or_b32 v20, v20, v22
v_lshrrev_b32 v23, 16, v23
v_cndmask_b32 v{Q2}, v20, v{Q2}, s[50:51]
v_cndmask_b32 v{Q2+1}, v23, v{Q2+1}, s[50:51]
""")
    A("s_nop 1")
    for m in qk(SA, QA1, QA2):
        A(m)
    A("s_mov_b32 s42, 0")
    A("s_mov_b32 s44, 0")
    A("s_mov_b32 s68, 0")

    def tile(t, extra_k=None, mid_a=None, end_b=None, nl=0):
        off = t * 2 * KV_TS
        if PRIO:
            A(f"s_setprio {3-t}")
        g = softmax_groups(SA, PA)
        m = qk(SB, QB1, QB2) + pv(OB, PB)
        A(m[0])
        A("\n".join(g[0]))
        A(m[1])
        A(f"ds_read_b128 {vr(K1F,4)}, v{KA1} offset:{off}")
        A(f"ds_read_b64 {vr(K2F,2)}, v{KA2} offset:{off}")
        A("\n".join(g[1]))
        A(m[2])
        A("\n".join(g[2]))
        A(m[3])
        A("s_mov_b64 exec, s[48:49]")
        A(f"ds_read_b128 {vr(V0,4)}, v{VA} offset:{off}")
        A(f"ds_read_b128 {vr(V1,4)}, v{VA} offset:{off+672}")
        A("s_mov_b64 exec, -1")
        A("\n".join(g[3]))
        if mid_a:
            mid_a()
        g = softmax_groups(SB, PB)
        m = qk(SA, QA1, QA2) + pv(OA, PA)
        A(f"s_waitcnt lgkmcnt({2+nl})")
        A(m[0])
        A("\n".join(g[0]))
        A(m[1])
        A("\n".join(g[1]))
        A(f"s_waitcnt lgkmcnt({nl})")
        A(m[2])
        if extra_k:
            extra_k()
        A("\n".join(g[2]))
        A(m[3])
        if end_b:
            end_b()
        A("\n".join(g[3]))

    def sig_enter():
        A(f"v_add_u32 v{PV_}, 1, v{PV_}")
        A(f"ds_write_b32 v{PW}, v{PV_}")

    def ctl():
        A(f"""
s_add_u32 s42, s42, 1
s_add_u32 s44, s44, 1
s_cmp_eq_u32 s44, 3
s_cselect_b32 s44, 0, s44
s_mov_b32 s43, {SLOT}
s_cselect_b32 s43, {(-2*SLOT) & 0xffffffff}, s43
s_cmp_eq_u32 s42, 8
s_cbranch_scc1 K2_YREQ
K2_YDONE:
""")

    def chk_read():
        A(f"ds_read_b32 v{PCK}, v{DV}")

    def upd():
        A(f"v_add_u32 v{KA1}, s43, v{KA1}")
        A(f"v_add_u32 v{KA2}, s43, v{KA2}")
        A(f"v_add_u32 v{VA}, s43, v{VA}")

    A("s_waitcnt lgkmcnt(0)")
    A("s_barrier")
    stamp(A, 2)
    A("s_nop 7")
    A.label("K2_LOOP")
    if PROF and LPROF:
        for it, sl in ((1, 1), (2, 3), (4, 4), (6, 5), (7, 6)):
            A(f"s_cmp_eq_u32 s42, {it}")
            A(f"s_cbranch_scc0 K2_NS{it}")
            stamp(A, sl)
            A.label(f"K2_NS{it}")
    tile(0, mid_a=sig_enter, nl=1)
    tile(1, mid_a=ctl)
    tile(2)
    tile(3, extra_k=chk_read, end_b=upd)
    A(f"""
s_waitcnt lgkmcnt(0)
v_cmp_gt_u32 vcc, v{PCK}, v{PV_}
s_cmp_lt_u32 s42, 8
s_cbranch_vccz K2_SPIN
s_cbranch_scc1 K2_LOOP
s_branch K2_LOOPEND
K2_SPIN:
s_sleep 2
ds_read_b32 v{PCK}, v{DV}
s_waitcnt lgkmcnt(0)
v_cmp_gt_u32 vcc, v{PCK}, v{PV_}
s_nop 1
s_cbranch_vccz K2_SPIN
s_cbranch_scc1 K2_LOOP
s_branch K2_LOOPEND
K2_YREQ:
ds_read_b32 v129, v{DV} offset:4
s_waitcnt lgkmcnt(0)
v_cmp_eq_u32 vcc, 3, v129
s_nop 1
s_cbranch_vccz K2_YDONE
s_mov_b32 s68, 1
""")
    y_loads(A)
    A("s_branch K2_YDONE")
    A.label("K2_LOOPEND")
    if not LPROF: stamp(A, 3)
    for m in pv(OB, PB):
        A(m)
    A(f"""
s_mul_i32 s34, s23, 3072
s_mul_i32 s47, s24, {2*SLOT}
s_add_u32 s56, s34, s47
v_add_u32 v13, s56, v3
s_sub_u32 s47, {2*SLOT}, s47
s_add_u32 s56, s34, s47
v_add_u32 v14, s56, v3
s_add_u32 s46, s25, s24
s_mul_i32 s35, s46, 40960
s_mul_i32 s36, s16, 1280
s_add_u32 s36, s36, s35
s_add_u32 s36, s36, {OIMG}
s_lshl_b32 s46, s46, 7
s_lshl_b32 s47, s16, 2
s_add_u32 s46, s46, s47
s_add_u32 s46, s46, {FLAGO}
s_cmp_eq_u32 s24, 0
s_cbranch_scc0 K2_X1
""")
    for q in range(3):
        A(f"ds_write_b128 v13, {vr(OB+4*q,4)} offset:{1024*q}")
    A("s_branch K2_X2")
    A.label("K2_X1")
    for q in range(3):
        A(f"ds_write_b128 v13, {vr(OA+4*q,4)} offset:{1024*q}")
    A("s_nop 4")
    for i in range(12):
        A(f"v_mov_b32 v{OA+i}, v{OB+i}")
    A.label("K2_X2")
    A("s_waitcnt lgkmcnt(0)")
    A("s_barrier")
    if not LPROF: stamp(A, 4)
    for q in range(3):
        A(f"ds_read_b128 {vr(16+4*q,4)}, v14 offset:{1024*q}")
    A("s_waitcnt lgkmcnt(0)")
    for i in (8, 0, 1, 2, 3, 4, 5, 6, 7, 9, 10, 11):
        A(f"v_add_f32 v{OA+i}, v{OA+i}, v{16+i}")
        if i == 8:
            A(f"v_mov_b32 v28, v{OA+8}")
            A(f"v_mov_b32 v29, v{OA+8}")
        if i == 1:
            A("v_permlane32_swap_b32 v28, v29")
        if i == 4:
            A("v_rcp_f32 v29, v29")
    for i in range(12):
        A(f"v_mul_f32 v{OA+i}, v{OA+i}, v29")
    for i in range(6):
        A(f"v_cvt_pk_bf16_f32 v{20+i}, v{OA+2*i}, v{OA+2*i+1}")
    A(f"""
buffer_store_dwordx4 v[20:23], v3, s[8:11], s36 offen {OSC}
s_mov_b64 exec, s[50:51]
buffer_store_dwordx2 v[24:25], v4, s[8:11], s36 offen offset:1024 {OSC}
s_mov_b64 exec, -1
s_nop 0
""")
    ACC, OF, WF = 32, 52, 92
    A(f"""
s_mul_i32 s56, s24, 10240
v_add_u32 v4, s56, v3
v_add_u32 v5, {WOTL}, v4
v_add_u32 v6, {WOTL + 61440}, v4
""")

    def wo_read(i, slot, skip0=False):
        for cb in range(5):
            if skip0 and cb == 0:
                continue
            a, off = ("v5", cb * 20480) if cb < 3 else ("v6", (cb - 3) * 20480)
            A(f"ds_read_b128 {vr(WF+20*slot+4*cb,4)}, {a} offset:{off + i*1024}")
    ORDER = [4, 5, 6, 7, 8, 9, 0, 1, 2, 3]
    for n in range(3):
        wo_read(ORDER[n], n)
    A(f"""
v_and_b32 v9, 15, v0
v_lshrrev_b32 v10, 4, v0
s_lshl_b32 s57, s20, 6
s_lshl_b32 s58, s23, 4
s_add_u32 s57, s57, s58
v_add_u32 v11, s57, v9
s_mul_i32 s58, s21, 80
s_mul_i32 s59, s24, 48
s_add_u32 s58, s58, s59
v_lshl_add_u32 v13, v10, 2, s58
s_movk_i32 s59, 1280
v_mul_u32_u24 v11, s59, v11
v_lshl_add_u32 v11, v13, 1, v11
s_mov_b32 s12, s6
s_and_b32 s13, s7, 0xffff
s_mov_b32 s14, {S*D*2}
s_lshl_b32 s57, s20, 1
s_lshr_b32 s58, s23, 1
s_add_u32 s57, s57, s58
s_mul_i32 s51, s57, 40960
s_add_u32 s51, s51, {OIMG}
s_and_b32 s58, s23, 1
s_lshl_b32 s58, s58, 4
v_add_u32 v9, s58, v9
v_lshrrev_b32 v15, 1, v10
v_mul_u32_u24 v15, 1280, v15
v_and_b32 v16, 1, v10
v_lshl_add_u32 v15, v16, 9, v15
v_lshl_add_u32 v7, v9, 4, v15
v_mul_u32_u24 v8, 2560, v10
v_lshl_add_u32 v8, v9, 3, v8
v_add_u32 v8, 1024, v8
s_mul_i32 s58, s24, 25600
s_add_u32 s52, s51, s58
s_mul_i32 s67, s21, 102400
s_add_u32 s67, s67, {WOT}
v_mov_b32 v17, 0
v_mov_b32 v18, 1
s_waitcnt vmcnt(0)
s_mov_b64 exec, 1
buffer_store_dword v18, v17, s[8:11], s46 offen {OSC}
s_mov_b64 exec, -1
""")
    if not LPROF: stamp(A, 5)
    A("s_barrier")
    if not LPROF: stamp(A, 6)
    NLD = []
    A("s_cmp_eq_u32 s24, 0")
    A("s_cbranch_scc0 K3_LD1")
    for n, i in enumerate(ORDER):
        A(f"s_add_u32 s53, s52, {2560*i}")
        A(f"buffer_load_dwordx4 {vr(OF+4*n,4)}, v7, s[8:11], s53 offen {LSC}")
        if 6 <= i <= 9:
            A(f"buffer_load_dwordx4 {vr(16+4*(i-6),4)}, v3, s[8:11], s67 offen offset:{1024*(i-6)}")
    A("s_branch K3_HAVE0")
    A.label("K3_LD1")
    for n, i in enumerate(ORDER):
        if i < 6:
            A(f"s_add_u32 s53, s52, {2560*i}")
            A(f"buffer_load_dwordx4 {vr(OF+4*n,4)}, v7, s[8:11], s53 offen {LSC}")
            NLD.append(1)
        else:
            A(f"s_add_u32 s53, s51, {10240*(i-6)}")
            A(f"buffer_load_dwordx2 {vr(OF+4*n,2)}, v8, s[8:11], s53 offen {LSC}")
            A(f"buffer_load_dwordx2 {vr(OF+4*n+2,2)}, v8, s[8:11], s53 offen offset:1280 {LSC}")
            NLD.append(2)
    for k in range(4):
        A(f"ds_read_b128 {vr(16+4*k,4)}, v5 offset:{k*1024}")
    A.label("K3_HAVE0")
    for n, i in enumerate(ORDER):
        slot = n % 3
        if n == 0:
            A(f"s_waitcnt vmcnt({sum(NLD[n+1:])}) lgkmcnt(0)")
        else:
            younger = sum((4 if ORDER[k] < 4 else 5) for k in (n + 1, n + 2) if 3 <= k < 10)
            A(f"s_waitcnt vmcnt({sum(NLD[n+1:])}) lgkmcnt({younger})")
        for cb in range(5):
            acc = vr(ACC + 4 * cb, 4)
            c = "0" if n == 0 else acc
            w = vr(16 + 4 * i, 4) if (i < 4 and cb == 0) else vr(WF + 20 * slot + 4 * cb, 4)
            A(f"v_mfma_f32_16x16x32_bf16 {acc}, {w}, {vr(OF+4*n,4)}, {c}")
        if n + 3 < 10:
            wo_read(ORDER[n + 3], slot, skip0=(ORDER[n + 3] < 4))
    if P3:
        stamp(A, 1)
    A("s_cmp_eq_u32 s68, 1")
    A("s_cbranch_scc1 K2_HAVEY")
    y_loads(A)
    A("s_waitcnt vmcnt(3)")
    A.label("K2_HAVEY")
    A(f"""
s_mul_i32 s56, s22, 3072
s_add_u32 s56, s56, {SLOT - 8192}
v_add_u32 v9, s56, v3
s_xor_b32 s57, s22, 4
s_mul_i32 s57, s57, 3072
s_add_u32 s57, s57, {SLOT - 8192}
v_add_u32 v10, s57, v3
s_nop 1
s_cmp_eq_u32 s24, 0
s_cbranch_scc0 K3_X1
""")
    for j in range(2):
        A(f"ds_write_b128 v9, {vr(ACC+12+4*j,4)} offset:{1024*j}")
    A("s_branch K3_X2")
    A.label("K3_X1")
    for j in range(3):
        A(f"ds_write_b128 v9, {vr(ACC+4*j,4)} offset:{1024*j}")
    A("s_nop 4")
    for i in range(8):
        A(f"v_mov_b32 v{ACC+i}, v{ACC+12+i}")
    A.label("K3_X2")
    A(f"""
v_mul_f32 v{GL}, 0xbfb8aa3b, v{GL}
v_exp_f32 v{GL}, v{GL}
s_nop 0
v_add_f32 v{GL}, 1.0, v{GL}
v_rcp_f32 v{GL}, v{GL}
s_nop 0
v_sub_f32 v{GL+1}, 1.0, v{GL}
""")
    A("s_waitcnt lgkmcnt(0)")
    A("s_barrier")
    if P3:
        stamp(A, 2)
    for j in range(3):
        A(f"ds_read_b128 {vr(52+4*j,4)}, v10 offset:{1024*j}")
    A("s_waitcnt lgkmcnt(0)")
    for i in range(12):
        A(f"v_add_f32 v{ACC+i}, v{ACC+i}, v{52+i}")
    for i in range(12):
        A(f"v_mul_f32 v{ACC+i}, v{ACC+i}, v{GL+1}")
    A("s_cmp_ge_u32 s21, 4")
    A("s_waitcnt vmcnt(0)")
    A("s_cbranch_scc1 K3_REV")
    for i in range(12):
        A(f"v_fmac_f32 v{ACC+i}, v{YR+i}, v{GL}")
    A("s_branch K3_ST")
    A.label("K3_REV")
    for i in range(12):
        A(f"v_fmac_f32 v{ACC+i}, v{YR+11-i}, v{GL}")
    A.label("K3_ST")
    for i in range(6):
        A(f"v_cvt_pk_bf16_f32 v{16+i}, v{ACC+2*i}, v{ACC+2*i+1}")
    A("""
buffer_store_dwordx2 v[16:17], v11, s[12:15], 0 offen
buffer_store_dwordx2 v[18:19], v11, s[12:15], 0 offen offset:32
s_cmp_eq_u32 s24, 0
s_cbranch_scc0 K3_DONE
buffer_store_dwordx2 v[20:21], v11, s[12:15], 0 offen offset:64
K3_DONE:
""")
    prof_end(A, 2)
    A("s_endpgm")

    A.label("K2_AUX")
    A(f"""
s_sub_u32 s22, s22, 8
s_mul_i32 s46, s22, 5120
v_add_u32 v6, s46, v3
v_add_u32 v7, 4096, v6
s_mov_b32 m0, s46
s_waitcnt lgkmcnt(0)
s_mov_b32 s8, s4
s_and_b32 s9, s5, 0xffff
""")
    for q in range(4):
        A(f"buffer_load_dwordx4 v6, s[8:11], s27 offen offset:{1024*q} lds")
    A("s_add_u32 m0, m0, 4096")
    A("s_cmp_eq_u32 s22, 3")
    A(f"buffer_load_dwordx4 v7, s[8:11], s27 offen lds")
    A("s_cbranch_scc0 K2_A0")
    A(f"buffer_load_dwordx4 v7, s[8:11], s27 offen offset:1024 lds")
    A.label("K2_A0")
    A(f"""
s_mul_i32 s47, s21, 102400
s_add_u32 s47, s47, {WOT}
s_lshl_b32 s33, s22, 2
s_add_u32 s33, s33, {PROG + 32}
v_mov_b32 v144, s33
v_and_b32 v145, 3, v0
v_lshlrev_b32 v145, 2, v145
v_add_u32 v145, {PROG + 32}, v145
v_mov_b32 v146, 0
ds_write_b32 v144, v146
""")

    def wot_dma(f0, n):
        A(f"s_lshl_b32 s56, s22, 10")
        A(f"s_add_u32 s57, s56, s47")
        A(f"s_add_u32 s57, s57, {f0*1024}")
        A(f"s_add_u32 s58, s56, {WOTL + f0*1024}")
        for k in range(n):
            A("s_mov_b32 m0, s58")
            A("s_add_u32 s58, s58, 4096")
            A(f"buffer_load_dwordx4 v3, s[8:11], s57 offen lds")
            A("s_add_u32 s57, s57, 4096")
            if k >= 3:
                A("s_waitcnt vmcnt(3)")

    def aux_sync(val, tag):
        A(f"""
v_mov_b32 v146, {val}
ds_write_b32 v144, v146
{tag}:
ds_read_b32 v147, v145
s_waitcnt lgkmcnt(0)
v_cmp_le_u32 vcc, {val}, v147
s_nop 0
s_cmp_eq_u64 vcc, exec
s_cbranch_scc1 {tag}_X
s_sleep 4
s_branch {tag}
{tag}_X:
""")

    A("""
s_cmp_eq_u32 s22, 1
s_cbranch_scc1 K2_WOTW
s_cmp_ge_u32 s22, 2
s_cbranch_scc1 K2_FNW
""")
    A(f"""
v_and_b32 v145, 7, v0
v_lshlrev_b32 v145, 2, v145
v_add_u32 v145, {PROG}, v145
s_add_u32 s41, s27, {CHUNK}
s_mov_b32 s40, {SLOT}
s_mov_b32 s42, 1
s_waitcnt vmcnt(0) lgkmcnt(0)
s_barrier
K2_LDLOOP:
s_cmp_lt_u32 s42, 3
s_cbranch_scc1 K2_LDGO
s_sub_u32 s43, s42, 1
K2_LDSPIN:
ds_read_b32 v147, v145
s_waitcnt lgkmcnt(0)
v_cmp_le_u32 vcc, s43, v147
s_nop 0
s_cmp_eq_u64 vcc, exec
s_cbranch_scc1 K2_LDGO
s_sleep 2
s_branch K2_LDSPIN
K2_LDGO:
s_mov_b32 s44, s41
s_mov_b32 m0, s40
""")
    for q in range(21):
        if q and q % 4 == 0:
            A("s_add_u32 m0, m0, 4096")
            A("s_add_u32 s44, s44, 4096")
        elif q == 0:
            A("s_nop 0")
        A(f"buffer_load_dwordx4 v3, s[8:11], s44 offen offset:{1024*(q%4)} lds")
    A(f"""
s_add_u32 s41, s41, {CHUNK}
s_add_u32 s40, s40, {SLOT}
s_cmp_eq_u32 s40, {3*SLOT}
s_cselect_b32 s40, 0, s40
s_add_u32 s42, s42, 1
v_mov_b32 v146, s42
s_waitcnt vmcnt(0)
ds_write_b32 v144, v146
s_cmp_lt_u32 s42, 8
s_cbranch_scc1 K2_LDLOOP
K2_LDFIN:
ds_read_b32 v147, v145
s_waitcnt lgkmcnt(0)
v_cmp_le_u32 vcc, 8, v147
s_nop 0
s_cmp_eq_u64 vcc, exec
s_cbranch_scc1 K2_LDFIN_X
s_sleep 2
s_branch K2_LDFIN
K2_LDFIN_X:
v_mov_b32 v146, 9
ds_write_b32 v144, v146
s_lshl_b32 s34, s20, 8
s_add_u32 s34, s34, {FLAGO}
v_lshl_add_u32 v4, v0, 2, s34
s_mov_b32 s39, 0
s_waitcnt lgkmcnt(0)
s_barrier
K2_POLL:
s_sleep {PSLEEP}
buffer_load_dword v12, v4, s[8:11], 0 offen {SC}
s_add_u32 s39, s39, 1
s_waitcnt vmcnt(0)
v_cmp_eq_u32 vcc, 1, v12
s_cmp_gt_u32 s39, 0x20000
s_cbranch_scc1 K2_POLL_X
s_cmp_eq_u64 vcc, exec
s_cbranch_scc0 K2_POLL
K2_POLL_X:
s_barrier
s_branch K2_AUXEND
""")
    A.label("K2_WOTW")
    A(f"""
v_and_b32 v145, 1, v0
v_lshlrev_b32 v145, 2, v145
v_add_u32 v145, {PROG + 40}, v145
s_waitcnt vmcnt(0) lgkmcnt(0)
s_barrier
s_add_u32 s57, s47, {36*1024}
s_mov_b32 s58, {WOTL + 36*1024}
s_mov_b32 s59, 16
K2_WLOOP:
s_mov_b32 m0, s58
s_add_u32 s58, s58, 4096
""")
    for q in range(4):
        A(f"buffer_load_dwordx4 v3, s[8:11], s57 offen offset:{1024*q} lds")
    A(f"""
s_add_u32 s57, s57, 4096
s_sub_u32 s59, s59, 1
s_waitcnt vmcnt(4)
s_cmp_lg_u32 s59, 0
s_cbranch_scc1 K2_WLOOP
s_cmp_eq_u32 s58, {WOTL + 36*1024}
s_cbranch_scc1 K2_WDONE
K2_WSPIN:
ds_read_b32 v147, v145
s_waitcnt lgkmcnt(0)
v_cmp_le_u32 vcc, 2, v147
s_nop 0
s_cmp_eq_u64 vcc, exec
s_cbranch_scc1 K2_WLATE
s_sleep 8
s_branch K2_WSPIN
K2_WLATE:
s_add_u32 s57, s47, {4*1024}
s_mov_b32 s58, {WOTL + 4*1024}
s_mov_b32 s59, 8
s_branch K2_WLOOP
K2_WDONE:
s_lshl_b32 s35, s20, 1
s_sub_u32 s36, 62, s35
s_cmp_lt_u32 s20, 16
s_cselect_b32 s35, s35, s36
s_mul_i32 s36, s21, 80
s_sub_u32 s37, 561, s36
s_cmp_lt_u32 s21, 4
s_cselect_b32 s36, s36, s37
s_lshr_b32 s36, s36, 6
v_bfe_u32 v5, v0, 2, 2
v_min_u32 v5, 2, v5
v_bfe_u32 v9, v0, 4, 2
v_min_u32 v9, 2, v9
v_add_u32 v5, s36, v5
v_min_u32 v5, 5, v5
v_add_u32 v9, s35, v9
v_lshlrev_b32 v9, 7, v9
v_lshl_add_u32 v5, v5, 4, v9
v_and_b32 v9, 1, v0
v_lshl_add_u32 v5, v9, 2, v5
v_add_u32 v5, {FLAGY}, v5
s_mov_b32 s39, 0
s_mov_b32 s40, 0
v_mov_b32 v13, {PROG + 32}
K2_POLLY:
buffer_load_dword v12, v5, s[8:11], 0 offen {SC}
ds_read_b32 v14, v13
s_add_u32 s39, s39, 1
s_waitcnt vmcnt(0) lgkmcnt(0)
v_cmp_eq_u32 vcc, 1, v12
s_cmp_gt_u32 s39, 0x20000
s_cbranch_scc1 K2_POLLY_X
s_cmp_eq_u64 vcc, exec
s_cbranch_scc1 K2_POLLY_OK
v_cmp_le_u32 vcc, 9, v14
s_cmp_eq_u32 s40, 1
s_cbranch_scc1 K2_POLLY_S
s_cbranch_vccz K2_POLLY_S
s_mov_b32 s40, 1
s_barrier
s_branch K2_POLLY
K2_POLLY_S:
s_sleep 8
s_branch K2_POLLY
K2_POLLY_OK:
v_mov_b32 v146, 3
ds_write_b32 v144, v146
K2_POLLY_X:
s_waitcnt lgkmcnt(0)
""")
    stamp(A, 4)
    A("""
s_cmp_eq_u32 s40, 1
s_cbranch_scc1 K2_AUXEND
s_barrier
s_branch K2_AUXEND
""")

    A.label("K2_FNW")
    A("""
s_mul_i32 s25, s19, 43
s_lshr_b32 s25, s25, 8
s_mul_i32 s26, s25, 6
s_sub_u32 s26, s19, s26
s_lshl_b32 s23, s18, 2
s_add_u32 s25, s25, s23
s_cmp_lt_u32 s19, 24
s_cbranch_scc1 KF_JOB
s_mov_b32 s25, 32
s_mov_b32 s26, s18
s_cmp_gt_u32 s19, 24
s_cbranch_scc1 KF_NOJOB
s_cmp_ge_u32 s26, 6
s_cbranch_scc1 KF_NOJOB
KF_JOB:
""")
    ACC, CF, AF = 16, 48, 64
    A(f"""
s_sub_u32 s23, s22, 2
s_mov_b32 s30, {FAC}
s_mov_b32 s31, {FAS}
s_cmp_eq_u32 s23, 0
s_cselect_b32 s60, s52, s54
s_cselect_b32 s61, s53, s55
s_cselect_b32 s30, s30, s31
s_and_b32 s61, s61, 0xffff
s_mov_b32 s62, {S*S*2}
s_mov_b32 s63, 0x00020000
s_lshl_b32 s28, s25, 5
v_lshrrev_b32 v4, 3, v0
v_add_u32 v4, s28, v4
v_lshlrev_b32 v4, 12, v4
v_and_b32 v5, 7, v0
v_lshrrev_b32 v9, 4, v0
v_xor_b32 v5, v5, v9
v_lshl_add_u32 v8, v5, 4, v4
v_xor_b32 v9, 64, v8
v_add_u32 v9, 0x8000, v9
v_add_u32 v10, 0x10000, v8
v_add_u32 v11, 0x10000, v9
s_lshl_b32 s33, s23, 14
s_add_u32 s33, s33, {XR}
v_bfe_u32 v4, v1, 1, 3
v_lshlrev_b32 v5, 2, v2
v_lshl_add_u32 v128, v1, 7, s33
""")
    for u in range(4):
        A(f"v_add_u32 v129, {u}, v5")
        A("v_xor_b32 v129, v129, v4")
        A(f"v_lshl_add_u32 v{12+u}, v129, 4, v128")
    A(f"""
s_mov_b32 s29, 0
s_lshl_b32 s31, s26, 11
s_add_u32 s30, s30, s31
v_add_u32 v4, s28, v1
v_lshlrev_b32 v5, 12, v4
v_lshl_add_u32 v5, v2, 4, v5
v_add_u32 v128, s33, v3
v_and_b32 v131, 15, v0
v_lshrrev_b32 v148, 4, v0
s_lshl_b32 s34, s23, 4
v_add_u32 v148, s34, v148
v_lshrrev_b32 v149, 1, v131
v_lshlrev_b32 v149, 10, v149
v_and_b32 v150, 1, v131
v_lshl_add_u32 v150, v150, 5, v148
v_lshl_add_u32 v129, v150, 4, v149
v_add_u32 v129, {XR}, v129
v_add_u32 v148, s28, v148
s_movk_i32 s34, {Y_PITCH}
v_mul_u32_u24 v130, s34, v148
v_lshl_add_u32 v130, v131, 4, v130
s_lshl_b32 s35, s26, 8
s_add_u32 s36, s35, {YP}
s_add_u32 s35, s35, {YM}
s_mov_b32 s64, 0x00ff00ff
s_cmp_eq_u32 s26, 5
s_cselect_b32 s64, s64, -1
s_cselect_b32 s32, s23, 0
s_mov_b32 s65, s64
v_and_b32 v145, 1, v0
v_lshlrev_b32 v145, 2, v145
v_add_u32 v145, {PROG + 40}, v145
""")
    for i in range(32):
        A(f"v_mov_b32 v{ACC+i}, 0")
    A("s_waitcnt vmcnt(0) lgkmcnt(0)")
    A("s_barrier")
    A("s_cmp_eq_u32 s32, 1")
    A("s_cbranch_scc1 KF_NO65")

    def issue_c(buf):
        for q in range(4):
            A(f"s_add_u32 m0, s33, {buf*4096 + q*1024}")
            A("s_nop 0")
            A(f"buffer_load_dwordx4 v{8+q}, s[60:63], s29 offen lds")
        A("s_add_u32 s29, s29, 128")

    def issue_a(r):
        for u in range(4):
            reg = AF + 32 * (r & 1) + 8 * u
            A(f"buffer_load_dwordx4 {vr(reg,4)}, v3, s[8:11], s30 offen")
            A(f"buffer_load_dwordx4 {vr(reg+4,4)}, v3, s[8:11], s30 offen offset:1024")
            A(f"s_add_u32 s30, s30, {FA_KS}")

    issue_c(0); issue_c(1); issue_a(0); issue_c(2); issue_a(1); issue_c(3)
    A("s_mov_b32 s42, 0")
    stamp(A, 1)
    A.label("KF_LOOP")
    for r in range(4):
        A("s_waitcnt vmcnt(16)")
        for u in range(4):
            A(f"ds_read_b128 {vr(CF+4*u,4)}, v{12+u} offset:{r*4096}")
        for u in range(4):
            A(f"s_waitcnt lgkmcnt({3-u})")
            reg = AF + 32 * (r & 1) + 8 * u
            for b in range(2):
                acc = vr(ACC + 16 * b, 16)
                A(f"v_mfma_f32_32x32x16_bf16 {acc}, {vr(reg+4*b,4)}, {vr(CF+4*u,4)}, {acc}")
                A(f"buffer_load_dwordx4 {vr(reg+4*b,4)}, v3, s[8:11], s30 offen offset:{1024*b}")
            A(f"s_add_u32 s30, s30, {FA_KS}")
        issue_c(r)
    A("""
s_add_u32 s42, s42, 1
s_cmp_lt_u32 s42, 4
s_cbranch_scc1 KF_LOOP
""")
    stamp(A, 2)
    A(f"""
s_cmp_eq_u32 s23, 0
s_cbranch_scc0 KF_NO65
buffer_load_dwordx4 v[132:135], v5, s[60:63], 0 offen offset:2048
s_waitcnt vmcnt(0)
v_mfma_f32_32x32x16_bf16 {vr(ACC,16)}, {vr(AF,4)}, v[132:135], {vr(ACC,16)}
v_mfma_f32_32x32x16_bf16 {vr(ACC+16,16)}, {vr(AF+4,4)}, v[132:135], {vr(ACC+16,16)}
KF_NO65:
s_setprio 1
s_waitcnt vmcnt(0)
s_nop 15
""")
    for q in range(8):
        A(f"ds_write_b128 v128, {vr(ACC+4*q,4)} offset:{1024*q}")
    A("s_waitcnt lgkmcnt(0)")
    aux_sync(1, "KF_S1")
    for w in range(2):
        for j in range(4):
            A(f"ds_read_b128 {vr(48+16*w+4*j,4)}, v129 offset:{16384*w + 64*j}")
    A("s_waitcnt lgkmcnt(0)")
    A("v_mov_b32 v146, 2")
    A("ds_write_b32 v144, v146")
    for i in range(16):
        A(f"v_sub_f32 v{80+i}, v{48+i}, v{64+i}")
        A(f"v_add_f32 v{96+i}, v{48+i}, v{64+i}")
    A("s_mov_b64 exec, s[64:65]")
    for j in range(4):
        A(f"buffer_store_dwordx4 {vr(80+4*j,4)}, v130, s[8:11], s35 offen {SC}")
        A(f"buffer_store_dwordx4 {vr(96+4*j,4)}, v130, s[8:11], s36 offen {SC}")
        A(f"s_add_u32 s35, s35, {4*Y_PITCH}")
        A(f"s_add_u32 s36, s36, {4*Y_PITCH}")
    A(f"""
s_lshl_b32 s34, s25, 7
s_lshl_b32 s35, s26, 4
s_add_u32 s34, s34, s35
s_lshl_b32 s35, s23, 2
s_add_u32 s34, s34, s35
s_add_u32 s34, s34, {FLAGY}
s_mov_b64 exec, 1
v_mov_b32 v4, 0
v_mov_b32 v5, 1
s_waitcnt vmcnt(0) lgkmcnt(0)
buffer_store_dword v5, v4, s[8:11], s34 offen {SC}
s_mov_b64 exec, -1
""")
    stamp(A, 3)
    A("s_branch K2_AUXEND")
    A.label("KF_NOJOB")
    A("""
v_mov_b32 v146, 2
ds_write_b32 v144, v146
s_waitcnt vmcnt(0) lgkmcnt(0)
s_barrier
""")
    A.label("K2_AUXEND")
    prof_end(A, 1)
    A.label("K2_EXIT")
    A("s_endpgm")
```

```python
import sys, os, re
sys.path.insert(0, os.path.dirname(__file__))
from common import *
import k1, k2, k3, k23
FUSE = os.environ.get("FUSE", "1") == "1"

def flag_stores(text, flags):
    if not flags:
        return text
    return re.sub(r"^(\s*buffer_store_\w+ .*?)\s*$", lambda m: m.group(1) if flags in m.group(1).split() else m.group(1) + " " + flags, text, flags=re.M)

def build_fused():
    parts = []
    for gen, env in ((k1.gen_k1, "K1_STF"), (k23.gen_k23, "NONE_STF")):
        A = Asm()
        gen(A)
        parts.append(flag_stores(A.text(), os.environ.get(env, "")))
    head = f"""; gated_mix(spectral_fnet, mha_block): generated by gen/gen.py (hand-designed kernels)
; @launch kernel=k1_kernel grid=(256,1,1) block=(512,1,1) lds={k1.K1_LDS}
; @launch kernel=k23_kernel grid=(256,1,1) block=(768,1,1) lds={k23.K23_LDS}
.amdgcn_target "amdgcn-amd-amdhsa--gfx950"
.text
"""
    tail = '.section .rodata,"a"\n' + kd("k1_kernel", k1.K1_VGPR) + kd("k23_kernel", k23.K23_VGPR)
    return head + "".join(parts) + tail

def build():
    if FUSE:
        return build_fused()
    parts = []
    for gen, env in ((k1.gen_k1, "K1_STF"), (k2.gen_k2, "K2_STF"), (k3.gen_k3, "K3_STF")):
        A = Asm()
        gen(A)
        parts.append(flag_stores(A.text(), os.environ.get(env, "")))
    head = f"""; gated_mix(spectral_fnet, mha_block): generated by gen/gen.py (hand-designed kernels)
; @launch kernel=k1_kernel grid=(256,1,1) block=(512,1,1) lds={k1.K1_LDS}
; @launch kernel=k2_kernel grid=({k2.K2_GRID},1,1) block=(512,1,1) lds={k2.K2_LDS}
; @launch kernel=k3_kernel grid=(256,1,1) block=(256,1,1) lds={k3.K3_LDS}
.amdgcn_target "amdgcn-amd-amdhsa--gfx950"
.text
"""
    tail = '.section .rodata,"a"\n' + kd("k1_kernel", k1.K1_VGPR) + kd("k2_kernel", k2.K2_VGPR) + kd("k3_kernel", k3.K3_VGPR, agpr=k3.K3_AGPR)
    return head + "".join(parts) + tail

if __name__ == "__main__":
    out = sys.argv[1] if len(sys.argv) > 1 else "gated_mix__spectral_fnet__mha_block__prompt.s"
    open(out, "w").write(build())
    print("wrote", out)
```

```python
from common import *
import struct, math

def f32hex(x):
    return "0x%08x" % struct.unpack("<I", struct.pack("<f", x))[0]

STF = os.environ.get("K1_STF", "")
CPF = os.environ.get("K1_CPF", "0") == "1"
PFM = os.environ.get("K1_PREFETCH", "0")
QSCALE = (DH ** -0.5) * math.log2(math.e)

ACC = 16
SET = [96, 120]
XB, WB = 144, 148
XA, WA = 150, 154
K1_VGPR = 160
K1_LDS = 65536 + 4 * 20480


def k1_reads(kind, kap, st):
    b0 = SET[st]
    out = [f"ds_read_b128 {vr(b0,4)}, v{XA+kap}"]
    for b in range(5):
        for rd in range(2):
            if kind == 0:
                a = WA if b < 4 else WA + 1
                off = (16 * kap + 4 * rd) * 320 + (80 * b if b < 4 else 0)
            else:
                a = WA
                off = (16 * kap + 4 * rd) * 320 + 64 * b
            out.append(f"ds_read_b64_tr_b16 {vr(b0+4+4*b+2*rd,2)}, v{a} offset:{off}")
    return out


def k1_mfmas(kind, st):
    b0 = SET[st]
    out = []
    for b in range(5):
        acc = vr(ACC + 16 * b, 16)
        xf, wf = vr(b0, 4), vr(b0 + 4 + 4 * b, 4)
        if kind == 0:
            out.append(f"v_mfma_f32_32x32x16_bf16 {acc}, {wf}, {xf}, {acc}")
        else:
            out.append(f"v_mfma_f32_32x32x16_bf16 {acc}, {xf}, {wf}, {acc}")
    return out


def interleave(A, mf, rd, extra=()):
    chunks = [rd[0:4], rd[4:8], rd[8:11], list(extra), []]
    for m, c in zip(mf, chunks):
        A(m)
        for x in c:
            A(x)


def k1_mainloop(A, kind):
    L = f"K1_LOOP{kind}"
    A("v_and_b32 v1, 31, v0")
    A("v_lshrrev_b32 v2, 5, v0")
    A("s_lshl_b32 s48, s34, 12")
    A("v_lshlrev_b32 v3, 7, v1")
    A("v_add_u32 v3, s48, v3")
    A("v_bfe_u32 v4, v1, 1, 3")
    for kap in range(4):
        A(f"v_add_u32 v5, {2*kap}, v2")
        A("v_xor_b32 v5, v5, v4")
        A(f"v_lshl_add_u32 v{XB+kap}, v5, 4, v3")
    A("v_bfe_u32 v5, v0, 4, 1")
    A("v_bfe_u32 v6, v0, 2, 2")
    A("v_and_b32 v7, 3, v0")
    A("v_lshl_add_u32 v8, v2, 3, v6")
    A("v_mul_u32_u24 v8, 320, v8")
    A("v_add_u32 v8, 0x10000, v8")
    if kind == 1:
        A("v_lshl_add_u32 v9, v5, 5, v8")
        A(f"v_lshl_add_u32 v{WB}, v7, 3, v9")
        A(f"v_mov_b32 v{WB+1}, v{WB}")
    else:
        A("v_mul_u32_u24 v9, 40, v5")
        A("v_add_u32 v9, v9, v8")
        A("v_and_b32 v10, 1, v7")
        A("v_lshl_add_u32 v9, v10, 4, v9")
        A("v_lshrrev_b32 v10, 1, v7")
        A(f"v_lshl_add_u32 v{WB}, v10, 3, v9")
        A("v_lshl_add_u32 v10, v5, 2, v7")
        A("v_mul_u32_u24 v10, 40, v10")
        A("v_add3_u32 v%d, v10, v8, 32" % (WB + 1))
    for i in range(6):
        A(f"v_mov_b32 v{XA+i}, v{XB+i}")
    for i in range(80):
        A(f"v_mov_b32 v{ACC+i}, 0")
    for i in range(24):
        A(f"v_mov_b32 v{SET[1]+i}, 0")
    A("s_mov_b32 s60, 0")
    stamp(A, 1)
    if PROF or PFM == "3":
        A("s_barrier")
        stamp(A, 2)
        if PFM == "3":
            A("s_cmp_lt_u32 s34, 2")
            A(f"s_cbranch_scc1 {L}_B")
            A("buffer_load_dword v158, v156, s[8:11], s66 offen")
            A("buffer_load_dword v159, v157, s[12:15], 0 offen")
        A(f"s_branch {L}_B")
    A.label(L)
    A("s_barrier")
    A.label(L + "_B")
    interleave(A, k1_mfmas(kind, 1), k1_reads(kind, 0, 0),
               extra=["s_add_u32 s60, s60, 1", "s_and_b32 s61, s60, 3", "s_lshl_b32 s62, s61, 14", "s_mul_i32 s63, s61, 20480"])
    A("s_waitcnt lgkmcnt(0)")
    interleave(A, k1_mfmas(kind, 0), k1_reads(kind, 1, 1))
    A("s_waitcnt lgkmcnt(0)")
    interleave(A, k1_mfmas(kind, 1), k1_reads(kind, 2, 0))
    A("s_waitcnt lgkmcnt(0)")
    upd = [f"v_add_u32 v{XA+i}, s62, v{XB+i}" for i in range(4)] + [f"v_add_u32 v{WA+i}, s63, v{WB+i}" for i in range(2)]
    interleave(A, k1_mfmas(kind, 0), k1_reads(kind, 3, 1), extra=upd)
    A("s_cmp_lt_u32 s60, 10")
    A("s_waitcnt lgkmcnt(0)")
    A(f"s_cbranch_scc1 {L}")
    stamp(A, 3)
    for m in k1_mfmas(kind, 1):
        A(m)
    A("s_nop 15")
    A("s_nop 7")


def gen_k1(A):
    A(khead("k1_kernel"))
    A(f"""
s_cmp_ge_u32 s2, 256
s_cbranch_scc1 K1_EXIT
""")
    prof_begin(A)
    A(f"""
s_load_dwordx2 s[4:5], s[0:1], {KA_X}
s_load_dwordx4 s[20:23], s[0:1], {KA_HRE}
s_load_dwordx4 s[24:27], s[0:1], {KA_WQKV}
s_load_dwordx2 s[28:29], s[0:1], {KA_GATE}
s_load_dwordx2 s[30:31], s[0:1], {KA_WS}
v_lshrrev_b32 v1, 6, v0
v_and_b32 v0, 63, v0
s_and_b32 s48, s2, 7
s_lshr_b32 s49, s2, 3
v_readfirstlane_b32 s34, v1
s_and_b32 s50, s48, 1
s_lshl_b32 s50, s50, 3
s_and_b32 s51, s49, 7
s_add_u32 s32, s50, s51
s_lshr_b32 s35, s48, 1
s_lshl_b32 s50, s35, 2
s_lshr_b32 s52, s49, 3
s_add_u32 s33, s50, s52
s_cmp_lt_u32 s34, 4
s_cbranch_scc1 K1_COMPUTE
""")
    A("""
s_mul_i32 s38, s52, 3
s_add_u32 s38, s38, s51
s_add_u32 s38, s38, s35
s_sub_u32 s39, s38, 10
s_cmp_ge_u32 s38, 10
s_cselect_b32 s38, s39, s38
""")
    if os.environ.get("K1_STAGGER", "1") != "1":
        A("s_mov_b32 s38, 0")
    A("""
s_movk_i32 s54, 1280
s_movk_i32 s55, 3840
s_and_b32 s56, s33, 1
s_cmp_eq_u32 s35, 3
s_cselect_b32 s36, s54, s55
s_cselect_b32 s37, s56, s33
s_mul_i32 s37, s37, 320
s_sub_u32 s34, s34, 4
v_lshrrev_b32 v1, 3, v0
v_and_b32 v2, 7, v0
v_lshrrev_b32 v3, 4, v0
v_xor_b32 v4, v2, v3
v_lshlrev_b32 v4, 4, v4
v_xor_b32 v5, 64, v4
s_movk_i32 s48, 1280
s_cmp_eq_u32 s35, 3
s_cbranch_scc1 K1_LD_F
s_lshl_b32 s49, s32, 7
s_lshl_b32 s50, s34, 5
s_add_u32 s49, s49, s50
v_add_u32 v6, s49, v1
v_mul_u32_u24 v6, s48, v6
v_add_u32 v10, v6, v4
v_add_u32 v11, v6, v5
v_add_u32 v11, 10240, v11
v_add_u32 v12, 20480, v10
v_add_u32 v13, 20480, v11
s_branch K1_LD_W
K1_LD_F:
s_lshl_b32 s49, s32, 6
s_lshl_b32 s50, s34, 3
s_add_u32 s49, s49, s50
v_and_b32 v6, 3, v1
v_and_b32 v7, 32, v0
v_add3_u32 v6, v6, v7, s49
v_add_u32 v7, 4, v6
v_sub_u32 v8, 2048, v6
v_sub_u32 v9, 2048, v7
v_cmp_eq_u32 vcc, 0, v6
v_mov_b32 v14, 1024
v_mul_u32_u24 v6, s48, v6
v_mul_u32_u24 v7, s48, v7
v_cndmask_b32 v8, v8, v14, vcc
v_mul_u32_u24 v9, s48, v9
v_mul_u32_u24 v8, s48, v8
v_add_u32 v10, v6, v4
v_add_u32 v11, v7, v5
v_add_u32 v12, v8, v4
v_add_u32 v13, v9, v5
K1_LD_W:
s_mul_i32 s49, s34, 320
v_add_u32 v6, s49, v0
""")
    for q in range(5):
        if q:
            A(f"v_add_u32 v6, 64, v6")
        A("v_mul_u32_u24 v7, 3277, v6")
        A("v_lshrrev_b32 v7, 16, v7")
        A("v_mul_u32_u24 v8, 20, v7")
        A("v_sub_u32 v8, v6, v8")
        A("v_mul_u32_u24 v7, s36, v7")
        A("v_lshl_add_u32 v8, v8, 4, s37")
        A(f"v_add_u32 v{14+q}, v7, v8")
    A("""
s_lshl_b32 s52, s34, 12
s_mul_i32 s53, s34, 5120
s_lshl_b32 s55, s36, 6
s_lshl_b32 s51, s38, 7
s_mul_i32 s54, s38, s55
s_mov_b32 s56, 819200
s_mov_b32 s57, 2457600
s_mov_b32 s10, 2621440
s_mov_b32 s11, 0x00020000
s_mov_b32 s15, 0x00020000
s_waitcnt lgkmcnt(0)
s_mov_b32 s8, s4
s_and_b32 s9, s5, 0xffff
s_cmp_lt_u32 s33, 14
s_cselect_b32 s6, s20, s22
s_cselect_b32 s7, s21, s23
s_cmp_eq_u32 s35, 3
s_cselect_b32 s12, s6, s24
s_cselect_b32 s13, s7, s25
s_cselect_b32 s14, s56, s57
s_and_b32 s13, s13, 0xffff
""")

    def issue(c):
        slot = c & 3
        for q in range(4):
            A(f"s_add_u32 m0, s52, {slot*16384 + q*1024}")
            A("s_nop 0")
            A(f"buffer_load_dwordx4 v{10+q}, s[8:11], s51 offen lds")
        for q in range(5):
            A(f"s_add_u32 m0, s53, {65536 + slot*20480 + q*1024}")
            A("s_nop 0")
            A(f"buffer_load_dwordx4 v{14+q}, s[12:15], s54 offen lds")
        A("s_add_u32 s38, s38, 1")
        A("s_cmp_eq_u32 s38, 10")
        A("s_cselect_b32 s38, 0, s38")
        A("s_lshl_b32 s51, s38, 7")
        A("s_mul_i32 s54, s38, s55")

    def side_loads():
        srd(A, 16, 30, WS_SIZE)
        srd(A, 40, 26, D * D * 2)
        srd(A, 44, 28, D * 2)
        A("""
s_lshl_b32 s56, s2, 2
s_add_u32 s56, s56, s34
s_sub_u32 s57, 2048, s56
s_cmp_eq_u32 s56, 0
s_cselect_b32 s57, 1024, s57
s_mul_i32 s58, s56, 1280
s_mul_i32 s59, s57, 1280
v_mul_u32_u24 v20, 20, v0
buffer_load_dwordx4 v[24:27], v20, s[8:11], s58 offen
buffer_load_dword v28, v20, s[8:11], s58 offen offset:16
buffer_load_dwordx4 v[32:35], v20, s[8:11], s59 offen
buffer_load_dword v36, v20, s[8:11], s59 offen offset:16
buffer_load_dwordx4 v[40:43], v20, s[44:47], 0 offen
buffer_load_dword v44, v20, s[44:47], 0 offen offset:16
s_mul_i32 s60, s56, 3277
s_lshr_b32 s60, s60, 16
s_mul_i32 s61, s60, 20
s_sub_u32 s61, s56, s61
v_lshrrev_b32 v21, 4, v0
v_and_b32 v22, 15, v0
s_cmp_lt_u32 s61, 16
s_cbranch_scc0 K1_WOT_HI
s_mul_i32 s62, s61, 40
v_lshrrev_b32 v23, 1, v21
v_mul_u32_u24 v23, 20, v23
v_and_b32 v29, 1, v21
v_lshl_add_u32 v23, v29, 2, v23
v_add_u32 v23, s62, v23
s_movk_i32 s63, 10240
s_branch K1_WOT_GO
K1_WOT_HI:
s_sub_u32 s62, s61, 16
s_mul_i32 s62, s62, 160
s_add_u32 s62, s62, 16
v_mul_u32_u24 v23, 40, v21
v_add_u32 v23, s62, v23
s_movk_i32 s63, 25600
K1_WOT_GO:
v_mul_u32_u24 v23, s48, v23
s_lshl_b32 s60, s60, 5
v_lshl_add_u32 v23, v22, 1, v23
v_add_u32 v23, s60, v23
v_add_u32 v29, s63, v23
""")
        for half, a in ((0, 23), (1, 29)):
            for j in range(4):
                reg = (68 if (j & 1) else 48) + 2 * half + (j >> 1)
                A(f"buffer_load_ushort v{reg}, v{a}, s[40:43], 0 offen offset:{1280*j}")
        if CPF:
            A(f"s_load_dwordx4 s[64:67], s[0:1], {KA_SRE}")
            A("s_lshl_b32 s60, s56, 12")
            A("v_lshlrev_b32 v76, 4, v0")
            A("s_waitcnt lgkmcnt(0)")
            srd(A, 40, 64, S * S * 2)
            srd(A, 44, 66, S * S * 2)
            for sr_ in ("s[40:43]", "s[44:47]"):
                for o in (0, 1024):
                    A(f"buffer_load_dwordx4 v[80:83], v76, {sr_}, s60 offen offset:{o}")

    stamp(A, 1)
    issue(0)
    if PFM == "3":
        A("s_barrier")
    EARLY = os.environ.get("K1_EARLY", "0") == "1"
    if EARLY:
        stamp(A, 2)
        A("s_waitcnt vmcnt(0)")
        stamp(A, 3)
        A("s_barrier")
    issue(1)
    if not EARLY:
        stamp(A, 2)
    NS = 18 if CPF else 14
    DIST = int(os.environ.get("K1_DIST", "2"))
    for c in range(10):
        if DIST == 3:
            n = {0: 9, 1: 18, 2: 18, 3: 18, 4: 18, 5: 18, 6: 18, 7: 18 + NS, 8: 9 + NS, 9: NS}[c]
        else:
            n = {0: 9, 1: 9, 2: 9, 3: 9, 4: 9, 5: 9, 6: 9, 7: 9, 8: 9 + NS, 9: NS}[c]
        if not (EARLY and c == 0):
            A(f"s_waitcnt vmcnt({n})")
            if c in (0, 1, 4, 9):
                stamp(A, {0: 3, 1: 4, 4: 5, 9: 6}[c])
            A("s_barrier")
        if DIST == 3:
            if c == 0:
                issue(2)
            if c + 3 <= 9:
                issue(c + 3)
            if c == 6:
                side_loads()
        else:
            if c + 2 <= 9:
                issue(c + 2)
            if c == 7:
                side_loads()
        if c == 9:
            A(f"s_waitcnt vmcnt({4 if CPF else 0})")
            A("v_mov_b32 v56, 0xbf803f80")
            for i in range(4):
                A(f"v_lshl_or_b32 v{48+i}, v{68+i}, 16, v{48+i}")
            xs = [24, 25, 26, 27, 28]
            xm = [32, 33, 34, 35, 36]
            gw = [40, 41, 42, 43, 44]
            for j in range(5):
                for acc, a, b in ((52, xs[j], gw[j]), (53, xm[j], gw[j]), (54, xs[j], 56), (55, xm[j], 56)):
                    cc = "0" if j == 0 else f"v{acc}"
                    A(f"v_dot2_f32_bf16 v{acc}, v{a}, v{b}, {cc}")
            A("s_nop 3")
            for ror in (1, 2, 4, 8):
                for i in range(4):
                    A(f"v_add_f32_dpp v{52+i}, v{52+i}, v{52+i} row_ror:{ror} row_mask:0xf bank_mask:0xf")
                A("s_nop 1")
            for i in range(4):
                A(f"v_add_f32_dpp v{52+i}, v{52+i}, v{52+i} row_bcast:15 row_mask:0xa bank_mask:0xf")
            A("s_nop 1")
            for i in range(4):
                A(f"v_add_f32_dpp v{52+i}, v{52+i}, v{52+i} row_bcast:31 row_mask:0xc bank_mask:0xf")
            A("s_nop 1")
    A(f"""
s_lshl_b32 s60, s56, 10
s_add_u32 s60, s60, {WOT}
v_lshlrev_b32 v20, 4, v0
s_cmp_lt_u32 s56, 800
s_cbranch_scc0 K1_NO_WOT
buffer_store_dwordx4 v[48:51], v20, s[16:19], s60 offen
K1_NO_WOT:
s_cmp_lt_u32 s56, 8
s_cbranch_scc0 K1_NO_FLG
s_lshl_b32 s60, s56, 11
s_add_u32 s60, s60, {FLAGO}
v_mov_b32 v72, 0
v_mov_b32 v73, 0
v_mov_b32 v74, 0
v_mov_b32 v75, 0
buffer_store_dwordx4 v[72:75], v20, s[16:19], s60 offen
buffer_store_dwordx4 v[72:75], v20, s[16:19], s60 offen offset:1024
K1_NO_FLG:
v_mov_b32 v20, 0
v_cmp_eq_u32 vcc, 63, v0
s_and_saveexec_b64 s[64:65], vcc
s_lshl_b32 s60, s56, 2
s_add_u32 s60, s60, {GATE}
s_lshl_b32 s61, s57, 2
s_add_u32 s61, s61, {GATE}
buffer_store_dword v52, v20, s[16:19], s60 offen
buffer_store_dword v53, v20, s[16:19], s61 offen
""")
    A(f"""
s_lshr_b32 s60, s56, 6
s_lshl_b32 s60, s60, 2
s_bfe_u32 s61, s56, 0x20003
s_add_u32 s60, s60, s61
s_mul_i32 s60, s60, {FA_KS}
s_bfe_u32 s61, s56, 0x10005
s_lshl_b32 s61, s61, 9
s_add_u32 s60, s60, s61
s_and_b32 s61, s56, 7
s_lshl_b32 s61, s61, 1
s_add_u32 s60, s60, s61
s_add_u32 s60, s60, {FAC + 10*1024}
s_cmp_eq_u32 s56, 0
s_cbranch_scc1 K1_ALT0
v_add_f32 v54, v54, v55
v_cvt_pk_bf16_f32 v54, v54, v54
buffer_store_short v54, v20, s[16:19], s60 offen
s_branch K1_END
K1_ALT0:
v_cvt_pk_bf16_f32 v54, v54, v54
buffer_store_short v54, v20, s[16:19], s60 offen
v_cvt_pk_bf16_f32 v60, v55, 0
v_mov_b32 v61, 0
v_mov_b32 v62, 0
v_mov_b32 v63, 0
v_mov_b32 v64, 0
s_mov_b32 s60, {FAC + 64*FA_KS + 10*1024}
buffer_store_dwordx4 v[60:63], v20, s[16:19], s60 offen
v_mov_b32 v66, 0
v_mov_b32 v67, 0
v_mov_b32 v65, 0
buffer_store_dwordx4 v[64:67], v20, s[16:19], s60 offen offset:512
""")
    A("s_branch K1_END")
    A.label("K1_COMPUTE")
    if PFM in ("1", "3"):
        A("""
s_movk_i32 s54, 1280
s_movk_i32 s55, 3840
s_and_b32 s56, s33, 1
s_cmp_eq_u32 s35, 3
s_cselect_b32 s36, s54, s55
s_cselect_b32 s37, s56, s33
s_mul_i32 s37, s37, 320
v_and_b32 v1, 31, v0
v_lshrrev_b32 v2, 5, v0
s_cmp_eq_u32 s35, 3
s_cbranch_scc1 K1_PF_F
s_lshl_b32 s49, s32, 7
s_lshl_b32 s50, s52, 5
s_add_u32 s49, s49, s50
v_add_u32 v3, s49, v1
s_branch K1_PF_X
K1_PF_F:
s_lshl_b32 s49, s32, 6
s_lshl_b32 s50, s52, 3
s_add_u32 s49, s49, s50
v_and_b32 v3, 3, v1
v_bfe_u32 v4, v1, 2, 1
v_lshl_add_u32 v3, v4, 5, v3
v_bfe_u32 v4, v1, 3, 1
v_lshl_add_u32 v3, v4, 2, v3
v_add_u32 v3, s49, v3
v_sub_u32 v4, 2048, v3
v_and_b32 v4, 2047, v4
v_cmp_lt_u32 vcc, 15, v1
s_nop 1
v_cndmask_b32 v3, v3, v4, vcc
K1_PF_X:
v_mul_u32_u24 v3, s54, v3
v_lshl_add_u32 v3, v2, 7, v3
s_add_u32 s49, s34, 1
s_lshl_b32 s50, s49, 8
v_bfe_u32 v4, v0, 2, 3
v_lshl_add_u32 v4, v2, 6, v4
s_lshl_b32 s53, s51, 3
s_lshl_b32 s57, s49, 7
s_add_u32 s53, s53, s57
v_add_u32 v4, s53, v4
v_mul_u32_u24 v4, s36, v4
v_and_b32 v5, 3, v0
v_lshlrev_b32 v5, 7, v5
v_min_u32 v5, 316, v5
v_add3_u32 v4, v4, v5, s37
s_mov_b32 s56, 819200
s_mov_b32 s57, 2457600
s_mov_b32 s10, 2621440
s_mov_b32 s11, 0x00020000
s_mov_b32 s15, 0x00020000
s_waitcnt lgkmcnt(0)
s_mov_b32 s8, s4
s_and_b32 s9, s5, 0xffff
s_cmp_lt_u32 s33, 14
s_cselect_b32 s6, s20, s22
s_cselect_b32 s7, s21, s23
s_cmp_eq_u32 s35, 3
s_cselect_b32 s12, s6, s24
s_cselect_b32 s13, s7, s25
s_cselect_b32 s14, s56, s57
s_and_b32 s13, s13, 0xffff
""")
        if PFM == "1":
            A("buffer_load_dword v158, v3, s[8:11], s50 offen")
            A("buffer_load_dword v159, v4, s[12:15], 0 offen")
        else:
            A("""
v_mov_b32 v156, v3
v_mov_b32 v157, v4
s_mov_b32 s66, s50
s_barrier
s_cmp_lt_u32 s34, 2
s_cbranch_scc0 K1_PF_LATER
buffer_load_dword v158, v156, s[8:11], s66 offen
buffer_load_dword v159, v157, s[12:15], 0 offen
K1_PF_LATER:
""")
    if os.environ.get("K1_PREFETCH", "0") == "2":
        A("""
s_lshl_b32 s49, s2, 2
s_add_u32 s49, s49, s34
s_mul_i32 s50, s49, 2560
s_mul_i32 s51, s49, 2400
s_mul_i32 s52, s49, 800
v_lshlrev_b32 v3, 4, v0
v_lshlrev_b32 v4, 3, v0
s_waitcnt lgkmcnt(0)
""")
        srd(A, 8, 4, S * D * 2)
        srd(A, 12, 24, D * 3 * D * 2)
        srd(A, 40, 20, D * D * 2)
        srd(A, 44, 22, D * D * 2)
        A("""
buffer_load_dwordx4 v[156:159], v3, s[12:15], s51 offen
buffer_load_dwordx4 v[156:159], v3, s[8:11], s50 offen
buffer_load_dwordx4 v[156:159], v3, s[12:15], s51 offen offset:1024
buffer_load_dwordx4 v[156:159], v3, s[8:11], s50 offen offset:1024
buffer_load_dwordx2 v[156:157], v4, s[12:15], s51 offen offset:2048
buffer_load_dwordx2 v[156:157], v4, s[8:11], s50 offen offset:2048
buffer_load_dwordx4 v[156:159], v3, s[40:43], s52 offen
buffer_load_dwordx4 v[156:159], v3, s[44:47], s52 offen
""")
    A("s_waitcnt lgkmcnt(0)")
    srd(A, 16, 30, WS_SIZE)
    A(f"""
s_lshl_b32 s49, s2, 2
s_add_u32 s49, s49, s34
s_mul_i32 s49, s49, 2560
s_add_u32 s49, s49, {OIMG}
v_lshlrev_b32 v3, 4, v0
v_lshlrev_b32 v4, 3, v0
v_mov_b32 v156, -1
v_mov_b32 v157, -1
v_mov_b32 v158, -1
v_mov_b32 v159, -1
buffer_store_dwordx4 v[156:159], v3, s[16:19], s49 offen
buffer_store_dwordx4 v[156:159], v3, s[16:19], s49 offen offset:1024
buffer_store_dwordx2 v[156:157], v4, s[16:19], s49 offen offset:2048
""")
    A("""
s_cmp_ge_u32 s35, 2
s_cbranch_scc1 K1_VF
""")
    k1_mainloop(A, 0)
    A(f"""
s_lshl_b32 s48, s32, 2
s_add_u32 s48, s48, s34
s_and_b32 s49, s33, 3
s_lshl_b32 s49, s49, 3
s_mov_b32 s50, {Q_HS}
s_mov_b32 s51, {KV_HS}
s_mov_b32 s52, {f32hex(QSCALE)}
s_mov_b32 s53, 1.0
s_mul_i32 s54, s48, {Q_TS}
s_add_u32 s54, s54, {QIMG}
s_add_u32 s55, s48, 62
s_and_b32 s55, s55, 63
s_mul_i32 s55, s55, {KV_TS}
s_add_u32 s55, s55, {KVIMG}
s_cmp_eq_u32 s35, 0
s_cselect_b32 s56, s50, s51
s_cselect_b32 s58, s52, s53
s_cselect_b32 s59, s52, s53
s_cselect_b32 s57, s54, s55
s_mul_i32 s60, s49, s56
s_add_u32 s60, s60, s57
v_lshlrev_b32 v3, 4, v0
v_mul_lo_u32 v4, v2, s56
v_lshl_add_u32 v4, v1, 3, v4
v_add_u32 v4, 1024, v4
""")
    A("s_cmp_eq_u32 s35, 0")
    A("s_cbranch_scc0 K1_NOSCALE")
    for i in range(40):
        A(f"v_pk_mul_f32 {vr(ACC+2*i,2)}, {vr(ACC+2*i,2)}, s[58:59]")
    A.label("K1_NOSCALE")
    PK = 96
    for i in range(40):
        A(f"v_cvt_pk_bf16_f32 v{PK+i}, v{ACC+2*i}, v{ACC+2*i+1}")
    A("s_mov_b32 s61, s60")
    for hd in range(8):
        A(f"buffer_store_dwordx4 {vr(PK+4*hd,4)}, v3, s[16:19], s61 offen")
        A("s_add_u32 s61, s61, s56")
    A("s_mov_b32 s61, s60")
    A("s_lshl_b32 s62, s56, 1")
    for i in range(4):
        A(f"buffer_store_dwordx2 {vr(PK+32+2*i,2)}, v4, s[16:19], s61 offen")
        A("s_add_u32 s61, s61, s62")
    A("s_cmp_eq_u32 s35, 0")
    A("s_cbranch_scc1 K1_END")
    for j in range(4):
        for hd in range(8):
            src = PK + 4 * hd + j
            c = "0" if j == 0 else f"v{16+hd}"
            A(f"v_dot2_f32_bf16 v{16+hd}, v{src}, v{src}, {c}")
    for j in range(2):
        for i in range(4):
            src = PK + 32 + 2 * i + j
            c = "0" if j == 0 else f"v{24+i}"
            A(f"v_dot2_f32_bf16 v{24+i}, v{src}, v{src}, {c}")
    A("s_nop 4")
    for i in range(4):
        A(f"v_permlane32_swap_b32 v{16+2*i}, v{17+2*i}")
    A("s_nop 1")
    for i in range(4):
        A(f"v_add_f32 v{16+2*i}, v{16+2*i}, v{17+2*i}")
    for i in range(4):
        A(f"v_add_f32 v{24+i}, v{24+i}, v{16+2*i}")
    for ror in (1, 2, 4, 8):
        A("s_nop 1")
        for i in range(4):
            A(f"v_max_f32_dpp v{24+i}, v{24+i}, v{24+i} row_ror:{ror} row_mask:0xf bank_mask:0xf")
    A("s_nop 1")
    for i in range(4):
        A(f"v_max_f32_dpp v{24+i}, v{24+i}, v{24+i} row_bcast:15 row_mask:0xa bank_mask:0xf")
    A(f"""
s_lshl_b32 s61, s49, 8
s_lshl_b32 s62, s48, 2
s_add_u32 s61, s61, s62
s_add_u32 s61, s61, {KMAX}
v_lshlrev_b32 v5, 8, v2
v_cmp_eq_u32 vcc, 31, v1
s_and_saveexec_b64 s[64:65], vcc
""")
    for i in range(4):
        A(f"buffer_store_dword v{24+i}, v5, s[16:19], s61 offen offset:{512*i}")
    A("s_branch K1_END")

    A.label("K1_VF")
    k1_mainloop(A, 1)
    A("s_cmp_eq_u32 s35, 3")
    A("s_cbranch_scc1 K1_F")
    PK = 96
    for i in range(40):
        A(f"v_cvt_pk_bf16_f32 v{PK+i}, v{ACC+2*i}, v{ACC+2*i+1}")
    A(f"""
s_lshl_b32 s48, s32, 2
s_add_u32 s48, s48, s34
s_and_b32 s49, s33, 3
s_mul_i32 s49, s49, {8*KV_HS}
s_mul_i32 s50, s48, {KV_TS}
s_add_u32 s60, s49, s50
s_add_u32 s60, s60, {KVIMG + 1280}
s_mov_b32 s51, {KV_HS}
v_mul_u32_u24 v3, 336, v2
""")
    for b in range(5):
        A(f"v_add_u32 v4, {32*b}, v1")
        A("v_mul_u32_u24 v5, 3277, v4")
        A("v_lshrrev_b32 v5, 16, v5")
        A("v_mul_u32_u24 v6, 20, v5")
        A("v_sub_u32 v6, v4, v6")
        A("v_mul_lo_u32 v5, v5, s51")
        A("v_lshl_add_u32 v6, v6, 4, v3")
        A(f"v_add_u32 v{8+b}, v5, v6")
    for b in range(5):
        A(f"buffer_store_dwordx4 {vr(PK+8*b,4)}, v{8+b}, s[16:19], s60 offen")
        A(f"buffer_store_dwordx4 {vr(PK+8*b+4,4)}, v{8+b}, s[16:19], s60 offen offset:672")
    A("""
v_lshrrev_b32 v4, 2, v0
v_mul_lo_u32 v4, v4, s51
v_and_b32 v5, 3, v0
v_mul_u32_u24 v5, 336, v5
v_add_u32 v4, v4, v5
v_mov_b32 v16, 0x3f803f80
v_mov_b32 v17, 0x3f803f80
v_mov_b32 v18, 0x3f803f80
v_mov_b32 v19, 0x3f803f80
v_cmp_gt_u32 vcc, 32, v0
s_and_saveexec_b64 s[64:65], vcc
buffer_store_dwordx4 v[16:19], v4, s[16:19], s60 offen offset:320
s_branch K1_END
""")
    A.label("K1_F")
    A(f"""
s_lshl_b32 s48, s32, 2
s_add_u32 s48, s48, s34
s_mov_b32 s50, {FAC}
s_mov_b32 s51, {FAS}
s_mov_b32 s52, 1.0
s_mov_b32 s53, -1.0
s_cmp_lt_u32 s33, 14
s_cselect_b32 s54, s50, s51
s_cselect_b32 s55, s52, s53
s_and_b32 s49, s33, 1
s_mul_i32 s49, s49, 5120
s_add_u32 s54, s54, s49
s_mul_i32 s60, s48, {FA_KS}
s_add_u32 s60, s60, s54
v_lshlrev_b32 v3, 4, v0
s_cmp_lg_u32 s48, 0
s_cbranch_scc1 K1_F_NOSPECIAL
s_add_u32 s61, s54, {64*FA_KS}
v_cmp_gt_u32 vcc, 32, v0
v_mov_b32 v5, 0
v_mov_b32 v6, 0
v_mov_b32 v7, 0
""")
    for b in range(5):
        r8 = ACC + 16 * b + 8
        A(f"v_cndmask_b32 v8, 0, v{r8}, vcc")
        A(f"v_cvt_pk_bf16_f32 v4, v8, 0")
        A(f"v_cndmask_b32 v{r8}, v{r8}, v5, vcc")
        A(f"buffer_store_dwordx4 v[4:7], v3, s[16:19], s61 offen offset:{0}")
        A("s_add_u32 s61, s61, 1024")
        A("s_nop 1")
    A.label("K1_F_NOSPECIAL")
    for b in range(5):
        for r in range(8):
            a = ACC + 16 * b + r
            A(f"v_fma_f32 v{a}, v{a+8}, s55, v{a}")
    for b in range(5):
        for i in range(4):
            a = ACC + 16 * b + 2 * i
            A(f"v_cvt_pk_bf16_f32 v{PK+4*b+i}, v{a}, v{a+1}")
    for b in range(4):
        A(f"buffer_store_dwordx4 {vr(PK+4*b,4)}, v3, s[16:19], s60 offen offset:{1024*b}")
    A("s_add_u32 s60, s60, 4096")
    A(f"buffer_store_dwordx4 {vr(PK+16,4)}, v3, s[16:19], s60 offen")
    A("s_branch K1_END")

    A.label("K1_END")
    prof_end(A, 0)
    A.label("K1_EXIT")
    A("s_endpgm")
```

```python
from common import *

SA, SB, PA, PB, OA, OB = 16, 32, 48, 56, 64, 80
QA1, QB1, QA2, QB2 = 96, 100, 104, 106
K1F, K2F, V0, V1 = 108, 112, 116, 120
KA1, KA2, VA = 9, 10, 11
DV, PW, PRD, PV_, PCK = 12, 124, 125, 126, 127
K23_VGPR = 168
SLOT = 21504
CHUNK = 8 * KV_TS
PROG = 3 * SLOT
XR = PROG + 1024
WOTL = XR - 4096
K23_LDS = 163840
SC = "sc1"
WSTART = int(os.environ.get("K23_WSTART", "5"))
LOCAL = os.environ.get("K23_LOCAL", "0") == "1"
OSC = os.environ.get("K23_OSC", "sc1")
LSC = os.environ.get("K23_LSC", "sc1")
LPROF = os.environ.get("LPROF", "0") == "1"
DIAG = os.environ.get("DIAG", "")
P3 = os.environ.get("P3PROF", "0") == "1"
PRIO = os.environ.get("K23_PRIO", "1") == "1"
PSLEEP = int(os.environ.get("K23_PSLEEP", "4"))
assert WOTL + 100 * 1024 == K23_LDS


def softmax_groups(Sx, Px):
    gs = []
    for g in range(4):
        l = [f"v_exp_f32 v{Sx+4*g+i}, v{Sx+4*g+i}" for i in range(4)]
        l += [f"v_cvt_pk_bf16_f32 v{Px+2*g+i}, v{Sx+4*g+2*i}, v{Sx+4*g+2*i+1}" for i in range(2)]
        gs.append(l)
    return gs


def qk(Sx, Q1, Q2):
    return [f"v_mfma_f32_32x32x8_bf16 {vr(Sx,16)}, {vr(K2F,2)}, {vr(Q2,2)}, 0",
            f"v_mfma_f32_32x32x16_bf16 {vr(Sx,16)}, {vr(K1F,4)}, {vr(Q1,4)}, {vr(Sx,16)}"]


def pv(Ox, Px):
    return [f"v_mfma_f32_32x32x16_bf16 {vr(Ox,16)}, {vr(V0,4)}, {vr(Px,4)}, {vr(Ox,16)}",
            f"v_mfma_f32_32x32x16_bf16 {vr(Ox,16)}, {vr(V1,4)}, {vr(Px+4,4)}, {vr(Ox,16)}"]


def poll(A, tag, vaddr, vtmp, sc):
    A(f"""
s_mov_b32 s{sc}, 0
{tag}:
buffer_load_dword v{vtmp}, v{vaddr}, s[8:11], 0 offen {SC}
s_add_u32 s{sc}, s{sc}, 1
s_waitcnt vmcnt(0)
v_cmp_eq_u32 vcc, 1, v{vtmp}
s_cmp_gt_u32 s{sc}, 0x40000
s_cbranch_scc1 {tag}_X
s_cmp_eq_u64 vcc, exec
s_cbranch_scc0 {tag}
{tag}_X:
""")


YR, GL = 152, 164


def y_loads(A):
    A(f"""
v_and_b32 v128, 15, v0
v_lshrrev_b32 v129, 4, v0
s_lshl_b32 s57, s20, 6
s_lshl_b32 s58, s23, 4
s_add_u32 s57, s57, s58
v_add_u32 v130, s57, v128
v_sub_u32 v131, 2048, v130
v_cmp_lt_u32 vcc, 1024, v130
s_mul_i32 s58, s21, 80
s_mul_i32 s59, s24, 48
s_add_u32 s58, s58, s59
v_lshl_add_u32 v132, v129, 2, s58
v_cndmask_b32 v131, v130, v131, vcc
s_movk_i32 s59, {Y_PITCH}
v_mul_u32_u24 v131, s59, v131
v_sub_u32 v133, {640-3-32}, v132
s_mov_b32 s60, {YM}
s_mov_b32 s61, {YP}
s_cmp_ge_u32 s21, 4
s_cselect_b32 s62, s61, s60
s_cselect_b32 s63, s60, s61
s_cselect_b64 s[64:65], -1, 0
v_mov_b32 v134, s62
v_mov_b32 v135, s63
v_cndmask_b32 v134, v134, v135, vcc
v_cndmask_b32 v133, v132, v133, s[64:65]
v_lshl_add_u32 v131, v133, 2, v131
v_add_u32 v131, v131, v134
v_lshlrev_b32 v133, 2, v130
s_mov_b32 s66, {GATE}
buffer_load_dword v{GL}, v133, s[8:11], s66 offen
""")
    for j in range(3):
        A(f"buffer_load_dwordx4 {vr(YR+4*j,4)}, v131, s[8:11], 0 offen offset:{64*j} {SC}")


def gen_k23(A):
    A(khead("k23_kernel"))
    A("""
s_cmp_ge_u32 s2, 256
s_cbranch_scc1 K2_EXIT
""")
    prof_begin(A)
    A(f"""
s_load_dwordx2 s[4:5], s[0:1], {KA_WS}
s_load_dwordx2 s[6:7], s[0:1], {KA_OUT}
s_load_dwordx4 s[52:55], s[0:1], {KA_SRE}
v_lshrrev_b32 v1, 6, v0
v_and_b32 v0, 63, v0
s_and_b32 s18, s2, 7
s_lshr_b32 s19, s2, 3
v_readfirstlane_b32 s22, v1
s_lshl_b32 s20, s18, 2
s_and_b32 s21, s19, 3
s_add_u32 s20, s20, s21
s_lshr_b32 s21, s2, 5
s_mov_b32 s16, {"s19" if LOCAL else "s20"}
s_mov_b32 s17, {"s18" if LOCAL else "s21"}
s_mul_i32 s27, s16, {KV_HS}
s_add_u32 s27, s27, {KVIMG}
v_and_b32 v1, 31, v0
v_lshrrev_b32 v2, 5, v0
v_lshlrev_b32 v3, 4, v0
s_mov_b32 s15, 0x00020000
s_mov_b32 s10, {WS_SIZE}
s_mov_b32 s11, 0x00020000
s_cmp_ge_u32 s22, 8
s_cbranch_scc1 K2_AUX
""")
    A(f"""
s_and_b32 s23, s22, 3
s_lshr_b32 s24, s22, 2
s_lshl_b32 s25, s17, 3
s_lshl_b32 s26, s23, 1
s_add_u32 s25, s25, s26
v_lshlrev_b32 v4, 3, v1
v_lshlrev_b32 v5, 2, v0
s_mul_i32 s28, s16, {Q_HS}
s_mul_i32 s29, s25, {Q_TS}
s_add_u32 s28, s28, s29
s_add_u32 s28, s28, {QIMG}
s_add_u32 s29, s24, 62
s_mul_i32 s29, s29, {KV_TS}
s_add_u32 s29, s29, s27
s_lshl_b32 s30, s16, 8
s_add_u32 s30, s30, {KMAX}
s_waitcnt lgkmcnt(0)
s_mov_b32 s8, s4
s_and_b32 s9, s5, 0xffff
buffer_load_dwordx4 {vr(QA1,4)}, v3, s[8:11], s28 offen
buffer_load_dwordx2 {vr(QA2,2)}, v4, s[8:11], s28 offen offset:1024
buffer_load_dword v13, v5, s[8:11], s30 offen
buffer_load_dwordx4 {vr(QB1,4)}, v3, s[8:11], s28 offen offset:1280
buffer_load_dwordx2 {vr(QB2,2)}, v4, s[8:11], s28 offen offset:2304
buffer_load_dwordx4 {vr(K1F,4)}, v3, s[8:11], s29 offen
buffer_load_dwordx2 {vr(K2F,2)}, v4, s[8:11], s29 offen offset:1024
s_mul_i32 s32, s24, {KV_TS}
v_add_u32 v{KA1}, s32, v3
v_add_u32 v14, 1024, v4
v_mov_b32 v15, {1280+320}
v_cmp_gt_u32 s[50:51], 32, v0
v_mul_u32_u24 v16, 336, v2
v_lshl_add_u32 v16, v1, 4, v16
v_cndmask_b32 v14, v15, v14, s[50:51]
v_add_u32 v{KA2}, s32, v14
v_add_u32 v16, 1280, v16
v_add_u32 v{VA}, s32, v16
s_mov_b32 s48, 0x001fffff
s_mov_b32 s49, 0x001fffff
v_mov_b32 v{DV}, {PROG + 32}
s_lshl_b32 s33, s22, 2
s_add_u32 s33, s33, {PROG}
v_mov_b32 v{PW}, s33
v_and_b32 v{PRD}, 7, v0
v_lshlrev_b32 v{PRD}, 2, v{PRD}
v_add_u32 v{PRD}, {PROG}, v{PRD}
v_mov_b32 v{PV_}, 0
ds_write_b32 v{PW}, v{PV_}
""")
    for i in range(32):
        A(f"v_mov_b32 v{OA+i}, 0")
    for i in range(8):
        A(f"v_mov_b32 v{PB+i}, 0")
        A(f"v_mov_b32 v{V0+i}, 0")
    stamp(A, 1)
    A("s_waitcnt vmcnt(0)")
    A("v_mov_b32 v15, 0x3f803f80")
    for r in (QA2, QA2 + 1, QB2, QB2 + 1):
        A(f"v_cndmask_b32 v{r}, 0, v{r}, s[50:51]")
    for r in (K2F, K2F + 1):
        A(f"v_cndmask_b32 v{r}, v15, v{r}, s[50:51]")
    dpp = [f"v_max_f32_dpp v13, v13, v13 row_ror:{ror} row_mask:0xf bank_mask:0xf" for ror in (1, 2, 4, 8)]
    dpp += ["v_max_f32_dpp v13, v13, v13 row_bcast:15 row_mask:0xa bank_mask:0xf",
            "v_max_f32_dpp v13, v13, v13 row_bcast:31 row_mask:0xc bank_mask:0xf"]
    for j, (ra, rb) in enumerate([(QA1 + i, QB1 + i) for i in range(4)] + [(QA2 + i, QB2 + i) for i in range(2)]):
        ca = "0" if j == 0 else "v16"
        cb = "0" if j == 0 else "v18"
        A(dpp[j])
        A(f"v_dot2_f32_bf16 v16, v{ra}, v{ra}, {ca}")
        A(f"v_dot2_f32_bf16 v18, v{rb}, v{rb}, {cb}")
    A("""
v_readlane_b32 s33, v13, 63
s_nop 2
v_mov_b32 v17, v16
v_mov_b32 v19, v18
s_nop 1
v_permlane32_swap_b32 v16, v17
v_permlane32_swap_b32 v18, v19
s_nop 1
v_add_f32 v16, v16, v17
v_add_f32 v18, v18, v19
v_mul_f32 v16, s33, v16
v_mul_f32 v18, s33, v18
v_sqrt_f32 v16, v16
v_sqrt_f32 v18, v18
s_nop 0
v_mul_f32 v16, -1.0, v16
v_mul_f32 v18, -1.0, v18
""")
    for (m, Q2) in ((16, QA2), (18, QB2)):
        A(f"""
v_and_b32 v20, 0xffff0000, v{m}
v_sub_f32 v21, v{m}, v20
v_and_b32 v22, 0xffff0000, v21
v_sub_f32 v23, v21, v22
v_lshrrev_b32 v20, 16, v20
v_or_b32 v20, v20, v22
v_lshrrev_b32 v23, 16, v23
v_cndmask_b32 v{Q2}, v20, v{Q2}, s[50:51]
v_cndmask_b32 v{Q2+1}, v23, v{Q2+1}, s[50:51]
""")
    A("s_nop 1")
    for m in qk(SA, QA1, QA2):
        A(m)
    A("s_mov_b32 s42, 0")
    A("s_mov_b32 s44, 0")
    A("s_mov_b32 s68, 0")

    def tile(t, extra_k=None, mid_a=None, end_b=None, nl=0):
        off = t * 2 * KV_TS
        if PRIO:
            A(f"s_setprio {3-t}")
        g = softmax_groups(SA, PA)
        m = qk(SB, QB1, QB2) + pv(OB, PB)
        A(m[0])
        A("\n".join(g[0]))
        A(m[1])
        A(f"ds_read_b128 {vr(K1F,4)}, v{KA1} offset:{off}")
        A(f"ds_read_b64 {vr(K2F,2)}, v{KA2} offset:{off}")
        A("\n".join(g[1]))
        A(m[2])
        A("\n".join(g[2]))
        A(m[3])
        A("s_mov_b64 exec, s[48:49]")
        A(f"ds_read_b128 {vr(V0,4)}, v{VA} offset:{off}")
        A(f"ds_read_b128 {vr(V1,4)}, v{VA} offset:{off+672}")
        A("s_mov_b64 exec, -1")
        A("\n".join(g[3]))
        if mid_a:
            mid_a()
        g = softmax_groups(SB, PB)
        m = qk(SA, QA1, QA2) + pv(OA, PA)
        A(f"s_waitcnt lgkmcnt({2+nl})")
        A(m[0])
        A("\n".join(g[0]))
        A(m[1])
        A("\n".join(g[1]))
        A(f"s_waitcnt lgkmcnt({nl})")
        A(m[2])
        if extra_k:
            extra_k()
        A("\n".join(g[2]))
        A(m[3])
        if end_b:
            end_b()
        A("\n".join(g[3]))

    def sig_enter():
        A(f"v_add_u32 v{PV_}, 1, v{PV_}")
        A(f"ds_write_b32 v{PW}, v{PV_}")

    def ctl():
        A(f"""
s_add_u32 s42, s42, 1
s_add_u32 s44, s44, 1
s_cmp_eq_u32 s44, 3
s_cselect_b32 s44, 0, s44
s_mov_b32 s43, {SLOT}
s_cselect_b32 s43, {(-2*SLOT) & 0xffffffff}, s43
s_cmp_eq_u32 s42, 8
s_cbranch_scc1 K2_YREQ
K2_YDONE:
""")

    def chk_read():
        A(f"ds_read_b32 v{PCK}, v{DV}")

    def upd():
        A(f"v_add_u32 v{KA1}, s43, v{KA1}")
        A(f"v_add_u32 v{KA2}, s43, v{KA2}")
        A(f"v_add_u32 v{VA}, s43, v{VA}")

    A("s_waitcnt lgkmcnt(0)")
    A("s_barrier")
    stamp(A, 2)
    A("s_nop 7")
    A.label("K2_LOOP")
    if PROF and LPROF:
        for it, sl in ((1, 1), (2, 3), (4, 4), (6, 5), (7, 6)):
            A(f"s_cmp_eq_u32 s42, {it}")
            A(f"s_cbranch_scc0 K2_NS{it}")
            stamp(A, sl)
            A.label(f"K2_NS{it}")
    tile(0, mid_a=sig_enter, nl=1)
    tile(1, mid_a=ctl)
    tile(2)
    tile(3, extra_k=chk_read, end_b=upd)
    A(f"""
s_waitcnt lgkmcnt(0)
v_cmp_gt_u32 vcc, v{PCK}, v{PV_}
s_cmp_lt_u32 s42, 8
s_cbranch_vccz K2_SPIN
s_cbranch_scc1 K2_LOOP
s_branch K2_LOOPEND
K2_SPIN:
s_sleep 2
ds_read_b32 v{PCK}, v{DV}
s_waitcnt lgkmcnt(0)
v_cmp_gt_u32 vcc, v{PCK}, v{PV_}
s_nop 1
s_cbranch_vccz K2_SPIN
s_cbranch_scc1 K2_LOOP
s_branch K2_LOOPEND
K2_YREQ:
ds_read_b32 v129, v{DV} offset:4
s_waitcnt lgkmcnt(0)
v_cmp_eq_u32 vcc, 3, v129
s_nop 1
s_cbranch_vccz K2_YDONE
s_mov_b32 s68, 1
""")
    y_loads(A)
    A("s_branch K2_YDONE")
    A.label("K2_LOOPEND")
    if not LPROF: stamp(A, 3)
    for m in pv(OB, PB):
        A(m)
    A(f"""
s_mul_i32 s34, s23, 3072
s_mul_i32 s47, s24, {2*SLOT}
s_add_u32 s56, s34, s47
v_add_u32 v13, s56, v3
s_sub_u32 s47, {2*SLOT}, s47
s_add_u32 s56, s34, s47
v_add_u32 v14, s56, v3
s_add_u32 s46, s25, s24
s_mul_i32 s35, s46, 40960
s_mul_i32 s36, s16, 1280
s_add_u32 s36, s36, s35
s_add_u32 s36, s36, {OIMG}
s_nop 3
s_cmp_eq_u32 s24, 0
s_cbranch_scc0 K2_X1
""")
    for q in range(3):
        A(f"ds_write_b128 v13, {vr(OB+4*q,4)} offset:{1024*q}")
    A("s_branch K2_X2")
    A.label("K2_X1")
    for q in range(3):
        A(f"ds_write_b128 v13, {vr(OA+4*q,4)} offset:{1024*q}")
    A("s_nop 4")
    for i in range(12):
        A(f"v_mov_b32 v{OA+i}, v{OB+i}")
    A.label("K2_X2")
    A("s_waitcnt lgkmcnt(0)")
    A("s_barrier")
    if not LPROF: stamp(A, 4)
    for q in range(3):
        A(f"ds_read_b128 {vr(16+4*q,4)}, v14 offset:{1024*q}")
    A("s_waitcnt lgkmcnt(0)")
    for i in (8, 0, 1, 2, 3, 4, 5, 6, 7, 9, 10, 11):
        A(f"v_add_f32 v{OA+i}, v{OA+i}, v{16+i}")
        if i == 8:
            A(f"v_mov_b32 v28, v{OA+8}")
            A(f"v_mov_b32 v29, v{OA+8}")
        if i == 1:
            A("v_permlane32_swap_b32 v28, v29")
        if i == 4:
            A("v_rcp_f32 v29, v29")
    for i in range(12):
        A(f"v_mul_f32 v{OA+i}, v{OA+i}, v29")
    for i in range(6):
        A(f"v_cvt_pk_bf16_f32 v{52+i}, v{OA+2*i}, v{OA+2*i+1}")
    A(f"""
buffer_store_dwordx4 v[52:55], v3, s[8:11], s36 offen {OSC}
s_mov_b64 exec, s[50:51]
buffer_store_dwordx2 v[56:57], v4, s[8:11], s36 offen offset:1024 {OSC}
s_mov_b64 exec, -1
s_nop 0
""")
    ACC, OF, WF = 32, 52, 92
    A(f"""
s_lshl_b32 s56, s24, 13
v_add_u32 v4, s56, v3
v_add_u32 v5, {WOTL}, v4
v_add_u32 v6, {WOTL + 61440}, v4
s_lshl_b32 s56, s24, 11
v_add_u32 v4, s56, v3
v_add_u32 v12, {WOTL + 16384}, v4
v_add_u32 v14, {WOTL + 16384 + 61440}, v4
s_mul_i32 s67, s21, 102400
s_add_u32 s67, s67, {WOT}
""")
    ORDER = [4, 5, 6, 7, 8, 9, 0, 1, 2, 3]

    def wo_read(i, slot, skip0=False):
        for cb in range(5):
            if skip0 and cb == 0:
                continue
            if i < 8:
                a, off = ("v5", cb * 20480) if cb < 3 else ("v6", (cb - 3) * 20480)
                off += i * 1024
            else:
                a, off = ("v12", cb * 20480) if cb < 3 else ("v14", (cb - 3) * 20480)
                off += (i - 8) * 1024
            A(f"ds_read_b128 {vr(WF+20*slot+4*cb,4)}, {a} offset:{off}")
    A(f"""
v_and_b32 v9, 15, v0
v_lshrrev_b32 v10, 4, v0
s_lshl_b32 s57, s20, 6
s_lshl_b32 s58, s23, 4
s_add_u32 s57, s57, s58
v_add_u32 v11, s57, v9
s_mul_i32 s58, s21, 80
s_mul_i32 s59, s24, 48
s_add_u32 s58, s58, s59
v_lshl_add_u32 v13, v10, 2, s58
s_movk_i32 s59, 1280
v_mul_u32_u24 v11, s59, v11
v_lshl_add_u32 v11, v13, 1, v11
s_mov_b32 s12, s6
s_and_b32 s13, s7, 0xffff
s_mov_b32 s14, {S*D*2}
s_lshl_b32 s57, s20, 1
s_lshr_b32 s58, s23, 1
s_add_u32 s57, s57, s58
s_mul_i32 s51, s57, 40960
s_add_u32 s51, s51, {OIMG}
s_and_b32 s58, s23, 1
s_lshl_b32 s58, s58, 4
v_add_u32 v9, s58, v9
v_lshrrev_b32 v15, 1, v10
v_mul_u32_u24 v15, 1280, v15
v_and_b32 v13, 1, v10
v_lshl_add_u32 v15, v13, 9, v15
v_lshl_add_u32 v7, v9, 4, v15
v_mul_u32_u24 v8, 2560, v10
v_lshl_add_u32 v8, v9, 3, v8
v_add_u32 v8, 1024, v8
s_mul_i32 s58, s24, 20480
s_add_u32 s52, s51, s58
s_mov_b32 s69, 0
s_cmp_eq_u32 s24, 0
s_cbranch_scc0 K3_W1
""")
    for k in range(4):
        A(f"buffer_load_dwordx4 {vr(16+4*k,4)}, v3, s[8:11], s67 offen offset:{1024*k}")
    A("s_branch K3_W2")
    A.label("K3_W1")
    for k in range(4):
        A(f"ds_read_b128 {vr(16+4*k,4)}, v5 offset:{k*1024}")
    A.label("K3_W2")
    for n in range(3):
        wo_read(ORDER[n], n)
    if not LPROF: stamp(A, 5)
    A("s_barrier")
    if not LPROF: stamp(A, 6)
    A.label("K3_RETRY")
    NLD = []
    for n, i in enumerate(ORDER):
        if i < 8:
            A(f"s_add_u32 s53, s52, {2560*i}")
            A(f"buffer_load_dwordx4 {vr(OF+4*n,4)}, v7, s[8:11], s53 offen {SC}")
            NLD.append(1)
        else:
            A(f"s_add_u32 s53, s52, {10240*(i-8)}")
            A(f"buffer_load_dwordx2 {vr(OF+4*n,2)}, v8, s[8:11], s53 offen {SC}")
            A(f"buffer_load_dwordx2 {vr(OF+4*n+2,2)}, v8, s[8:11], s53 offen offset:1280 {SC}")
            NLD.append(2)
    A("v_mov_b32 v166, 0")
    for n, i in enumerate(ORDER):
        slot = n % 3
        if n == 0:
            A(f"s_waitcnt vmcnt({sum(NLD[n+1:])}) lgkmcnt(0)")
        else:
            younger = sum((4 if ORDER[k] < 4 else 5) for k in (n + 1, n + 2) if 3 <= k < 10)
            A(f"s_waitcnt vmcnt({sum(NLD[n+1:])}) lgkmcnt({younger})")
        for cb in range(5):
            acc = vr(ACC + 4 * cb, 4)
            c = "0" if n == 0 else acc
            w = vr(16 + 4 * i, 4) if (i < 4 and cb == 0) else vr(WF + 20 * slot + 4 * cb, 4)
            A(f"v_mfma_f32_16x16x32_bf16 {acc}, {w}, {vr(OF+4*n,4)}, {c}")
        if n + 3 < 10:
            wo_read(ORDER[n + 3], slot, skip0=(ORDER[n + 3] < 4))
        A(f"v_max3_u32 v166, v{OF+4*n}, v{OF+4*n+1}, v166")
        A(f"v_max3_u32 v166, v{OF+4*n+2}, v{OF+4*n+3}, v166")
    A("""
v_cmp_eq_u32 vcc, -1, v166
s_add_u32 s69, s69, 1
s_cmp_gt_u32 s69, 0x4000
s_cbranch_vccz K3_VALID
s_cbranch_scc1 K3_VALID
""")
    for n in range(3):
        wo_read(ORDER[n], n)
    A("s_branch K3_RETRY")
    A.label("K3_VALID")
    if P3:
        stamp(A, 1)
    A("s_cmp_eq_u32 s68, 1")
    A("s_cbranch_scc1 K2_HAVEY")
    y_loads(A)
    A("s_waitcnt vmcnt(3)")
    A.label("K2_HAVEY")
    A(f"""
s_mul_i32 s56, s22, 3072
s_add_u32 s56, s56, {SLOT - 8192}
v_add_u32 v9, s56, v3
s_xor_b32 s57, s22, 4
s_mul_i32 s57, s57, 3072
s_add_u32 s57, s57, {SLOT - 8192}
v_add_u32 v10, s57, v3
s_nop 1
s_cmp_eq_u32 s24, 0
s_cbranch_scc0 K3_X1
""")
    for j in range(2):
        A(f"ds_write_b128 v9, {vr(ACC+12+4*j,4)} offset:{1024*j}")
    A("s_branch K3_X2")
    A.label("K3_X1")
    for j in range(3):
        A(f"ds_write_b128 v9, {vr(ACC+4*j,4)} offset:{1024*j}")
    A("s_nop 4")
    for i in range(8):
        A(f"v_mov_b32 v{ACC+i}, v{ACC+12+i}")
    A.label("K3_X2")
    A(f"""
v_mul_f32 v{GL}, 0xbfb8aa3b, v{GL}
v_exp_f32 v{GL}, v{GL}
s_nop 0
v_add_f32 v{GL}, 1.0, v{GL}
v_rcp_f32 v{GL}, v{GL}
s_nop 0
v_sub_f32 v{GL+1}, 1.0, v{GL}
""")
    A("s_waitcnt lgkmcnt(0)")
    A("s_barrier")
    if P3:
        stamp(A, 2)
    for j in range(3):
        A(f"ds_read_b128 {vr(52+4*j,4)}, v10 offset:{1024*j}")
    A("s_waitcnt lgkmcnt(0)")
    for i in range(12):
        A(f"v_add_f32 v{ACC+i}, v{ACC+i}, v{52+i}")
    for i in range(12):
        A(f"v_mul_f32 v{ACC+i}, v{ACC+i}, v{GL+1}")
    A("s_cmp_ge_u32 s21, 4")
    A("s_waitcnt vmcnt(0)")
    A("s_cbranch_scc1 K3_REV")
    for i in range(12):
        A(f"v_fmac_f32 v{ACC+i}, v{YR+i}, v{GL}")
    A("s_branch K3_ST")
    A.label("K3_REV")
    for i in range(12):
        A(f"v_fmac_f32 v{ACC+i}, v{YR+11-i}, v{GL}")
    A.label("K3_ST")
    for i in range(6):
        A(f"v_cvt_pk_bf16_f32 v{16+i}, v{ACC+2*i}, v{ACC+2*i+1}")
    A("""
buffer_store_dwordx2 v[16:17], v11, s[12:15], 0 offen
buffer_store_dwordx2 v[18:19], v11, s[12:15], 0 offen offset:32
s_cmp_eq_u32 s24, 0
s_cbranch_scc0 K3_DONE
buffer_store_dwordx2 v[20:21], v11, s[12:15], 0 offen offset:64
K3_DONE:
""")
    prof_end(A, 2)
    A("s_endpgm")

    A.label("K2_AUX")
    A(f"""
s_sub_u32 s22, s22, 8
s_mul_i32 s46, s22, 5120
v_add_u32 v6, s46, v3
v_add_u32 v7, 4096, v6
s_mov_b32 m0, s46
s_waitcnt lgkmcnt(0)
s_mov_b32 s8, s4
s_and_b32 s9, s5, 0xffff
""")
    for q in range(4):
        A(f"buffer_load_dwordx4 v6, s[8:11], s27 offen offset:{1024*q} lds")
    A("s_add_u32 m0, m0, 4096")
    A("s_cmp_eq_u32 s22, 3")
    A(f"buffer_load_dwordx4 v7, s[8:11], s27 offen lds")
    A("s_cbranch_scc0 K2_A0")
    A(f"buffer_load_dwordx4 v7, s[8:11], s27 offen offset:1024 lds")
    A.label("K2_A0")
    A(f"""
s_mul_i32 s47, s21, 102400
s_add_u32 s47, s47, {WOT}
s_lshl_b32 s33, s22, 2
s_add_u32 s33, s33, {PROG + 32}
v_mov_b32 v6, s33
v_and_b32 v7, 3, v0
v_lshlrev_b32 v7, 2, v7
v_add_u32 v7, {PROG + 32}, v7
v_mov_b32 v146, 0
ds_write_b32 v6, v146
""")

    def wot_dma(f0, n):
        A(f"s_lshl_b32 s56, s22, 10")
        A(f"s_add_u32 s57, s56, s47")
        A(f"s_add_u32 s57, s57, {f0*1024}")
        A(f"s_add_u32 s58, s56, {WOTL + f0*1024}")
        for k in range(n):
            A("s_mov_b32 m0, s58")
            A("s_add_u32 s58, s58, 4096")
            A(f"buffer_load_dwordx4 v3, s[8:11], s57 offen lds")
            A("s_add_u32 s57, s57, 4096")
            if k >= 3:
                A("s_waitcnt vmcnt(3)")

    def aux_sync(val, tag):
        A(f"""
v_mov_b32 v146, {val}
ds_write_b32 v6, v146
{tag}:
ds_read_b32 v147, v7
s_waitcnt lgkmcnt(0)
v_cmp_le_u32 vcc, {val}, v147
s_nop 0
s_cmp_eq_u64 vcc, exec
s_cbranch_scc1 {tag}_X
s_sleep 4
s_branch {tag}
{tag}_X:
""")

    A("""
s_cmp_eq_u32 s22, 1
s_cbranch_scc1 K2_WOTW
s_cmp_ge_u32 s22, 2
s_cbranch_scc1 K2_FNW
""")
    A(f"""
v_and_b32 v7, 7, v0
v_lshlrev_b32 v7, 2, v7
v_add_u32 v7, {PROG}, v7
s_add_u32 s41, s27, {CHUNK}
s_mov_b32 s40, {SLOT}
s_mov_b32 s42, 1
s_waitcnt vmcnt(0) lgkmcnt(0)
s_barrier
K2_LDLOOP:
s_cmp_lt_u32 s42, 3
s_cbranch_scc1 K2_LDGO
s_sub_u32 s43, s42, 1
K2_LDSPIN:
ds_read_b32 v147, v7
s_waitcnt lgkmcnt(0)
v_cmp_le_u32 vcc, s43, v147
s_nop 0
s_cmp_eq_u64 vcc, exec
s_cbranch_scc1 K2_LDGO
s_sleep 2
s_branch K2_LDSPIN
K2_LDGO:
s_mov_b32 s44, s41
s_mov_b32 m0, s40
""")
    for q in range(21):
        if q and q % 4 == 0:
            A("s_add_u32 m0, m0, 4096")
            A("s_add_u32 s44, s44, 4096")
        elif q == 0:
            A("s_nop 0")
        A(f"buffer_load_dwordx4 v3, s[8:11], s44 offen offset:{1024*(q%4)} lds")
    A(f"""
s_add_u32 s41, s41, {CHUNK}
s_add_u32 s40, s40, {SLOT}
s_cmp_eq_u32 s40, {3*SLOT}
s_cselect_b32 s40, 0, s40
s_add_u32 s42, s42, 1
v_mov_b32 v146, s42
s_waitcnt vmcnt(0)
ds_write_b32 v6, v146
s_cmp_lt_u32 s42, 8
s_cbranch_scc1 K2_LDLOOP
K2_LDFIN:
ds_read_b32 v147, v7
s_waitcnt lgkmcnt(0)
v_cmp_le_u32 vcc, 8, v147
s_nop 0
s_cmp_eq_u64 vcc, exec
s_cbranch_scc1 K2_LDFIN_X
s_sleep 2
s_branch K2_LDFIN
K2_LDFIN_X:
v_mov_b32 v146, 9
ds_write_b32 v6, v146
s_mul_i32 s34, s20, 81920
s_add_u32 s34, s34, {OIMG + 1276}
v_mul_u32_u24 v4, 1280, v0
v_add_u32 v4, s34, v4
s_mov_b32 s39, 0
s_waitcnt lgkmcnt(0)
s_barrier
K2_POLL:
s_sleep {PSLEEP}
buffer_load_dword v12, v4, s[8:11], 0 offen {SC}
s_add_u32 s39, s39, 1
s_waitcnt vmcnt(0)
v_cmp_eq_u32 vcc, -1, v12
s_cmp_gt_u32 s39, 0x8000
s_cbranch_scc1 K2_POLL_X
s_cbranch_vccnz K2_POLL
K2_POLL_X:
s_barrier
s_branch K2_AUXEND
""")
    A.label("K2_WOTW")
    A(f"""
v_and_b32 v7, 1, v0
v_lshlrev_b32 v7, 2, v7
v_add_u32 v7, {PROG + 40}, v7
v_mov_b32 v13, {PROG + 32}
s_waitcnt vmcnt(0) lgkmcnt(0)
s_barrier
K2_WWAIT:
s_sleep 16
ds_read_b32 v14, v13
s_waitcnt lgkmcnt(0)
v_cmp_le_u32 vcc, {WSTART}, v14
s_nop 1
s_cbranch_vccz K2_WWAIT
s_add_u32 s57, s47, {36*1024}
s_mov_b32 s58, {WOTL + 36*1024}
s_mov_b32 s59, 16
K2_WLOOP:
s_mov_b32 m0, s58
s_add_u32 s58, s58, 4096
""")
    for q in range(4):
        A(f"buffer_load_dwordx4 v3, s[8:11], s57 offen offset:{1024*q} lds")
    A(f"""
s_add_u32 s57, s57, 4096
s_sub_u32 s59, s59, 1
s_waitcnt vmcnt(4)
s_cmp_lg_u32 s59, 0
s_cbranch_scc1 K2_WLOOP
s_cmp_eq_u32 s58, {WOTL + 36*1024}
s_cbranch_scc1 K2_WDONE
K2_WSPIN:
ds_read_b32 v147, v7
s_waitcnt lgkmcnt(0)
v_cmp_le_u32 vcc, 2, v147
s_nop 0
s_cmp_eq_u64 vcc, exec
s_cbranch_scc1 K2_WLATE
s_sleep 8
s_branch K2_WSPIN
K2_WLATE:
s_add_u32 s57, s47, {4*1024}
s_mov_b32 s58, {WOTL + 4*1024}
s_mov_b32 s59, 8
s_branch K2_WLOOP
K2_WDONE:
s_lshl_b32 s35, s20, 1
s_sub_u32 s36, 62, s35
s_cmp_lt_u32 s20, 16
s_cselect_b32 s35, s35, s36
s_mul_i32 s36, s21, 80
s_sub_u32 s37, 561, s36
s_cmp_lt_u32 s21, 4
s_cselect_b32 s36, s36, s37
s_lshr_b32 s36, s36, 6
v_bfe_u32 v5, v0, 2, 2
v_min_u32 v5, 2, v5
v_bfe_u32 v9, v0, 4, 2
v_min_u32 v9, 2, v9
v_add_u32 v5, s36, v5
v_min_u32 v5, 5, v5
v_add_u32 v9, s35, v9
v_lshlrev_b32 v9, 7, v9
v_lshl_add_u32 v5, v5, 4, v9
v_and_b32 v9, 1, v0
v_lshl_add_u32 v5, v9, 2, v5
v_add_u32 v5, {FLAGY}, v5
s_mov_b32 s39, 0
s_mov_b32 s40, 0
v_mov_b32 v13, {PROG + 32}
K2_POLLY:
buffer_load_dword v12, v5, s[8:11], 0 offen {SC}
ds_read_b32 v14, v13
s_add_u32 s39, s39, 1
s_waitcnt vmcnt(0) lgkmcnt(0)
v_cmp_eq_u32 vcc, 1, v12
s_cmp_gt_u32 s39, 0x20000
s_cbranch_scc1 K2_POLLY_X
s_cmp_eq_u64 vcc, exec
s_cbranch_scc1 K2_POLLY_OK
v_cmp_le_u32 vcc, 9, v14
s_cmp_eq_u32 s40, 1
s_cbranch_scc1 K2_POLLY_S
s_cbranch_vccz K2_POLLY_S
s_mov_b32 s40, 1
s_barrier
s_branch K2_POLLY
K2_POLLY_S:
s_sleep 8
s_branch K2_POLLY
K2_POLLY_OK:
v_mov_b32 v146, 3
ds_write_b32 v6, v146
K2_POLLY_X:
s_waitcnt lgkmcnt(0)
""")
    stamp(A, 4)
    A("""
s_cmp_eq_u32 s40, 1
s_cbranch_scc1 K2_AUXEND
s_barrier
s_branch K2_AUXEND
""")

    A.label("K2_FNW")
    A("""
s_mul_i32 s25, s19, 43
s_lshr_b32 s25, s25, 8
s_mul_i32 s26, s25, 6
s_sub_u32 s26, s19, s26
s_lshl_b32 s23, s18, 2
s_add_u32 s25, s25, s23
s_cmp_lt_u32 s19, 24
s_cbranch_scc1 KF_JOB
s_mov_b32 s25, 32
s_mov_b32 s26, s18
s_cmp_gt_u32 s19, 24
s_cbranch_scc1 KF_NOJOB
s_cmp_ge_u32 s26, 6
s_cbranch_scc1 KF_NOJOB
KF_JOB:
""")
    ACC, CF, AF = 16, 48, 64
    A(f"""
s_sub_u32 s23, s22, 2
s_mov_b32 s30, {FAC}
s_mov_b32 s31, {FAS}
s_cmp_eq_u32 s23, 0
s_cselect_b32 s60, s52, s54
s_cselect_b32 s61, s53, s55
s_cselect_b32 s30, s30, s31
s_and_b32 s61, s61, 0xffff
s_mov_b32 s62, {S*S*2}
s_mov_b32 s63, 0x00020000
s_lshl_b32 s28, s25, 5
v_lshrrev_b32 v4, 3, v0
v_add_u32 v4, s28, v4
v_lshlrev_b32 v4, 12, v4
v_and_b32 v5, 7, v0
v_lshrrev_b32 v9, 4, v0
v_xor_b32 v5, v5, v9
v_lshl_add_u32 v8, v5, 4, v4
v_xor_b32 v9, 64, v8
v_add_u32 v9, 0x8000, v9
v_add_u32 v10, 0x10000, v8
v_add_u32 v11, 0x10000, v9
s_lshl_b32 s33, s23, 14
s_add_u32 s33, s33, {XR}
v_bfe_u32 v4, v1, 1, 3
v_lshlrev_b32 v5, 2, v2
v_lshl_add_u32 v160, v1, 7, s33
""")
    for u in range(4):
        A(f"v_add_u32 v161, {u}, v5")
        A("v_xor_b32 v161, v161, v4")
        A(f"v_lshl_add_u32 v{12+u}, v161, 4, v160")
    A(f"""
s_mov_b32 s29, 0
s_lshl_b32 s31, s26, 11
s_add_u32 s30, s30, s31
v_add_u32 v4, s28, v1
v_lshlrev_b32 v5, 12, v4
v_lshl_add_u32 v5, v2, 4, v5
v_add_u32 v160, s33, v3
v_and_b32 v64, 15, v0
v_lshrrev_b32 v65, 4, v0
s_lshl_b32 s34, s23, 4
v_add_u32 v65, s34, v65
v_lshrrev_b32 v66, 1, v64
v_lshlrev_b32 v66, 10, v66
v_and_b32 v67, 1, v64
v_lshl_add_u32 v67, v67, 5, v65
v_lshl_add_u32 v161, v67, 4, v66
v_add_u32 v161, {XR}, v161
v_add_u32 v65, s28, v65
s_movk_i32 s34, {Y_PITCH}
v_mul_u32_u24 v162, s34, v65
v_lshl_add_u32 v162, v64, 4, v162
s_lshl_b32 s35, s26, 8
s_add_u32 s36, s35, {YP}
s_add_u32 s35, s35, {YM}
s_mov_b32 s64, 0x00ff00ff
s_cmp_eq_u32 s26, 5
s_cselect_b32 s64, s64, -1
s_cselect_b32 s32, s23, 0
s_mov_b32 s65, s64
v_and_b32 v7, 1, v0
v_lshlrev_b32 v7, 2, v7
v_add_u32 v7, {PROG + 40}, v7
""")
    for i in range(32):
        A(f"v_mov_b32 v{ACC+i}, 0")
    A("s_waitcnt vmcnt(0) lgkmcnt(0)")
    A("s_barrier")
    A("s_cmp_eq_u32 s32, 1")
    A("s_cbranch_scc1 KF_NO65")

    def issue_c(buf):
        for q in range(4):
            A(f"s_add_u32 m0, s33, {buf*4096 + q*1024}")
            A("s_nop 0")
            A(f"buffer_load_dwordx4 v{8+q}, s[60:63], s29 offen lds")
        A("s_add_u32 s29, s29, 128")

    def issue_a(st):
        for u in range(4):
            reg = AF + 32 * st + 8 * u
            A(f"buffer_load_dwordx4 {vr(reg,4)}, v3, s[8:11], s30 offen")
            A(f"buffer_load_dwordx4 {vr(reg+4,4)}, v3, s[8:11], s30 offen offset:1024")
            A(f"s_add_u32 s30, s30, {FA_KS}")

    def rnd(st):
        A("s_waitcnt vmcnt(24)")
        for u in range(4):
            A(f"ds_read_b128 {vr(CF+4*u,4)}, v{12+u} offset:{st*4096}")
        for u in range(4):
            A(f"s_waitcnt lgkmcnt({3-u})")
            reg = AF + 32 * st + 8 * u
            for b in range(2):
                acc = vr(ACC + 16 * b, 16)
                A(f"v_mfma_f32_32x32x16_bf16 {acc}, {vr(reg+4*b,4)}, {vr(CF+4*u,4)}, {acc}")
                A(f"buffer_load_dwordx4 {vr(reg+4*b,4)}, v3, s[8:11], s30 offen offset:{1024*b}")
            A(f"s_add_u32 s30, s30, {FA_KS}")
        issue_c(st)

    A("buffer_load_dwordx4 v[164:167], v5, s[60:63], 0 offen offset:2048")
    for st in range(3):
        issue_c(st); issue_a(st)
    A("s_mov_b32 s42, 0")
    stamp(A, 1)
    A.label("KF_LOOP")
    for st in range(3):
        rnd(st)
    A("""
s_add_u32 s42, s42, 1
s_cmp_lt_u32 s42, 5
s_cbranch_scc1 KF_LOOP
s_waitcnt vmcnt(24)
""")
    for u in range(4):
        A(f"ds_read_b128 {vr(CF+4*u,4)}, v{12+u}")
    for u in range(4):
        A(f"s_waitcnt lgkmcnt({3-u})")
        for b in range(2):
            acc = vr(ACC + 16 * b, 16)
            A(f"v_mfma_f32_32x32x16_bf16 {acc}, {vr(AF+8*u+4*b,4)}, {vr(CF+4*u,4)}, {acc}")
    stamp(A, 2)
    A(f"""
s_cmp_eq_u32 s23, 0
s_cbranch_scc0 KF_NO65
s_waitcnt vmcnt(12)
v_mfma_f32_32x32x16_bf16 {vr(ACC,16)}, {vr(AF+32,4)}, v[164:167], {vr(ACC,16)}
v_mfma_f32_32x32x16_bf16 {vr(ACC+16,16)}, {vr(AF+36,4)}, v[164:167], {vr(ACC+16,16)}
KF_NO65:
s_setprio 3
s_waitcnt vmcnt(0)
s_nop 15
""")
    for q in range(8):
        A(f"ds_write_b128 v160, {vr(ACC+4*q,4)} offset:{1024*q}")
    A("s_waitcnt lgkmcnt(0)")
    aux_sync(1, "KF_S1")
    for w in range(2):
        for j in range(4):
            A(f"ds_read_b128 {vr(48+16*w+4*j,4)}, v161 offset:{16384*w + 64*j}")
    A("s_waitcnt lgkmcnt(0)")
    A("v_mov_b32 v146, 2")
    A("ds_write_b32 v6, v146")
    for i in range(16):
        A(f"v_sub_f32 v{80+i}, v{48+i}, v{64+i}")
        A(f"v_add_f32 v{96+i}, v{48+i}, v{64+i}")
    A("s_mov_b64 exec, s[64:65]")
    for j in range(4):
        A(f"buffer_store_dwordx4 {vr(80+4*j,4)}, v162, s[8:11], s35 offen {SC}")
        A(f"buffer_store_dwordx4 {vr(96+4*j,4)}, v162, s[8:11], s36 offen {SC}")
        A(f"s_add_u32 s35, s35, {4*Y_PITCH}")
        A(f"s_add_u32 s36, s36, {4*Y_PITCH}")
    A(f"""
s_lshl_b32 s34, s25, 7
s_lshl_b32 s35, s26, 4
s_add_u32 s34, s34, s35
s_lshl_b32 s35, s23, 2
s_add_u32 s34, s34, s35
s_add_u32 s34, s34, {FLAGY}
s_mov_b64 exec, 1
v_mov_b32 v4, 0
v_mov_b32 v5, 1
s_waitcnt vmcnt(0) lgkmcnt(0)
buffer_store_dword v5, v4, s[8:11], s34 offen {SC}
s_mov_b64 exec, -1
""")
    stamp(A, 3)
    A("s_branch K2_AUXEND")
    A.label("KF_NOJOB")
    A("""
v_mov_b32 v146, 2
ds_write_b32 v6, v146
s_waitcnt vmcnt(0) lgkmcnt(0)
s_barrier
""")
    A.label("K2_AUXEND")
    prof_end(A, 1)
    A.label("K2_EXIT")
    A("s_endpgm")
```

```python
from common import *
import struct, math

def f32hex(x):
    return "0x%08x" % struct.unpack("<I", struct.pack("<f", x))[0]

STF = os.environ.get("K1_STF", "")
CPF = os.environ.get("K1_CPF", "0") == "1"
SENTF = os.environ.get("K1_SENTF", "sc1")
PFM = os.environ.get("K1_PREFETCH", "0")
QSCALE = (DH ** -0.5) * math.log2(math.e)

ACC = 16
SET = [96, 120]
XB, WB = 144, 148
XA, WA = 150, 154
K1_VGPR = 160
K1_LDS = 65536 + 4 * 20480


def k1_reads(kind, kap, st):
    b0 = SET[st]
    out = [f"ds_read_b128 {vr(b0,4)}, v{XA+kap}"]
    for b in range(5):
        for rd in range(2):
            if kind == 0:
                a = WA if b < 4 else WA + 1
                off = (16 * kap + 4 * rd) * 320 + (40 * b if b < 4 else 0)
            else:
                a = WA
                off = (16 * kap + 4 * rd) * 320 + 64 * b
            out.append(f"ds_read_b64_tr_b16 {vr(b0+4+4*b+2*rd,2)}, v{a} offset:{off}")
    return out


def k1_mfmas(kind, st):
    b0 = SET[st]
    out = []
    for b in range(5):
        acc = vr(ACC + 16 * b, 16)
        xf, wf = vr(b0, 4), vr(b0 + 4 + 4 * b, 4)
        if kind == 0:
            out.append(f"v_mfma_f32_32x32x16_bf16 {acc}, {wf}, {xf}, {acc}")
        else:
            out.append(f"v_mfma_f32_32x32x16_bf16 {acc}, {xf}, {wf}, {acc}")
    return out


D1 = os.environ.get("K1_DIAG", "")


def interleave(A, mf, rd, extra=()):
    if D1 == "nocomp":
        for x in extra:
            A(x)
        return
    if D1 == "nomfma":
        for x in list(rd) + list(extra):
            A(x)
        return
    chunks = [rd[0:4], rd[4:8], rd[8:11], list(extra), []]
    waits = [8, 10, 12, 13, 11]
    for m, c, w in zip(mf, chunks, waits):
        A(f"s_waitcnt lgkmcnt({w})")
        A(m)
        for x in c:
            A(x)


def k1_mainloop(A, kind):
    L = f"K1_LOOP{kind}"
    A("v_and_b32 v1, 31, v0")
    A("v_lshrrev_b32 v2, 5, v0")
    A("s_lshl_b32 s48, s34, 12")
    A("v_lshlrev_b32 v3, 7, v1")
    A("v_add_u32 v3, s48, v3")
    A("v_bfe_u32 v4, v1, 1, 3")
    for kap in range(4):
        A(f"v_add_u32 v5, {2*kap}, v2")
        A("v_xor_b32 v5, v5, v4")
        A(f"v_lshl_add_u32 v{XB+kap}, v5, 4, v3")
    A("v_bfe_u32 v5, v0, 4, 1")
    A("v_bfe_u32 v6, v0, 2, 2")
    A("v_and_b32 v7, 3, v0")
    A("v_lshl_add_u32 v8, v2, 3, v6")
    A("v_mul_u32_u24 v8, 320, v8")
    A("v_add_u32 v8, 0x10000, v8")
    if kind == 1:
        A("v_lshl_add_u32 v9, v5, 5, v8")
        A(f"v_lshl_add_u32 v{WB}, v7, 3, v9")
        A(f"v_mov_b32 v{WB+1}, v{WB}")
    else:
        A("v_mul_u32_u24 v9, 160, v5")
        A("v_add_u32 v9, v9, v8")
        A("v_and_b32 v10, 1, v7")
        A("v_lshl_add_u32 v9, v10, 4, v9")
        A("v_lshrrev_b32 v10, 1, v7")
        A(f"v_lshl_add_u32 v{WB}, v10, 3, v9")
        A("v_lshl_add_u32 v10, v5, 2, v7")
        A("v_mul_u32_u24 v10, 40, v10")
        A("v_add3_u32 v%d, v10, v8, 32" % (WB + 1))
    for i in range(6):
        A(f"v_mov_b32 v{XA+i}, v{XB+i}")
    for i in range(80):
        A(f"v_mov_b32 v{ACC+i}, 0")
    for i in range(24):
        A(f"v_mov_b32 v{SET[1]+i}, 0")
    A("s_mov_b32 s60, 0")
    stamp(A, 1)
    if PROF or PFM == "3":
        A("s_barrier")
        stamp(A, 2)
        if PFM == "3":
            A("s_cmp_lt_u32 s34, 2")
            A(f"s_cbranch_scc1 {L}_B")
            A("buffer_load_dword v158, v156, s[8:11], s66 offen")
            A("buffer_load_dword v159, v157, s[12:15], 0 offen")
        A(f"s_branch {L}_B")
    A.label(L)
    A("s_barrier")
    A.label(L + "_B")
    interleave(A, k1_mfmas(kind, 1), k1_reads(kind, 0, 0),
               extra=["s_add_u32 s60, s60, 1", "s_and_b32 s61, s60, 3", "s_lshl_b32 s62, s61, 14", "s_mul_i32 s63, s61, 20480"])
    interleave(A, k1_mfmas(kind, 0), k1_reads(kind, 1, 1))
    interleave(A, k1_mfmas(kind, 1), k1_reads(kind, 2, 0))
    upd = [f"v_add_u32 v{XA+i}, s62, v{XB+i}" for i in range(4)] + [f"v_add_u32 v{WA+i}, s63, v{WB+i}" for i in range(2)]
    interleave(A, k1_mfmas(kind, 0), k1_reads(kind, 3, 1), extra=upd + ["s_cmp_lt_u32 s60, 10"])
    A(f"s_cbranch_scc1 {L}")
    stamp(A, 3)
    for b, m in enumerate(k1_mfmas(kind, 1)):
        A(f"s_waitcnt lgkmcnt({8-2*b})")
        A(m)


def gen_k1(A):
    A(khead("k1_kernel"))
    A(f"""
s_cmp_ge_u32 s2, 256
s_cbranch_scc1 K1_EXIT
""")
    prof_begin(A)
    A(f"""
s_load_dwordx2 s[4:5], s[0:1], {KA_X}
s_load_dwordx4 s[20:23], s[0:1], {KA_HRE}
s_load_dwordx4 s[24:27], s[0:1], {KA_WQKV}
s_load_dwordx2 s[28:29], s[0:1], {KA_GATE}
s_load_dwordx2 s[30:31], s[0:1], {KA_WS}
v_lshrrev_b32 v1, 6, v0
v_and_b32 v0, 63, v0
s_and_b32 s48, s2, 7
s_lshr_b32 s49, s2, 3
v_readfirstlane_b32 s34, v1
s_and_b32 s50, s48, 1
s_lshl_b32 s50, s50, 3
s_and_b32 s51, s49, 7
s_add_u32 s32, s50, s51
s_lshr_b32 s35, s48, 1
s_lshl_b32 s50, s35, 2
s_lshr_b32 s52, s49, 3
s_add_u32 s33, s50, s52
s_cmp_lt_u32 s34, 4
s_cbranch_scc1 K1_COMPUTE
""")
    A("""
s_mul_i32 s38, s52, 3
s_add_u32 s38, s38, s51
s_add_u32 s38, s38, s35
s_sub_u32 s39, s38, 10
s_cmp_ge_u32 s38, 10
s_cselect_b32 s38, s39, s38
""")
    NPH = int(os.environ.get("K1_NPH", "4"))
    if NPH == 1:
        A("s_mov_b32 s38, 0")
    elif NPH == 2:
        A("s_add_u32 s38, s51, s52")
        A("s_and_b32 s38, s38, 1")
        A("s_mul_i32 s38, s38, 5")
    elif NPH == 4:
        A("s_add_u32 s38, s51, s52")
        A("s_and_b32 s38, s38, 3")
        A("s_mul_i32 s38, s38, 5")
        A("s_lshr_b32 s38, s38, 1")
    elif NPH == 3:
        A("s_add_u32 s38, s51, s52")
        A("s_mul_i32 s39, s38, 86")
        A("s_lshr_b32 s39, s39, 8")
        A("s_mul_i32 s39, s39, 3")
        A("s_sub_u32 s38, s38, s39")
        A("s_mul_i32 s38, s38, 7")
        A("s_lshr_b32 s38, s38, 1")
    A("""
s_movk_i32 s54, 1280
s_movk_i32 s55, 3840
s_and_b32 s56, s33, 1
s_cmp_eq_u32 s35, 3
s_cselect_b32 s36, s54, s55
s_cselect_b32 s37, s56, s33
s_mul_i32 s37, s37, 320
s_sub_u32 s34, s34, 4
v_lshrrev_b32 v1, 3, v0
v_and_b32 v2, 7, v0
v_lshrrev_b32 v3, 4, v0
v_xor_b32 v4, v2, v3
v_lshlrev_b32 v4, 4, v4
v_xor_b32 v5, 64, v4
s_movk_i32 s48, 1280
s_cmp_eq_u32 s35, 3
s_cbranch_scc1 K1_LD_F
s_lshl_b32 s49, s32, 7
s_lshl_b32 s50, s34, 5
s_add_u32 s49, s49, s50
v_add_u32 v6, s49, v1
v_mul_u32_u24 v6, s48, v6
v_add_u32 v10, v6, v4
v_add_u32 v11, v6, v5
v_add_u32 v11, 10240, v11
v_add_u32 v12, 20480, v10
v_add_u32 v13, 20480, v11
s_branch K1_LD_W
K1_LD_F:
s_lshl_b32 s49, s32, 6
s_lshl_b32 s50, s34, 3
s_add_u32 s49, s49, s50
v_and_b32 v6, 3, v1
v_and_b32 v7, 32, v0
v_add3_u32 v6, v6, v7, s49
v_add_u32 v7, 4, v6
v_sub_u32 v8, 2048, v6
v_sub_u32 v9, 2048, v7
v_cmp_eq_u32 vcc, 0, v6
v_mov_b32 v14, 1024
v_mul_u32_u24 v6, s48, v6
v_mul_u32_u24 v7, s48, v7
v_cndmask_b32 v8, v8, v14, vcc
v_mul_u32_u24 v9, s48, v9
v_mul_u32_u24 v8, s48, v8
v_add_u32 v10, v6, v4
v_add_u32 v11, v7, v5
v_add_u32 v12, v8, v4
v_add_u32 v13, v9, v5
K1_LD_W:
s_mul_i32 s49, s34, 320
v_add_u32 v6, s49, v0
""")
    for q in range(5):
        if q:
            A(f"v_add_u32 v6, 64, v6")
        A("v_mul_u32_u24 v7, 3277, v6")
        A("v_lshrrev_b32 v7, 16, v7")
        A("v_mul_u32_u24 v8, 20, v7")
        A("v_sub_u32 v8, v6, v8")
        A("v_mul_u32_u24 v7, s36, v7")
        A("v_lshl_add_u32 v8, v8, 4, s37")
        A(f"v_add_u32 v{14+q}, v7, v8")
    A("""
s_lshl_b32 s52, s34, 12
s_mul_i32 s53, s34, 5120
s_lshl_b32 s55, s36, 6
s_lshl_b32 s51, s38, 7
s_mul_i32 s54, s38, s55
s_mov_b32 s56, 819200
s_mov_b32 s57, 2457600
s_mov_b32 s10, 2621440
s_mov_b32 s11, 0x00020000
s_mov_b32 s15, 0x00020000
s_waitcnt lgkmcnt(0)
s_mov_b32 s8, s4
s_and_b32 s9, s5, 0xffff
s_cmp_lt_u32 s33, 14
s_cselect_b32 s6, s20, s22
s_cselect_b32 s7, s21, s23
s_cmp_eq_u32 s35, 3
s_cselect_b32 s12, s6, s24
s_cselect_b32 s13, s7, s25
s_cselect_b32 s14, s56, s57
s_and_b32 s13, s13, 0xffff
""")

    def issue(c):
        slot = c & 3
        for q in range(4):
            A(f"s_add_u32 m0, s52, {slot*16384 + q*1024}")
            A("s_nop 0")
            if D1 != "noload":
                A(f"buffer_load_dwordx4 v{10+q}, s[8:11], s51 offen lds")
        for q in range(5):
            A(f"s_add_u32 m0, s53, {65536 + slot*20480 + q*1024}")
            A("s_nop 0")
            if D1 != "noload":
                A(f"buffer_load_dwordx4 v{14+q}, s[12:15], s54 offen lds")
        A("s_add_u32 s38, s38, 1")
        A("s_cmp_eq_u32 s38, 10")
        A("s_cselect_b32 s38, 0, s38")
        A("s_lshl_b32 s51, s38, 7")
        A("s_mul_i32 s54, s38, s55")

    def side_loads():
        srd(A, 16, 30, WS_SIZE)
        srd(A, 40, 26, D * D * 2)
        srd(A, 44, 28, D * 2)
        A("""
s_lshl_b32 s56, s2, 2
s_add_u32 s56, s56, s34
s_sub_u32 s57, 2048, s56
s_cmp_eq_u32 s56, 0
s_cselect_b32 s57, 1024, s57
s_mul_i32 s58, s56, 1280
s_mul_i32 s59, s57, 1280
v_mul_u32_u24 v20, 20, v0
buffer_load_dwordx4 v[24:27], v20, s[8:11], s58 offen
buffer_load_dword v28, v20, s[8:11], s58 offen offset:16
buffer_load_dwordx4 v[32:35], v20, s[8:11], s59 offen
buffer_load_dword v36, v20, s[8:11], s59 offen offset:16
buffer_load_dwordx4 v[40:43], v20, s[44:47], 0 offen
buffer_load_dword v44, v20, s[44:47], 0 offen offset:16
s_mul_i32 s60, s56, 3277
s_lshr_b32 s60, s60, 16
s_mul_i32 s61, s60, 20
s_sub_u32 s61, s56, s61
v_lshrrev_b32 v21, 4, v0
v_and_b32 v22, 15, v0
s_cmp_lt_u32 s61, 16
s_cbranch_scc0 K1_WOT_HI
s_mul_i32 s62, s61, 40
v_lshrrev_b32 v23, 1, v21
v_mul_u32_u24 v23, 20, v23
v_and_b32 v29, 1, v21
v_lshl_add_u32 v23, v29, 2, v23
v_add_u32 v23, s62, v23
s_movk_i32 s63, 10240
s_branch K1_WOT_GO
K1_WOT_HI:
s_sub_u32 s62, s61, 16
s_mul_i32 s62, s62, 160
s_add_u32 s62, s62, 16
v_mul_u32_u24 v23, 40, v21
v_add_u32 v23, s62, v23
s_movk_i32 s63, 25600
K1_WOT_GO:
v_mul_u32_u24 v23, s48, v23
s_lshl_b32 s60, s60, 5
v_lshl_add_u32 v23, v22, 1, v23
v_add_u32 v23, s60, v23
v_add_u32 v29, s63, v23
""")
        for half, a in ((0, 23), (1, 29)):
            for j in range(4):
                reg = (68 if (j & 1) else 48) + 2 * half + (j >> 1)
                A(f"buffer_load_ushort v{reg}, v{a}, s[40:43], 0 offen offset:{1280*j}")
        if CPF:
            A(f"s_load_dwordx4 s[64:67], s[0:1], {KA_SRE}")
            A("s_lshl_b32 s60, s56, 12")
            A("v_lshlrev_b32 v76, 4, v0")
            A("s_waitcnt lgkmcnt(0)")
            srd(A, 40, 64, S * S * 2)
            srd(A, 44, 66, S * S * 2)
            for sr_ in ("s[40:43]", "s[44:47]"):
                for o in (0, 1024):
                    A(f"buffer_load_dwordx4 v[80:83], v76, {sr_}, s60 offen offset:{o}")

    stamp(A, 1)
    issue(0)
    if PFM == "3":
        A("s_barrier")
    EARLY = os.environ.get("K1_EARLY", "0") == "1"
    if EARLY:
        stamp(A, 2)
        A("s_waitcnt vmcnt(0)")
        stamp(A, 3)
        A("s_barrier")
    issue(1)
    if not EARLY:
        stamp(A, 2)
    NS = 18 if CPF else 14
    DIST = 2
    for c in range(10):
        if DIST == 3:
            n = {0: 9, 1: 18, 2: 18, 3: 18, 4: 18, 5: 18, 6: 18, 7: 18 + NS, 8: 9 + NS, 9: NS}[c]
        else:
            n = {0: 9, 1: 9, 2: 9, 3: 9, 4: 12, 5: 12, 6: 9, 7: 9, 8: 9 + NS, 9: NS}[c]
        if not (EARLY and c == 0):
            A(f"s_waitcnt vmcnt({n})")
            if c in (0, 1, 4, 9):
                stamp(A, {0: 3, 1: 4, 4: 5, 9: 6}[c])
            A("s_barrier")
        if DIST == 3:
            if c == 0:
                issue(2)
            if c + 3 <= 9:
                issue(c + 3)
            if c == 6:
                side_loads()
        else:
            if c + 2 <= 9:
                issue(c + 2)
            if c == 3:
                srd(A, 16, 30, WS_SIZE)
                A(f"""
s_lshl_b32 s49, s2, 2
s_add_u32 s49, s49, s34
s_mul_i32 s49, s49, 2560
s_add_u32 s49, s49, {OIMG}
v_lshlrev_b32 v84, 4, v0
v_lshlrev_b32 v85, 3, v0
v_mov_b32 v88, -1
v_mov_b32 v89, -1
v_mov_b32 v90, -1
v_mov_b32 v91, -1
buffer_store_dwordx4 v[88:91], v84, s[16:19], s49 offen {SENTF}
buffer_store_dwordx4 v[88:91], v84, s[16:19], s49 offen offset:1024 {SENTF}
buffer_store_dwordx2 v[88:89], v85, s[16:19], s49 offen offset:2048 {SENTF}
""")
            if c == 7:
                side_loads()
        if c == 9:
            A(f"s_waitcnt vmcnt({4 if CPF else 0})")
            A("v_mov_b32 v56, 0xbf803f80")
            for i in range(4):
                A(f"v_lshl_or_b32 v{48+i}, v{68+i}, 16, v{48+i}")
            xs = [24, 25, 26, 27, 28]
            xm = [32, 33, 34, 35, 36]
            gw = [40, 41, 42, 43, 44]
            for j in range(5):
                for acc, a, b in ((52, xs[j], gw[j]), (53, xm[j], gw[j]), (54, xs[j], 56), (55, xm[j], 56)):
                    cc = "0" if j == 0 else f"v{acc}"
                    A(f"v_dot2_f32_bf16 v{acc}, v{a}, v{b}, {cc}")
            A("s_nop 3")
            for ror in (1, 2, 4, 8):
                for i in range(4):
                    A(f"v_add_f32_dpp v{52+i}, v{52+i}, v{52+i} row_ror:{ror} row_mask:0xf bank_mask:0xf")
                A("s_nop 1")
            for i in range(4):
                A(f"v_add_f32_dpp v{52+i}, v{52+i}, v{52+i} row_bcast:15 row_mask:0xa bank_mask:0xf")
            A("s_nop 1")
            for i in range(4):
                A(f"v_add_f32_dpp v{52+i}, v{52+i}, v{52+i} row_bcast:31 row_mask:0xc bank_mask:0xf")
            A("s_nop 1")
    A(f"""
s_lshl_b32 s60, s56, 10
s_add_u32 s60, s60, {WOT}
v_lshlrev_b32 v20, 4, v0
s_cmp_lt_u32 s56, 800
s_cbranch_scc0 K1_NO_WOT
buffer_store_dwordx4 v[48:51], v20, s[16:19], s60 offen
K1_NO_WOT:
s_cmp_lt_u32 s56, 8
s_cbranch_scc0 K1_NO_FLG
s_lshl_b32 s60, s56, 11
s_add_u32 s60, s60, {FLAGO}
v_mov_b32 v72, 0
v_mov_b32 v73, 0
v_mov_b32 v74, 0
v_mov_b32 v75, 0
buffer_store_dwordx4 v[72:75], v20, s[16:19], s60 offen
buffer_store_dwordx4 v[72:75], v20, s[16:19], s60 offen offset:1024
K1_NO_FLG:
v_mov_b32 v20, 0
v_cmp_eq_u32 vcc, 63, v0
s_and_saveexec_b64 s[64:65], vcc
s_lshl_b32 s60, s56, 2
s_add_u32 s60, s60, {GATE}
s_lshl_b32 s61, s57, 2
s_add_u32 s61, s61, {GATE}
buffer_store_dword v52, v20, s[16:19], s60 offen
buffer_store_dword v53, v20, s[16:19], s61 offen
""")
    A(f"""
s_lshr_b32 s60, s56, 6
s_lshl_b32 s60, s60, 2
s_bfe_u32 s61, s56, 0x20003
s_add_u32 s60, s60, s61
s_mul_i32 s60, s60, {FA_KS}
s_bfe_u32 s61, s56, 0x10005
s_lshl_b32 s61, s61, 9
s_add_u32 s60, s60, s61
s_and_b32 s61, s56, 7
s_lshl_b32 s61, s61, 1
s_add_u32 s60, s60, s61
s_add_u32 s60, s60, {FAC + 10*1024}
s_cmp_eq_u32 s56, 0
s_cbranch_scc1 K1_ALT0
v_add_f32 v54, v54, v55
v_cvt_pk_bf16_f32 v54, v54, v54
buffer_store_short v54, v20, s[16:19], s60 offen
s_branch K1_END
K1_ALT0:
v_cvt_pk_bf16_f32 v54, v54, v54
buffer_store_short v54, v20, s[16:19], s60 offen
v_cvt_pk_bf16_f32 v60, v55, 0
v_mov_b32 v61, 0
v_mov_b32 v62, 0
v_mov_b32 v63, 0
v_mov_b32 v64, 0
s_mov_b32 s60, {FAC + 64*FA_KS + 10*1024}
buffer_store_dwordx4 v[60:63], v20, s[16:19], s60 offen
v_mov_b32 v66, 0
v_mov_b32 v67, 0
v_mov_b32 v65, 0
buffer_store_dwordx4 v[64:67], v20, s[16:19], s60 offen offset:512
""")
    A("s_branch K1_END")
    A.label("K1_COMPUTE")
    if PFM in ("1", "3"):
        A("""
s_movk_i32 s54, 1280
s_movk_i32 s55, 3840
s_and_b32 s56, s33, 1
s_cmp_eq_u32 s35, 3
s_cselect_b32 s36, s54, s55
s_cselect_b32 s37, s56, s33
s_mul_i32 s37, s37, 320
v_and_b32 v1, 31, v0
v_lshrrev_b32 v2, 5, v0
s_cmp_eq_u32 s35, 3
s_cbranch_scc1 K1_PF_F
s_lshl_b32 s49, s32, 7
s_lshl_b32 s50, s52, 5
s_add_u32 s49, s49, s50
v_add_u32 v3, s49, v1
s_branch K1_PF_X
K1_PF_F:
s_lshl_b32 s49, s32, 6
s_lshl_b32 s50, s52, 3
s_add_u32 s49, s49, s50
v_and_b32 v3, 3, v1
v_bfe_u32 v4, v1, 2, 1
v_lshl_add_u32 v3, v4, 5, v3
v_bfe_u32 v4, v1, 3, 1
v_lshl_add_u32 v3, v4, 2, v3
v_add_u32 v3, s49, v3
v_sub_u32 v4, 2048, v3
v_and_b32 v4, 2047, v4
v_cmp_lt_u32 vcc, 15, v1
s_nop 1
v_cndmask_b32 v3, v3, v4, vcc
K1_PF_X:
v_mul_u32_u24 v3, s54, v3
v_lshl_add_u32 v3, v2, 7, v3
s_add_u32 s49, s34, 1
s_lshl_b32 s50, s49, 8
v_bfe_u32 v4, v0, 2, 3
v_lshl_add_u32 v4, v2, 6, v4
s_lshl_b32 s53, s51, 3
s_lshl_b32 s57, s49, 7
s_add_u32 s53, s53, s57
v_add_u32 v4, s53, v4
v_mul_u32_u24 v4, s36, v4
v_and_b32 v5, 3, v0
v_lshlrev_b32 v5, 7, v5
v_min_u32 v5, 316, v5
v_add3_u32 v4, v4, v5, s37
s_mov_b32 s56, 819200
s_mov_b32 s57, 2457600
s_mov_b32 s10, 2621440
s_mov_b32 s11, 0x00020000
s_mov_b32 s15, 0x00020000
s_waitcnt lgkmcnt(0)
s_mov_b32 s8, s4
s_and_b32 s9, s5, 0xffff
s_cmp_lt_u32 s33, 14
s_cselect_b32 s6, s20, s22
s_cselect_b32 s7, s21, s23
s_cmp_eq_u32 s35, 3
s_cselect_b32 s12, s6, s24
s_cselect_b32 s13, s7, s25
s_cselect_b32 s14, s56, s57
s_and_b32 s13, s13, 0xffff
""")
        if PFM == "1":
            A("buffer_load_dword v158, v3, s[8:11], s50 offen")
            A("buffer_load_dword v159, v4, s[12:15], 0 offen")
        else:
            A("""
v_mov_b32 v156, v3
v_mov_b32 v157, v4
s_mov_b32 s66, s50
s_barrier
s_cmp_lt_u32 s34, 2
s_cbranch_scc0 K1_PF_LATER
buffer_load_dword v158, v156, s[8:11], s66 offen
buffer_load_dword v159, v157, s[12:15], 0 offen
K1_PF_LATER:
""")
    if os.environ.get("K1_PREFETCH", "0") == "2":
        A("""
s_lshl_b32 s49, s2, 2
s_add_u32 s49, s49, s34
s_mul_i32 s50, s49, 2560
s_mul_i32 s51, s49, 2400
s_mul_i32 s52, s49, 800
v_lshlrev_b32 v3, 4, v0
v_lshlrev_b32 v4, 3, v0
s_waitcnt lgkmcnt(0)
""")
        srd(A, 8, 4, S * D * 2)
        srd(A, 12, 24, D * 3 * D * 2)
        srd(A, 40, 20, D * D * 2)
        srd(A, 44, 22, D * D * 2)
        A("""
buffer_load_dwordx4 v[156:159], v3, s[12:15], s51 offen
buffer_load_dwordx4 v[156:159], v3, s[8:11], s50 offen
buffer_load_dwordx4 v[156:159], v3, s[12:15], s51 offen offset:1024
buffer_load_dwordx4 v[156:159], v3, s[8:11], s50 offen offset:1024
buffer_load_dwordx2 v[156:157], v4, s[12:15], s51 offen offset:2048
buffer_load_dwordx2 v[156:157], v4, s[8:11], s50 offen offset:2048
buffer_load_dwordx4 v[156:159], v3, s[40:43], s52 offen
buffer_load_dwordx4 v[156:159], v3, s[44:47], s52 offen
""")
    A("s_waitcnt lgkmcnt(0)")
    srd(A, 16, 30, WS_SIZE)
    A("""
s_cmp_ge_u32 s35, 2
s_cbranch_scc1 K1_VF
""")
    k1_mainloop(A, 0)
    A(f"""
s_lshl_b32 s48, s32, 2
s_add_u32 s48, s48, s34
s_and_b32 s49, s33, 3
s_lshl_b32 s49, s49, 3
s_mov_b32 s50, {Q_HS}
s_mov_b32 s51, {KV_HS}
s_mov_b32 s52, {f32hex(QSCALE)}
s_mov_b32 s53, 1.0
s_mul_i32 s54, s48, {Q_TS}
s_add_u32 s54, s54, {QIMG}
s_add_u32 s55, s48, 62
s_and_b32 s55, s55, 63
s_mul_i32 s55, s55, {KV_TS}
s_add_u32 s55, s55, {KVIMG}
s_cmp_eq_u32 s35, 0
s_cselect_b32 s56, s50, s51
s_cselect_b32 s58, s52, s53
s_cselect_b32 s59, s52, s53
s_cselect_b32 s57, s54, s55
s_mul_i32 s60, s49, s56
s_add_u32 s60, s60, s57
v_lshlrev_b32 v3, 4, v0
v_mul_u32_u24 v4, s56, v2
v_lshl_add_u32 v4, v1, 3, v4
v_add_u32 v4, 1024, v4
""")
    PK = 96
    A("s_mov_b32 s61, s60")
    A("s_lshl_b32 s62, s56, 1")
    A("s_cmp_eq_u32 s35, 0")
    A("s_cbranch_scc0 K1_NOSCALE")
    for scale in (True, False):
        if not scale:
            A.label("K1_NOSCALE")
        for hd in range(8):
            g = 2 * (hd & 3) + (hd >> 2)
            for i in range(4):
                if scale:
                    A(f"v_pk_mul_f32 {vr(ACC+8*g+2*i,2)}, {vr(ACC+8*g+2*i,2)}, s[58:59]")
            for i in range(4):
                A(f"v_cvt_pk_bf16_f32 v{PK+4*hd+i}, v{ACC+8*g+2*i}, v{ACC+8*g+2*i+1}")
            A(f"buffer_store_dwordx4 {vr(PK+4*hd,4)}, v3, s[16:19], s61 offen")
            A("s_add_u32 s61, s61, s56")
        for q in range(4):
            for i in range(32 + 2 * q, 34 + 2 * q):
                if scale:
                    A(f"v_pk_mul_f32 {vr(ACC+2*i,2)}, {vr(ACC+2*i,2)}, s[58:59]")
            for i in range(32 + 2 * q, 34 + 2 * q):
                A(f"v_cvt_pk_bf16_f32 v{PK+i}, v{ACC+2*i}, v{ACC+2*i+1}")
            A(f"buffer_store_dwordx2 {vr(PK+32+2*q,2)}, v4, s[16:19], s60 offen")
            A("s_add_u32 s60, s60, s62")
        if scale:
            A("s_branch K1_END")
    for j in range(4):
        for hd in range(8):
            src = PK + 4 * hd + j
            c = "0" if j == 0 else f"v{16+hd}"
            A(f"v_dot2_f32_bf16 v{16+hd}, v{src}, v{src}, {c}")
    for j in range(2):
        for i in range(4):
            src = PK + 32 + 2 * i + j
            c = "0" if j == 0 else f"v{24+i}"
            A(f"v_dot2_f32_bf16 v{24+i}, v{src}, v{src}, {c}")
    A("s_nop 4")
    for i in range(4):
        A(f"v_permlane32_swap_b32 v{16+2*i}, v{17+2*i}")
    A("s_nop 1")
    for i in range(4):
        A(f"v_add_f32 v{16+2*i}, v{16+2*i}, v{17+2*i}")
    for i in range(4):
        A(f"v_add_f32 v{24+i}, v{24+i}, v{16+2*i}")
    for ror in (1, 2, 4, 8):
        A("s_nop 1")
        for i in range(4):
            A(f"v_max_f32_dpp v{24+i}, v{24+i}, v{24+i} row_ror:{ror} row_mask:0xf bank_mask:0xf")
    A("s_nop 1")
    for i in range(4):
        A(f"v_max_f32_dpp v{24+i}, v{24+i}, v{24+i} row_bcast:15 row_mask:0xa bank_mask:0xf")
    A(f"""
s_lshl_b32 s61, s49, 8
s_lshl_b32 s62, s48, 2
s_add_u32 s61, s61, s62
s_add_u32 s61, s61, {KMAX}
v_lshlrev_b32 v5, 8, v2
v_cmp_eq_u32 vcc, 31, v1
s_and_saveexec_b64 s[64:65], vcc
""")
    for i in range(4):
        A(f"buffer_store_dword v{24+i}, v5, s[16:19], s61 offen offset:{512*i}")
    A("s_branch K1_END")

    A.label("K1_VF")
    k1_mainloop(A, 1)
    A("s_cmp_eq_u32 s35, 3")
    A("s_cbranch_scc1 K1_F")
    PK = 96
    A(f"""
s_lshl_b32 s48, s32, 2
s_add_u32 s48, s48, s34
s_and_b32 s49, s33, 3
s_mul_i32 s49, s49, {8*KV_HS}
s_mul_i32 s50, s48, {KV_TS}
s_add_u32 s60, s49, s50
s_add_u32 s60, s60, {KVIMG + 1280}
s_mov_b32 s51, {KV_HS}
v_mul_u32_u24 v3, 336, v2
""")
    for b in range(5):
        A(f"v_add_u32 v4, {32*b}, v1")
        A("v_mul_u32_u24 v5, 3277, v4")
        A("v_lshrrev_b32 v5, 16, v5")
        A("v_mul_u32_u24 v6, 20, v5")
        A("v_sub_u32 v6, v4, v6")
        A("v_mul_u32_u24 v5, s51, v5")
        A("v_lshl_add_u32 v6, v6, 4, v3")
        A(f"v_add_u32 v{8+b}, v5, v6")
        for j in range(2):
            for i in range(8 * b + 4 * j, 8 * b + 4 * j + 4):
                A(f"v_cvt_pk_bf16_f32 v{PK+i}, v{ACC+2*i}, v{ACC+2*i+1}")
            A(f"buffer_store_dwordx4 {vr(PK+8*b+4*j,4)}, v{8+b}, s[16:19], s60 offen offset:{672*j}")
    A("""
v_lshrrev_b32 v4, 2, v0
v_mul_u32_u24 v4, s51, v4
v_and_b32 v5, 3, v0
v_mul_u32_u24 v5, 336, v5
v_add_u32 v4, v4, v5
v_mov_b32 v16, 0x3f803f80
v_mov_b32 v17, 0x3f803f80
v_mov_b32 v18, 0x3f803f80
v_mov_b32 v19, 0x3f803f80
v_cmp_gt_u32 vcc, 32, v0
s_and_saveexec_b64 s[64:65], vcc
buffer_store_dwordx4 v[16:19], v4, s[16:19], s60 offen offset:320
s_branch K1_END
""")
    A.label("K1_F")
    A(f"""
s_lshl_b32 s48, s32, 2
s_add_u32 s48, s48, s34
s_mov_b32 s50, {FAC}
s_mov_b32 s51, {FAS}
s_mov_b32 s52, 1.0
s_mov_b32 s53, -1.0
s_cmp_lt_u32 s33, 14
s_cselect_b32 s54, s50, s51
s_cselect_b32 s55, s52, s53
s_and_b32 s49, s33, 1
s_mul_i32 s49, s49, 5120
s_add_u32 s54, s54, s49
s_mul_i32 s60, s48, {FA_KS}
s_add_u32 s60, s60, s54
v_lshlrev_b32 v3, 4, v0
s_cmp_lg_u32 s48, 0
s_cbranch_scc1 K1_F_NOSPECIAL
s_add_u32 s61, s54, {64*FA_KS}
v_cmp_gt_u32 vcc, 32, v0
v_mov_b32 v5, 0
v_mov_b32 v6, 0
v_mov_b32 v7, 0
""")
    for b in range(5):
        r8 = ACC + 16 * b + 8
        A(f"v_cndmask_b32 v8, 0, v{r8}, vcc")
        A(f"v_cvt_pk_bf16_f32 v4, v8, 0")
        A(f"v_cndmask_b32 v{r8}, v{r8}, v5, vcc")
        A(f"buffer_store_dwordx4 v[4:7], v3, s[16:19], s61 offen offset:{0}")
        A("s_add_u32 s61, s61, 1024")
        A("s_nop 1")
    A.label("K1_F_NOSPECIAL")
    A("s_add_u32 s61, s60, 4096")
    for b in range(5):
        for r in range(8):
            a = ACC + 16 * b + r
            A(f"v_fma_f32 v{a}, v{a+8}, s55, v{a}")
        for i in range(4):
            a = ACC + 16 * b + 2 * i
            A(f"v_cvt_pk_bf16_f32 v{PK+4*b+i}, v{a}, v{a+1}")
        if b < 4:
            A(f"buffer_store_dwordx4 {vr(PK+4*b,4)}, v3, s[16:19], s60 offen offset:{1024*b}")
        else:
            A(f"buffer_store_dwordx4 {vr(PK+16,4)}, v3, s[16:19], s61 offen")
    A.label("K1_END")
    prof_end(A, 0)
    A.label("K1_EXIT")
    A("s_endpgm")
```

```python
from common import *

SA, SB, PA, PB, OA, OB = 16, 32, 48, 56, 64, 80
QA1, QB1, QA2, QB2 = 96, 100, 104, 106
K1F, K2F, V0, V1 = 108, 112, 116, 120
KA1, KA2, VA = 9, 10, 11
DV, PW, PRD, PV_, PCK = 12, 124, 125, 126, 127
K23_VGPR = 168
SLOT = 21504
CHUNK = 8 * KV_TS
PROG = 3 * SLOT
XR = PROG + 1024
WOTL = XR - 4096
K23_LDS = 163840
SC = "sc1"
WSTART = int(os.environ.get("K23_WSTART", "5"))
LOCAL = os.environ.get("K23_LOCAL", "0") == "1"
OSC = os.environ.get("K23_OSC", "sc1")
LSC = os.environ.get("K23_LSC", "sc1")
LPROF = os.environ.get("LPROF", "0") == "1"
DIAG = os.environ.get("DIAG", "")
P3 = os.environ.get("P3PROF", "0") == "1"
PRIO = os.environ.get("K23_PRIO", "1") == "1"
PSLEEP = int(os.environ.get("K23_PSLEEP", "4"))
assert WOTL + 100 * 1024 == K23_LDS


def softmax_groups(Sx, Px):
    gs = []
    for g in range(4):
        l = [f"v_exp_f32 v{Sx+4*g+i}, v{Sx+4*g+i}" for i in range(4)]
        l += [f"v_cvt_pk_bf16_f32 v{Px+2*g+i}, v{Sx+4*g+2*i}, v{Sx+4*g+2*i+1}" for i in range(2)]
        gs.append(l)
    return gs


def qk(Sx, Q1, Q2):
    return [f"v_mfma_f32_32x32x8_bf16 {vr(Sx,16)}, {vr(K2F,2)}, {vr(Q2,2)}, 0",
            f"v_mfma_f32_32x32x16_bf16 {vr(Sx,16)}, {vr(K1F,4)}, {vr(Q1,4)}, {vr(Sx,16)}"]


def pv(Ox, Px):
    return [f"v_mfma_f32_32x32x16_bf16 {vr(Ox,16)}, {vr(V0,4)}, {vr(Px,4)}, {vr(Ox,16)}",
            f"v_mfma_f32_32x32x16_bf16 {vr(Ox,16)}, {vr(V1,4)}, {vr(Px+4,4)}, {vr(Ox,16)}"]


def poll(A, tag, vaddr, vtmp, sc):
    A(f"""
s_mov_b32 s{sc}, 0
{tag}:
buffer_load_dword v{vtmp}, v{vaddr}, s[8:11], 0 offen {SC}
s_add_u32 s{sc}, s{sc}, 1
s_waitcnt vmcnt(0)
v_cmp_eq_u32 vcc, 1, v{vtmp}
s_cmp_gt_u32 s{sc}, 0x40000
s_cbranch_scc1 {tag}_X
s_cmp_eq_u64 vcc, exec
s_cbranch_scc0 {tag}
{tag}_X:
""")


YR, GL = 152, 164


def y_loads(A):
    A(f"""
v_and_b32 v128, 15, v0
v_lshrrev_b32 v129, 4, v0
s_lshl_b32 s57, s20, 6
s_lshl_b32 s58, s23, 4
s_add_u32 s57, s57, s58
v_add_u32 v130, s57, v128
v_sub_u32 v131, 2048, v130
v_cmp_lt_u32 vcc, 1024, v130
s_mul_i32 s58, s21, 80
s_mul_i32 s59, s24, 48
s_add_u32 s58, s58, s59
v_lshl_add_u32 v132, v129, 2, s58
v_cndmask_b32 v131, v130, v131, vcc
s_movk_i32 s59, {Y_PITCH}
v_mul_u32_u24 v131, s59, v131
v_sub_u32 v133, {640-3-32}, v132
s_mov_b32 s60, {YM}
s_mov_b32 s61, {YP}
s_cmp_ge_u32 s21, 4
s_cselect_b32 s62, s61, s60
s_cselect_b32 s63, s60, s61
s_cselect_b64 s[64:65], -1, 0
v_mov_b32 v134, s62
v_mov_b32 v135, s63
v_cndmask_b32 v134, v134, v135, vcc
v_cndmask_b32 v133, v132, v133, s[64:65]
v_lshl_add_u32 v131, v133, 2, v131
v_add_u32 v131, v131, v134
v_lshlrev_b32 v133, 2, v130
s_mov_b32 s66, {GATE}
buffer_load_dword v{GL}, v133, s[8:11], s66 offen
""")
    for j in range(3):
        A(f"buffer_load_dwordx4 {vr(YR+4*j,4)}, v131, s[8:11], 0 offen offset:{64*j} {SC}")


def gen_k23(A):
    A(khead("k23_kernel"))
    A("""
s_cmp_ge_u32 s2, 256
s_cbranch_scc1 K2_EXIT
""")
    prof_begin(A)
    A(f"""
s_load_dwordx2 s[4:5], s[0:1], {KA_WS}
s_load_dwordx2 s[6:7], s[0:1], {KA_OUT}
s_load_dwordx4 s[52:55], s[0:1], {KA_SRE}
v_lshrrev_b32 v1, 6, v0
v_and_b32 v0, 63, v0
s_and_b32 s18, s2, 7
s_lshr_b32 s19, s2, 3
v_readfirstlane_b32 s22, v1
s_lshl_b32 s20, s18, 2
s_and_b32 s21, s19, 3
s_add_u32 s20, s20, s21
s_lshr_b32 s21, s2, 5
s_mov_b32 s16, {"s19" if LOCAL else "s20"}
s_mov_b32 s17, {"s18" if LOCAL else "s21"}
s_mul_i32 s27, s16, {KV_HS}
s_add_u32 s27, s27, {KVIMG}
v_and_b32 v1, 31, v0
v_lshrrev_b32 v2, 5, v0
v_lshlrev_b32 v3, 4, v0
s_mov_b32 s15, 0x00020000
s_mov_b32 s10, {WS_SIZE}
s_mov_b32 s11, 0x00020000
s_cmp_ge_u32 s22, 8
s_cbranch_scc1 K2_AUX
""")
    A(f"""
s_and_b32 s23, s22, 3
s_lshr_b32 s24, s22, 2
s_lshl_b32 s25, s17, 3
s_lshl_b32 s26, s23, 1
s_add_u32 s25, s25, s26
v_lshlrev_b32 v4, 3, v1
v_lshlrev_b32 v5, 2, v0
s_mul_i32 s28, s16, {Q_HS}
s_mul_i32 s29, s25, {Q_TS}
s_add_u32 s28, s28, s29
s_add_u32 s28, s28, {QIMG}
s_add_u32 s29, s24, 62
s_mul_i32 s29, s29, {KV_TS}
s_add_u32 s29, s29, s27
s_lshl_b32 s30, s16, 8
s_add_u32 s30, s30, {KMAX}
s_waitcnt lgkmcnt(0)
s_mov_b32 s8, s4
s_and_b32 s9, s5, 0xffff
buffer_load_dwordx4 {vr(QA1,4)}, v3, s[8:11], s28 offen
buffer_load_dwordx2 {vr(QA2,2)}, v4, s[8:11], s28 offen offset:1024
buffer_load_dword v13, v5, s[8:11], s30 offen
buffer_load_dwordx4 {vr(QB1,4)}, v3, s[8:11], s28 offen offset:1280
buffer_load_dwordx2 {vr(QB2,2)}, v4, s[8:11], s28 offen offset:2304
buffer_load_dwordx4 {vr(K1F,4)}, v3, s[8:11], s29 offen
buffer_load_dwordx2 {vr(K2F,2)}, v4, s[8:11], s29 offen offset:1024
s_mul_i32 s32, s24, {KV_TS}
v_add_u32 v{KA1}, s32, v3
v_add_u32 v14, 1024, v4
v_mov_b32 v15, {1280+320}
v_cmp_gt_u32 s[50:51], 32, v0
v_mul_u32_u24 v16, 336, v2
v_lshl_add_u32 v16, v1, 4, v16
v_cndmask_b32 v14, v15, v14, s[50:51]
v_add_u32 v{KA2}, s32, v14
v_add_u32 v16, 1280, v16
v_add_u32 v{VA}, s32, v16
s_mov_b32 s48, 0x001fffff
s_mov_b32 s49, 0x001fffff
v_mov_b32 v{DV}, {PROG + 32}
s_lshl_b32 s33, s22, 2
s_add_u32 s33, s33, {PROG}
v_mov_b32 v{PW}, s33
v_and_b32 v{PRD}, 7, v0
v_lshlrev_b32 v{PRD}, 2, v{PRD}
v_add_u32 v{PRD}, {PROG}, v{PRD}
v_mov_b32 v{PV_}, 0
ds_write_b32 v{PW}, v{PV_}
""")
    for i in range(32):
        A(f"v_mov_b32 v{OA+i}, 0")
    for i in range(8):
        A(f"v_mov_b32 v{PB+i}, 0")
        A(f"v_mov_b32 v{V0+i}, 0")
    stamp(A, 1)
    A("s_waitcnt vmcnt(0)")
    A("v_mov_b32 v15, 0x3f803f80")
    for r in (QA2, QA2 + 1, QB2, QB2 + 1):
        A(f"v_cndmask_b32 v{r}, 0, v{r}, s[50:51]")
    for r in (K2F, K2F + 1):
        A(f"v_cndmask_b32 v{r}, v15, v{r}, s[50:51]")
    dpp = [f"v_max_f32_dpp v13, v13, v13 row_ror:{ror} row_mask:0xf bank_mask:0xf" for ror in (1, 2, 4, 8)]
    dpp += ["v_max_f32_dpp v13, v13, v13 row_bcast:15 row_mask:0xa bank_mask:0xf",
            "v_max_f32_dpp v13, v13, v13 row_bcast:31 row_mask:0xc bank_mask:0xf"]
    for j, (ra, rb) in enumerate([(QA1 + i, QB1 + i) for i in range(4)] + [(QA2 + i, QB2 + i) for i in range(2)]):
        ca = "0" if j == 0 else "v16"
        cb = "0" if j == 0 else "v18"
        A(dpp[j])
        A(f"v_dot2_f32_bf16 v16, v{ra}, v{ra}, {ca}")
        A(f"v_dot2_f32_bf16 v18, v{rb}, v{rb}, {cb}")
    A("""
v_readlane_b32 s33, v13, 63
s_nop 2
v_mov_b32 v17, v16
v_mov_b32 v19, v18
s_nop 1
v_permlane32_swap_b32 v16, v17
v_permlane32_swap_b32 v18, v19
s_nop 1
v_add_f32 v16, v16, v17
v_add_f32 v18, v18, v19
v_mul_f32 v16, s33, v16
v_mul_f32 v18, s33, v18
v_sqrt_f32 v16, v16
v_sqrt_f32 v18, v18
s_nop 0
v_sub_f32 v16, 0x42800000, v16
v_sub_f32 v18, 0x42800000, v18
""")
    for (m, Q2) in ((16, QA2), (18, QB2)):
        A(f"""
v_and_b32 v20, 0xffff0000, v{m}
v_sub_f32 v21, v{m}, v20
v_and_b32 v22, 0xffff0000, v21
v_sub_f32 v23, v21, v22
v_lshrrev_b32 v20, 16, v20
v_or_b32 v20, v20, v22
v_lshrrev_b32 v23, 16, v23
v_cndmask_b32 v{Q2}, v20, v{Q2}, s[50:51]
v_cndmask_b32 v{Q2+1}, v23, v{Q2+1}, s[50:51]
""")
    A("s_nop 1")
    for m in qk(SA, QA1, QA2):
        A(m)
    A("s_mov_b32 s42, 0")
    A("s_mov_b32 s44, 0")
    A("s_mov_b32 s68, 0")

    def tile(t, extra_k=None, mid_a=None, end_b=None, nl=0):
        off = t * 2 * KV_TS
        if PRIO:
            A(f"s_setprio {3-t}")
        g = softmax_groups(SA, PA)
        m = qk(SB, QB1, QB2) + pv(OB, PB)
        A(m[0])
        A("\n".join(g[0]))
        A(m[1])
        A(f"ds_read_b128 {vr(K1F,4)}, v{KA1} offset:{off}")
        A(f"ds_read_b64 {vr(K2F,2)}, v{KA2} offset:{off}")
        A("\n".join(g[1]))
        A(m[2])
        A("\n".join(g[2]))
        A(m[3])
        A("s_mov_b64 exec, s[48:49]")
        A(f"ds_read_b128 {vr(V0,4)}, v{VA} offset:{off}")
        A(f"ds_read_b128 {vr(V1,4)}, v{VA} offset:{off+672}")
        A("s_mov_b64 exec, -1")
        A("\n".join(g[3]))
        if mid_a:
            mid_a()
        g = softmax_groups(SB, PB)
        m = qk(SA, QA1, QA2) + pv(OA, PA)
        A(f"s_waitcnt lgkmcnt({2+nl})")
        A(m[0])
        A("\n".join(g[0]))
        A(m[1])
        A("\n".join(g[1]))
        A(f"s_waitcnt lgkmcnt({nl})")
        A(m[2])
        if extra_k:
            extra_k()
        A("\n".join(g[2]))
        A(m[3])
        if end_b:
            end_b()
        A("\n".join(g[3]))

    def sig_enter():
        A(f"v_add_u32 v{PV_}, 1, v{PV_}")
        A(f"ds_write_b32 v{PW}, v{PV_}")

    def ctl():
        A(f"""
s_add_u32 s42, s42, 1
s_add_u32 s44, s44, 1
s_cmp_eq_u32 s44, 3
s_cselect_b32 s44, 0, s44
s_mov_b32 s43, {SLOT}
s_cselect_b32 s43, {(-2*SLOT) & 0xffffffff}, s43
s_cmp_eq_u32 s42, 8
s_cbranch_scc1 K2_YREQ
K2_YDONE:
""")

    def chk_read():
        A(f"ds_read_b32 v{PCK}, v{DV}")

    def upd():
        A(f"v_add_u32 v{KA1}, s43, v{KA1}")
        A(f"v_add_u32 v{KA2}, s43, v{KA2}")
        A(f"v_add_u32 v{VA}, s43, v{VA}")

    A("s_waitcnt lgkmcnt(0)")
    A("s_barrier")
    stamp(A, 2)
    A("s_nop 7")
    A.label("K2_LOOP")
    if PROF and LPROF:
        for it, sl in ((1, 1), (2, 3), (4, 4), (6, 5), (7, 6)):
            A(f"s_cmp_eq_u32 s42, {it}")
            A(f"s_cbranch_scc0 K2_NS{it}")
            stamp(A, sl)
            A.label(f"K2_NS{it}")
    tile(0, mid_a=sig_enter, nl=1)
    tile(1, mid_a=ctl)
    tile(2)
    tile(3, extra_k=chk_read, end_b=upd)
    A(f"""
s_waitcnt lgkmcnt(0)
v_cmp_gt_u32 vcc, v{PCK}, v{PV_}
s_cmp_lt_u32 s42, 8
s_cbranch_vccz K2_SPIN
s_cbranch_scc1 K2_LOOP
s_branch K2_LOOPEND
K2_SPIN:
s_sleep 2
ds_read_b32 v{PCK}, v{DV}
s_waitcnt lgkmcnt(0)
v_cmp_gt_u32 vcc, v{PCK}, v{PV_}
s_nop 1
s_cbranch_vccz K2_SPIN
s_cbranch_scc1 K2_LOOP
s_branch K2_LOOPEND
K2_YREQ:
ds_read_b32 v129, v{DV} offset:4
s_waitcnt lgkmcnt(0)
v_cmp_eq_u32 vcc, 3, v129
s_nop 1
s_cbranch_vccz K2_YDONE
s_mov_b32 s68, 1
""")
    y_loads(A)
    A("s_branch K2_YDONE")
    A.label("K2_LOOPEND")
    if not LPROF: stamp(A, 3)
    for m in pv(OB, PB):
        A(m)
    A(f"""
s_mul_i32 s34, s23, 3072
s_mul_i32 s47, s24, {2*SLOT}
s_add_u32 s56, s34, s47
v_add_u32 v13, s56, v3
s_sub_u32 s47, {2*SLOT}, s47
s_add_u32 s56, s34, s47
v_add_u32 v14, s56, v3
s_add_u32 s46, s25, s24
s_mul_i32 s35, s46, 40960
s_mul_i32 s36, s16, 1280
s_add_u32 s36, s36, s35
s_add_u32 s36, s36, {OIMG}
s_nop 3
s_cmp_eq_u32 s24, 0
s_cbranch_scc0 K2_X1
""")
    for q in range(3):
        A(f"ds_write_b128 v13, {vr(OB+4*q,4)} offset:{1024*q}")
    A("s_branch K2_X2")
    A.label("K2_X1")
    for q in range(3):
        A(f"ds_write_b128 v13, {vr(OA+4*q,4)} offset:{1024*q}")
    A("s_nop 4")
    for i in range(12):
        A(f"v_mov_b32 v{OA+i}, v{OB+i}")
    A.label("K2_X2")
    A("s_waitcnt lgkmcnt(0)")
    A("s_barrier")
    if not LPROF: stamp(A, 4)
    for q in range(3):
        A(f"ds_read_b128 {vr(16+4*q,4)}, v14 offset:{1024*q}")
    A("s_waitcnt lgkmcnt(0)")
    for i in (8, 0, 1, 2, 3, 4, 5, 6, 7, 9, 10, 11):
        A(f"v_add_f32 v{OA+i}, v{OA+i}, v{16+i}")
        if i == 8:
            A(f"v_mov_b32 v28, v{OA+8}")
            A(f"v_mov_b32 v29, v{OA+8}")
        if i == 1:
            A("v_permlane32_swap_b32 v28, v29")
        if i == 4:
            A("v_cmp_nle_f32 vcc, 0x0d800000, v29")
            A("v_rcp_f32 v29, v29")
    A("s_cbranch_vccnz K2_SLOW")
    A.label("K2_FINAL")
    for i in range(12):
        A(f"v_mul_f32 v{OA+i}, v{OA+i}, v29")
    for i in range(6):
        A(f"v_cvt_pk_bf16_f32 v{52+i}, v{OA+2*i}, v{OA+2*i+1}")
    A(f"""
buffer_store_dwordx4 v[52:55], v3, s[8:11], s36 offen {OSC}
s_mov_b64 exec, s[50:51]
buffer_store_dwordx2 v[56:57], v4, s[8:11], s36 offen offset:1024 {OSC}
s_mov_b64 exec, -1
s_nop 0
""")
    ACC, OF, WF = 32, 52, 92
    A(f"""
s_lshl_b32 s56, s24, 13
v_add_u32 v4, s56, v3
v_add_u32 v5, {WOTL}, v4
v_add_u32 v6, {WOTL + 61440}, v4
s_lshl_b32 s56, s24, 11
v_add_u32 v4, s56, v3
v_add_u32 v12, {WOTL + 16384}, v4
v_add_u32 v14, {WOTL + 16384 + 61440}, v4
s_mul_i32 s67, s21, 102400
s_add_u32 s67, s67, {WOT}
""")
    ORDER = [4, 5, 6, 7, 8, 9, 0, 1, 2, 3]

    def wo_read(i, slot, skip0=False):
        for cb in range(5):
            if skip0 and cb == 0:
                continue
            if i < 8:
                a, off = ("v5", cb * 20480) if cb < 3 else ("v6", (cb - 3) * 20480)
                off += i * 1024
            else:
                a, off = ("v12", cb * 20480) if cb < 3 else ("v14", (cb - 3) * 20480)
                off += (i - 8) * 1024
            A(f"ds_read_b128 {vr(WF+20*slot+4*cb,4)}, {a} offset:{off}")
    A(f"""
v_and_b32 v9, 15, v0
v_lshrrev_b32 v10, 4, v0
s_lshl_b32 s57, s20, 6
s_lshl_b32 s58, s23, 4
s_add_u32 s57, s57, s58
v_add_u32 v11, s57, v9
s_mul_i32 s58, s21, 80
s_mul_i32 s59, s24, 48
s_add_u32 s58, s58, s59
v_lshl_add_u32 v13, v10, 2, s58
s_movk_i32 s59, 1280
v_mul_u32_u24 v11, s59, v11
v_lshl_add_u32 v11, v13, 1, v11
s_mov_b32 s12, s6
s_and_b32 s13, s7, 0xffff
s_mov_b32 s14, {S*D*2}
s_lshl_b32 s57, s20, 1
s_lshr_b32 s58, s23, 1
s_add_u32 s57, s57, s58
s_mul_i32 s51, s57, 40960
s_add_u32 s51, s51, {OIMG}
s_and_b32 s58, s23, 1
s_lshl_b32 s58, s58, 4
v_add_u32 v9, s58, v9
v_lshrrev_b32 v15, 1, v10
v_mul_u32_u24 v15, 1280, v15
v_and_b32 v13, 1, v10
v_lshl_add_u32 v15, v13, 9, v15
v_lshl_add_u32 v7, v9, 4, v15
v_mul_u32_u24 v8, 2560, v10
v_lshl_add_u32 v8, v9, 3, v8
v_add_u32 v8, 1024, v8
s_mul_i32 s58, s24, 20480
s_add_u32 s52, s51, s58
s_mov_b32 s69, 0
s_cmp_eq_u32 s24, 0
s_cbranch_scc0 K3_W1
""")
    for k in range(4):
        A(f"buffer_load_dwordx4 {vr(16+4*k,4)}, v3, s[8:11], s67 offen offset:{1024*k}")
    A("s_branch K3_W2")
    A.label("K3_W1")
    for k in range(4):
        A(f"ds_read_b128 {vr(16+4*k,4)}, v5 offset:{k*1024}")
    A.label("K3_W2")
    for n in range(3):
        wo_read(ORDER[n], n)
    if not LPROF: stamp(A, 5)
    A("s_barrier")
    if not LPROF: stamp(A, 6)
    A.label("K3_RETRY")
    NLD = []
    for n, i in enumerate(ORDER):
        if i < 8:
            A(f"s_add_u32 s53, s52, {2560*i}")
            A(f"buffer_load_dwordx4 {vr(OF+4*n,4)}, v7, s[8:11], s53 offen {SC}")
            NLD.append(1)
        else:
            A(f"s_add_u32 s53, s52, {10240*(i-8)}")
            A(f"buffer_load_dwordx2 {vr(OF+4*n,2)}, v8, s[8:11], s53 offen {SC}")
            A(f"buffer_load_dwordx2 {vr(OF+4*n+2,2)}, v8, s[8:11], s53 offen offset:1280 {SC}")
            NLD.append(2)
    A("v_mov_b32 v166, 0")
    for n, i in enumerate(ORDER):
        slot = n % 3
        if n == 0:
            A(f"s_waitcnt vmcnt({sum(NLD[n+1:])}) lgkmcnt(0)")
        else:
            younger = sum((4 if ORDER[k] < 4 else 5) for k in (n + 1, n + 2) if 3 <= k < 10)
            A(f"s_waitcnt vmcnt({sum(NLD[n+1:])}) lgkmcnt({younger})")
        for cb in range(5):
            acc = vr(ACC + 4 * cb, 4)
            c = "0" if n == 0 else acc
            w = vr(16 + 4 * i, 4) if (i < 4 and cb == 0) else vr(WF + 20 * slot + 4 * cb, 4)
            A(f"v_mfma_f32_16x16x32_bf16 {acc}, {w}, {vr(OF+4*n,4)}, {c}")
        if n + 3 < 10:
            wo_read(ORDER[n + 3], slot, skip0=(ORDER[n + 3] < 4))
        A(f"v_max3_u32 v166, v{OF+4*n}, v{OF+4*n+1}, v166")
        A(f"v_max3_u32 v166, v{OF+4*n+2}, v{OF+4*n+3}, v166")
    A("""
v_cmp_eq_u32 vcc, -1, v166
s_add_u32 s69, s69, 1
s_cmp_gt_u32 s69, 0x4000
s_cbranch_vccz K3_VALID
s_cbranch_scc1 K3_VALID
""")
    for n in range(3):
        wo_read(ORDER[n], n)
    A("s_branch K3_RETRY")
    A.label("K3_VALID")
    if P3:
        stamp(A, 1)
    A("s_cmp_eq_u32 s68, 1")
    A("s_cbranch_scc1 K2_HAVEY")
    y_loads(A)
    A("s_waitcnt vmcnt(3)")
    A.label("K2_HAVEY")
    A(f"""
s_mul_i32 s56, s22, 3072
s_add_u32 s56, s56, {SLOT - 8192}
v_add_u32 v9, s56, v3
s_xor_b32 s57, s22, 4
s_mul_i32 s57, s57, 3072
s_add_u32 s57, s57, {SLOT - 8192}
v_add_u32 v10, s57, v3
s_nop 1
s_cmp_eq_u32 s24, 0
s_cbranch_scc0 K3_X1
""")
    for j in range(2):
        A(f"ds_write_b128 v9, {vr(ACC+12+4*j,4)} offset:{1024*j}")
    A("s_branch K3_X2")
    A.label("K3_X1")
    for j in range(3):
        A(f"ds_write_b128 v9, {vr(ACC+4*j,4)} offset:{1024*j}")
    A("s_nop 4")
    for i in range(8):
        A(f"v_mov_b32 v{ACC+i}, v{ACC+12+i}")
    A.label("K3_X2")
    A(f"""
v_mul_f32 v{GL}, 0xbfb8aa3b, v{GL}
v_exp_f32 v{GL}, v{GL}
s_nop 0
v_add_f32 v{GL}, 1.0, v{GL}
v_rcp_f32 v{GL}, v{GL}
s_nop 0
v_sub_f32 v{GL+1}, 1.0, v{GL}
""")
    A("s_waitcnt lgkmcnt(0)")
    A("s_barrier")
    if P3:
        stamp(A, 2)
    for j in range(3):
        A(f"ds_read_b128 {vr(52+4*j,4)}, v10 offset:{1024*j}")
    A("s_waitcnt lgkmcnt(0)")
    for i in range(12):
        A(f"v_add_f32 v{ACC+i}, v{ACC+i}, v{52+i}")
    for i in range(12):
        A(f"v_mul_f32 v{ACC+i}, v{ACC+i}, v{GL+1}")
    A("s_cmp_ge_u32 s21, 4")
    A("s_waitcnt vmcnt(0)")
    A("s_cbranch_scc1 K3_REV")
    for i in range(12):
        A(f"v_fmac_f32 v{ACC+i}, v{YR+i}, v{GL}")
    A("s_branch K3_ST")
    A.label("K3_REV")
    for i in range(12):
        A(f"v_fmac_f32 v{ACC+i}, v{YR+11-i}, v{GL}")
    A.label("K3_ST")
    for i in range(6):
        A(f"v_cvt_pk_bf16_f32 v{16+i}, v{ACC+2*i}, v{ACC+2*i+1}")
    A("""
buffer_store_dwordx2 v[16:17], v11, s[12:15], 0 offen
buffer_store_dwordx2 v[18:19], v11, s[12:15], 0 offen offset:32
s_cmp_eq_u32 s24, 0
s_cbranch_scc0 K3_DONE
buffer_store_dwordx2 v[20:21], v11, s[12:15], 0 offen offset:64
K3_DONE:
""")
    prof_end(A, 2)
    A("s_endpgm")

    A.label("K2_SLOW")
    A("s_cmp_eq_u32 s24, 0")
    A("s_cbranch_scc1 K2_SL0")
    for i in range(4):
        A(f"v_mov_b32 v{QA1+i}, v{QB1+i}")
    for i in range(2):
        A(f"v_mov_b32 v{QA2+i}, v{QB2+i}")
    A.label("K2_SL0")
    A(f"""
v_cndmask_b32 v{QA2}, 0, v{QA2}, s[50:51]
v_cndmask_b32 v{QA2+1}, 0, v{QA2+1}, s[50:51]
v_mov_b32 v128, 0xff800000
v_mov_b32 v129, 0x3f803f80
v_mul_u32_u24 v130, 336, v2
v_lshl_add_u32 v130, v1, 4, v130
v_add_u32 v130, 1280, v130
s_mov_b32 s56, s27
s_mov_b32 s57, 0
K2_SL1:
buffer_load_dwordx4 {vr(K1F,4)}, v3, s[8:11], s56 offen
buffer_load_dwordx2 {vr(K2F,2)}, v4, s[8:11], s56 offen offset:1024
s_waitcnt vmcnt(0)
""")
    for m in qk(SA, QA1, QA2):
        A(m)
    A("s_nop 15")
    A("s_nop 3")
    for i in range(8):
        A(f"v_max3_f32 v128, v{SA+2*i}, v{SA+2*i+1}, v128")
    A(f"""
s_add_u32 s56, s56, {KV_TS}
s_add_u32 s57, s57, 1
s_cmp_lt_u32 s57, 64
s_cbranch_scc1 K2_SL1
v_mov_b32 v131, v128
s_nop 1
v_permlane32_swap_b32 v128, v131
s_nop 1
v_max_f32 v128, v128, v131
v_mul_f32 v128, -1.0, v128
v_and_b32 v132, 0xffff0000, v128
v_sub_f32 v133, v128, v132
v_and_b32 v134, 0xffff0000, v133
v_sub_f32 v135, v133, v134
v_lshrrev_b32 v132, 16, v132
v_or_b32 v132, v132, v134
v_lshrrev_b32 v135, 16, v135
v_cndmask_b32 v{QA2}, v132, v{QA2}, s[50:51]
v_cndmask_b32 v{QA2+1}, v135, v{QA2+1}, s[50:51]
""")
    for i in range(16):
        A(f"v_mov_b32 v{OA+i}, 0")
    A(f"""
s_mov_b32 s57, 0
K2_SL2:
s_add_u32 s58, s57, 62
s_and_b32 s58, s58, 63
s_mul_i32 s58, s58, {KV_TS}
s_add_u32 s58, s58, s27
s_mul_i32 s56, s57, {KV_TS}
s_add_u32 s56, s56, s27
buffer_load_dwordx4 {vr(K1F,4)}, v3, s[8:11], s58 offen
buffer_load_dwordx2 {vr(K2F,2)}, v4, s[8:11], s58 offen offset:1024
buffer_load_dwordx4 {vr(V0,4)}, v130, s[8:11], s56 offen
buffer_load_dwordx4 {vr(V1,4)}, v130, s[8:11], s56 offen offset:672
s_waitcnt vmcnt(0)
v_cndmask_b32 v{K2F}, v129, v{K2F}, s[50:51]
v_cndmask_b32 v{K2F+1}, v129, v{K2F+1}, s[50:51]
s_nop 1
""")
    for m in qk(SA, QA1, QA2):
        A(m)
    A("s_nop 15")
    A("s_nop 3")
    for g in softmax_groups(SA, PA):
        A("\n".join(g))
    A("s_nop 1")
    for m in pv(OA, PA):
        A(m)
    A(f"""
s_add_u32 s57, s57, 1
s_cmp_lt_u32 s57, 64
s_cbranch_scc1 K2_SL2
s_nop 15
s_nop 3
v_mov_b32 v28, v{OA+8}
v_mov_b32 v29, v{OA+8}
s_nop 1
v_permlane32_swap_b32 v28, v29
s_nop 1
v_rcp_f32 v29, v29
s_nop 0
s_branch K2_FINAL
""")

    A.label("K2_AUX")
    A(f"""
s_sub_u32 s22, s22, 8
s_mul_i32 s46, s22, 5120
v_add_u32 v6, s46, v3
v_add_u32 v7, 4096, v6
s_mov_b32 m0, s46
s_waitcnt lgkmcnt(0)
s_mov_b32 s8, s4
s_and_b32 s9, s5, 0xffff
""")
    for q in range(4):
        A(f"buffer_load_dwordx4 v6, s[8:11], s27 offen offset:{1024*q} lds")
    A("s_add_u32 m0, m0, 4096")
    A("s_cmp_eq_u32 s22, 3")
    A(f"buffer_load_dwordx4 v7, s[8:11], s27 offen lds")
    A("s_cbranch_scc0 K2_A0")
    A(f"buffer_load_dwordx4 v7, s[8:11], s27 offen offset:1024 lds")
    A.label("K2_A0")
    A(f"""
s_mul_i32 s47, s21, 102400
s_add_u32 s47, s47, {WOT}
s_lshl_b32 s33, s22, 2
s_add_u32 s33, s33, {PROG + 32}
v_mov_b32 v6, s33
v_and_b32 v7, 3, v0
v_lshlrev_b32 v7, 2, v7
v_add_u32 v7, {PROG + 32}, v7
v_mov_b32 v146, 0
ds_write_b32 v6, v146
""")

    def wot_dma(f0, n):
        A(f"s_lshl_b32 s56, s22, 10")
        A(f"s_add_u32 s57, s56, s47")
        A(f"s_add_u32 s57, s57, {f0*1024}")
        A(f"s_add_u32 s58, s56, {WOTL + f0*1024}")
        for k in range(n):
            A("s_mov_b32 m0, s58")
            A("s_add_u32 s58, s58, 4096")
            A(f"buffer_load_dwordx4 v3, s[8:11], s57 offen lds")
            A("s_add_u32 s57, s57, 4096")
            if k >= 3:
                A("s_waitcnt vmcnt(3)")

    def aux_sync(val, tag):
        A(f"""
v_mov_b32 v146, {val}
ds_write_b32 v6, v146
{tag}:
ds_read_b32 v147, v7
s_waitcnt lgkmcnt(0)
v_cmp_le_u32 vcc, {val}, v147
s_nop 0
s_cmp_eq_u64 vcc, exec
s_cbranch_scc1 {tag}_X
s_sleep 4
s_branch {tag}
{tag}_X:
""")

    A("""
s_cmp_eq_u32 s22, 1
s_cbranch_scc1 K2_WOTW
s_cmp_ge_u32 s22, 2
s_cbranch_scc1 K2_FNW
""")
    A(f"""
v_and_b32 v7, 7, v0
v_lshlrev_b32 v7, 2, v7
v_add_u32 v7, {PROG}, v7
s_add_u32 s41, s27, {CHUNK}
s_mov_b32 s40, {SLOT}
s_mov_b32 s42, 1
s_waitcnt vmcnt(0) lgkmcnt(0)
s_barrier
K2_LDLOOP:
s_cmp_lt_u32 s42, 3
s_cbranch_scc1 K2_LDGO
s_sub_u32 s43, s42, 1
K2_LDSPIN:
ds_read_b32 v147, v7
s_waitcnt lgkmcnt(0)
v_cmp_le_u32 vcc, s43, v147
s_nop 0
s_cmp_eq_u64 vcc, exec
s_cbranch_scc1 K2_LDGO
s_sleep 2
s_branch K2_LDSPIN
K2_LDGO:
s_mov_b32 s44, s41
s_mov_b32 m0, s40
""")
    for q in range(21):
        if q and q % 4 == 0:
            A("s_add_u32 m0, m0, 4096")
            A("s_add_u32 s44, s44, 4096")
        elif q == 0:
            A("s_nop 0")
        A(f"buffer_load_dwordx4 v3, s[8:11], s44 offen offset:{1024*(q%4)} lds")
    A(f"""
s_add_u32 s41, s41, {CHUNK}
s_add_u32 s40, s40, {SLOT}
s_cmp_eq_u32 s40, {3*SLOT}
s_cselect_b32 s40, 0, s40
s_add_u32 s42, s42, 1
v_mov_b32 v146, s42
s_waitcnt vmcnt(0)
ds_write_b32 v6, v146
s_cmp_lt_u32 s42, 8
s_cbranch_scc1 K2_LDLOOP
K2_LDFIN:
ds_read_b32 v147, v7
s_waitcnt lgkmcnt(0)
v_cmp_le_u32 vcc, 8, v147
s_nop 0
s_cmp_eq_u64 vcc, exec
s_cbranch_scc1 K2_LDFIN_X
s_sleep 2
s_branch K2_LDFIN
K2_LDFIN_X:
v_mov_b32 v146, 9
ds_write_b32 v6, v146
s_mul_i32 s34, s20, 81920
s_add_u32 s34, s34, {OIMG + 1276}
v_mul_u32_u24 v4, 1280, v0
v_add_u32 v4, s34, v4
s_mov_b32 s39, 0
s_waitcnt lgkmcnt(0)
s_barrier
K2_POLL:
s_sleep {PSLEEP}
buffer_load_dword v12, v4, s[8:11], 0 offen {SC}
s_add_u32 s39, s39, 1
s_waitcnt vmcnt(0)
v_cmp_eq_u32 vcc, -1, v12
s_cmp_gt_u32 s39, 0x8000
s_cbranch_scc1 K2_POLL_X
s_cbranch_vccnz K2_POLL
K2_POLL_X:
s_barrier
s_branch K2_AUXEND
""")
    A.label("K2_WOTW")
    A(f"""
v_and_b32 v7, 1, v0
v_lshlrev_b32 v7, 2, v7
v_add_u32 v7, {PROG + 40}, v7
v_mov_b32 v13, {PROG + 32}
s_waitcnt vmcnt(0) lgkmcnt(0)
s_barrier
K2_WWAIT:
s_sleep 16
ds_read_b32 v14, v13
s_waitcnt lgkmcnt(0)
v_cmp_le_u32 vcc, {WSTART}, v14
s_nop 1
s_cbranch_vccz K2_WWAIT
s_add_u32 s57, s47, {36*1024}
s_mov_b32 s58, {WOTL + 36*1024}
s_mov_b32 s59, 16
K2_WLOOP:
s_mov_b32 m0, s58
s_add_u32 s58, s58, 4096
""")
    for q in range(4):
        A(f"buffer_load_dwordx4 v3, s[8:11], s57 offen offset:{1024*q} lds")
    A(f"""
s_add_u32 s57, s57, 4096
s_sub_u32 s59, s59, 1
s_waitcnt vmcnt(4)
s_cmp_lg_u32 s59, 0
s_cbranch_scc1 K2_WLOOP
s_cmp_eq_u32 s58, {WOTL + 36*1024}
s_cbranch_scc1 K2_WDONE
K2_WSPIN:
ds_read_b32 v147, v7
s_waitcnt lgkmcnt(0)
v_cmp_le_u32 vcc, 2, v147
s_nop 0
s_cmp_eq_u64 vcc, exec
s_cbranch_scc1 K2_WLATE
s_sleep 8
s_branch K2_WSPIN
K2_WLATE:
s_add_u32 s57, s47, {4*1024}
s_mov_b32 s58, {WOTL + 4*1024}
s_mov_b32 s59, 8
s_branch K2_WLOOP
K2_WDONE:
s_lshl_b32 s35, s20, 1
s_sub_u32 s36, 62, s35
s_cmp_lt_u32 s20, 16
s_cselect_b32 s35, s35, s36
s_mul_i32 s36, s21, 80
s_sub_u32 s37, 561, s36
s_cmp_lt_u32 s21, 4
s_cselect_b32 s36, s36, s37
s_lshr_b32 s36, s36, 6
v_bfe_u32 v5, v0, 2, 2
v_min_u32 v5, 2, v5
v_bfe_u32 v9, v0, 4, 2
v_min_u32 v9, 2, v9
v_add_u32 v5, s36, v5
v_min_u32 v5, 5, v5
v_add_u32 v9, s35, v9
v_lshlrev_b32 v9, 7, v9
v_lshl_add_u32 v5, v5, 4, v9
v_and_b32 v9, 1, v0
v_lshl_add_u32 v5, v9, 2, v5
v_add_u32 v5, {FLAGY}, v5
s_mov_b32 s39, 0
s_mov_b32 s40, 0
v_mov_b32 v13, {PROG + 32}
K2_POLLY:
buffer_load_dword v12, v5, s[8:11], 0 offen {SC}
ds_read_b32 v14, v13
s_add_u32 s39, s39, 1
s_waitcnt vmcnt(0) lgkmcnt(0)
v_cmp_eq_u32 vcc, 1, v12
s_cmp_gt_u32 s39, 0x20000
s_cbranch_scc1 K2_POLLY_X
s_cmp_eq_u64 vcc, exec
s_cbranch_scc1 K2_POLLY_OK
v_cmp_le_u32 vcc, 9, v14
s_cmp_eq_u32 s40, 1
s_cbranch_scc1 K2_POLLY_S
s_cbranch_vccz K2_POLLY_S
s_mov_b32 s40, 1
s_barrier
s_branch K2_POLLY
K2_POLLY_S:
s_sleep 8
s_branch K2_POLLY
K2_POLLY_OK:
v_mov_b32 v146, 3
ds_write_b32 v6, v146
K2_POLLY_X:
s_waitcnt lgkmcnt(0)
""")
    stamp(A, 4)
    A("""
s_cmp_eq_u32 s40, 1
s_cbranch_scc1 K2_AUXEND
s_barrier
s_branch K2_AUXEND
""")

    A.label("K2_FNW")
    A("""
s_mul_i32 s25, s19, 43
s_lshr_b32 s25, s25, 8
s_mul_i32 s26, s25, 6
s_sub_u32 s26, s19, s26
s_lshl_b32 s23, s18, 2
s_add_u32 s25, s25, s23
s_cmp_lt_u32 s19, 24
s_cbranch_scc1 KF_JOB
s_mov_b32 s25, 32
s_mov_b32 s26, s18
s_cmp_gt_u32 s19, 24
s_cbranch_scc1 KF_NOJOB
s_cmp_ge_u32 s26, 6
s_cbranch_scc1 KF_NOJOB
KF_JOB:
""")
    ACC, CF, AF = 16, 48, 64
    A(f"""
s_sub_u32 s23, s22, 2
s_mov_b32 s30, {FAC}
s_mov_b32 s31, {FAS}
s_cmp_eq_u32 s23, 0
s_cselect_b32 s60, s52, s54
s_cselect_b32 s61, s53, s55
s_cselect_b32 s30, s30, s31
s_and_b32 s61, s61, 0xffff
s_mov_b32 s62, {S*S*2}
s_mov_b32 s63, 0x00020000
s_lshl_b32 s28, s25, 5
v_lshrrev_b32 v4, 3, v0
v_add_u32 v4, s28, v4
v_lshlrev_b32 v4, 12, v4
v_and_b32 v5, 7, v0
v_lshrrev_b32 v9, 4, v0
v_xor_b32 v5, v5, v9
v_lshl_add_u32 v8, v5, 4, v4
v_xor_b32 v9, 64, v8
v_add_u32 v9, 0x8000, v9
v_add_u32 v10, 0x10000, v8
v_add_u32 v11, 0x10000, v9
s_lshl_b32 s33, s23, 14
s_add_u32 s33, s33, {XR}
v_bfe_u32 v4, v1, 1, 3
v_lshlrev_b32 v5, 2, v2
v_lshl_add_u32 v160, v1, 7, s33
""")
    for u in range(4):
        A(f"v_add_u32 v161, {u}, v5")
        A("v_xor_b32 v161, v161, v4")
        A(f"v_lshl_add_u32 v{12+u}, v161, 4, v160")
    A(f"""
s_mov_b32 s29, 0
s_lshl_b32 s31, s26, 11
s_add_u32 s30, s30, s31
v_add_u32 v4, s28, v1
v_lshlrev_b32 v5, 12, v4
v_lshl_add_u32 v5, v2, 4, v5
v_add_u32 v160, s33, v3
v_and_b32 v64, 15, v0
v_lshrrev_b32 v65, 4, v0
s_lshl_b32 s34, s23, 4
v_add_u32 v65, s34, v65
v_lshrrev_b32 v66, 1, v64
v_lshlrev_b32 v66, 10, v66
v_and_b32 v67, 1, v64
v_lshl_add_u32 v67, v67, 5, v65
v_lshl_add_u32 v161, v67, 4, v66
v_add_u32 v161, {XR}, v161
v_add_u32 v65, s28, v65
s_movk_i32 s34, {Y_PITCH}
v_mul_u32_u24 v162, s34, v65
v_lshl_add_u32 v162, v64, 4, v162
s_lshl_b32 s35, s26, 8
s_add_u32 s36, s35, {YP}
s_add_u32 s35, s35, {YM}
s_mov_b32 s64, 0x00ff00ff
s_cmp_eq_u32 s26, 5
s_cselect_b32 s64, s64, -1
s_cselect_b32 s32, s23, 0
s_mov_b32 s65, s64
v_and_b32 v7, 1, v0
v_lshlrev_b32 v7, 2, v7
v_add_u32 v7, {PROG + 40}, v7
""")
    for i in range(32):
        A(f"v_mov_b32 v{ACC+i}, 0")
    A("s_waitcnt vmcnt(0) lgkmcnt(0)")
    A("s_barrier")
    A("s_cmp_eq_u32 s32, 1")
    A("s_cbranch_scc1 KF_NO65")

    def issue_c(buf):
        for q in range(4):
            A(f"s_add_u32 m0, s33, {buf*4096 + q*1024}")
            A("s_nop 0")
            A(f"buffer_load_dwordx4 v{8+q}, s[60:63], s29 offen lds")
        A("s_add_u32 s29, s29, 128")

    def issue_a(st):
        for u in range(4):
            reg = AF + 32 * st + 8 * u
            A(f"buffer_load_dwordx4 {vr(reg,4)}, v3, s[8:11], s30 offen")
            A(f"buffer_load_dwordx4 {vr(reg+4,4)}, v3, s[8:11], s30 offen offset:1024")
            A(f"s_add_u32 s30, s30, {FA_KS}")

    def rnd(st):
        A("s_waitcnt vmcnt(24)")
        for u in range(4):
            A(f"ds_read_b128 {vr(CF+4*u,4)}, v{12+u} offset:{st*4096}")
        for u in range(4):
            A(f"s_waitcnt lgkmcnt({3-u})")
            reg = AF + 32 * st + 8 * u
            for b in range(2):
                acc = vr(ACC + 16 * b, 16)
                A(f"v_mfma_f32_32x32x16_bf16 {acc}, {vr(reg+4*b,4)}, {vr(CF+4*u,4)}, {acc}")
                A(f"buffer_load_dwordx4 {vr(reg+4*b,4)}, v3, s[8:11], s30 offen offset:{1024*b}")
            A(f"s_add_u32 s30, s30, {FA_KS}")
        issue_c(st)

    A("buffer_load_dwordx4 v[164:167], v5, s[60:63], 0 offen offset:2048")
    for st in range(3):
        issue_c(st); issue_a(st)
    A("s_mov_b32 s42, 0")
    stamp(A, 1)
    A.label("KF_LOOP")
    for st in range(3):
        rnd(st)
    A("""
s_add_u32 s42, s42, 1
s_cmp_lt_u32 s42, 5
s_cbranch_scc1 KF_LOOP
s_waitcnt vmcnt(24)
""")
    for u in range(4):
        A(f"ds_read_b128 {vr(CF+4*u,4)}, v{12+u}")
    for u in range(4):
        A(f"s_waitcnt lgkmcnt({3-u})")
        for b in range(2):
            acc = vr(ACC + 16 * b, 16)
            A(f"v_mfma_f32_32x32x16_bf16 {acc}, {vr(AF+8*u+4*b,4)}, {vr(CF+4*u,4)}, {acc}")
    stamp(A, 2)
    A(f"""
s_cmp_eq_u32 s23, 0
s_cbranch_scc0 KF_NO65
s_waitcnt vmcnt(12)
v_mfma_f32_32x32x16_bf16 {vr(ACC,16)}, {vr(AF+32,4)}, v[164:167], {vr(ACC,16)}
v_mfma_f32_32x32x16_bf16 {vr(ACC+16,16)}, {vr(AF+36,4)}, v[164:167], {vr(ACC+16,16)}
KF_NO65:
s_setprio 3
s_waitcnt vmcnt(0)
s_nop 15
""")
    for q in range(8):
        A(f"ds_write_b128 v160, {vr(ACC+4*q,4)} offset:{1024*q}")
    A("s_waitcnt lgkmcnt(0)")
    aux_sync(1, "KF_S1")
    for w in range(2):
        for j in range(4):
            A(f"ds_read_b128 {vr(48+16*w+4*j,4)}, v161 offset:{16384*w + 64*j}")
    A("s_waitcnt lgkmcnt(0)")
    A("v_mov_b32 v146, 2")
    A("ds_write_b32 v6, v146")
    for i in range(16):
        A(f"v_sub_f32 v{80+i}, v{48+i}, v{64+i}")
        A(f"v_add_f32 v{96+i}, v{48+i}, v{64+i}")
    A("s_mov_b64 exec, s[64:65]")
    for j in range(4):
        A(f"buffer_store_dwordx4 {vr(80+4*j,4)}, v162, s[8:11], s35 offen {SC}")
        A(f"buffer_store_dwordx4 {vr(96+4*j,4)}, v162, s[8:11], s36 offen {SC}")
        A(f"s_add_u32 s35, s35, {4*Y_PITCH}")
        A(f"s_add_u32 s36, s36, {4*Y_PITCH}")
    A(f"""
s_lshl_b32 s34, s25, 7
s_lshl_b32 s35, s26, 4
s_add_u32 s34, s34, s35
s_lshl_b32 s35, s23, 2
s_add_u32 s34, s34, s35
s_add_u32 s34, s34, {FLAGY}
s_mov_b64 exec, 1
v_mov_b32 v4, 0
v_mov_b32 v5, 1
s_waitcnt vmcnt(0) lgkmcnt(0)
buffer_store_dword v5, v4, s[8:11], s34 offen {SC}
s_mov_b64 exec, -1
""")
    stamp(A, 3)
    A("s_branch K2_AUXEND")
    A.label("KF_NOJOB")
    A("""
v_mov_b32 v146, 2
ds_write_b32 v6, v146
s_waitcnt vmcnt(0) lgkmcnt(0)
s_barrier
""")
    A.label("K2_AUXEND")
    prof_end(A, 1)
    A.label("K2_EXIT")
    A("s_endpgm")
```

```python
from common import *

SA, SB, PA, PB, OA, OB = 16, 32, 48, 56, 64, 80
QA1, QB1, QA2, QB2 = 96, 100, 104, 106
K1F, K2F, V0, V1 = 108, 112, 116, 120
KA1, KA2, VA = 9, 10, 11
DV, PW, PRD, PV_, PCK = 12, 124, 125, 126, 127
K23_VGPR = 168
SLOT = 21504
CHUNK = 8 * KV_TS
PROG = 3 * SLOT
XR = PROG + 1024
WOTL = XR - 4096
K23_LDS = 163840
SC = "sc1"
OUTF = os.environ.get("K23_OUTF", "")
WSTART = int(os.environ.get("K23_WSTART", "5"))
LOCAL = os.environ.get("K23_LOCAL", "0") == "1"
OSC = os.environ.get("K23_OSC", "sc1")
LSC = os.environ.get("K23_LSC", "sc1")
LPROF = os.environ.get("LPROF", "0") == "1"
DIAG = os.environ.get("DIAG", "")
P3 = os.environ.get("P3PROF", "0") == "1"
PRIO = os.environ.get("K23_PRIO", "1") == "1"
PSLEEP = int(os.environ.get("K23_PSLEEP", "4"))
assert WOTL + 100 * 1024 == K23_LDS


def softmax_groups(Sx, Px):
    gs = []
    for g in range(4):
        l = [f"v_exp_f32 v{Sx+4*g+i}, v{Sx+4*g+i}" for i in range(4)]
        l += [f"v_cvt_pk_bf16_f32 v{Px+2*g+i}, v{Sx+4*g+2*i}, v{Sx+4*g+2*i+1}" for i in range(2)]
        gs.append(l)
    return gs


def qk(Sx, Q1, Q2):
    return [f"v_mfma_f32_32x32x8_bf16 {vr(Sx,16)}, {vr(K2F,2)}, {vr(Q2,2)}, 0",
            f"v_mfma_f32_32x32x16_bf16 {vr(Sx,16)}, {vr(K1F,4)}, {vr(Q1,4)}, {vr(Sx,16)}"]


def pv(Ox, Px):
    return [f"v_mfma_f32_32x32x16_bf16 {vr(Ox,16)}, {vr(V0,4)}, {vr(Px,4)}, {vr(Ox,16)}",
            f"v_mfma_f32_32x32x16_bf16 {vr(Ox,16)}, {vr(V1,4)}, {vr(Px+4,4)}, {vr(Ox,16)}"]


def poll(A, tag, vaddr, vtmp, sc):
    A(f"""
s_mov_b32 s{sc}, 0
{tag}:
buffer_load_dword v{vtmp}, v{vaddr}, s[8:11], 0 offen {SC}
s_add_u32 s{sc}, s{sc}, 1
s_waitcnt vmcnt(0)
v_cmp_eq_u32 vcc, 1, v{vtmp}
s_cmp_gt_u32 s{sc}, 0x40000
s_cbranch_scc1 {tag}_X
s_cmp_eq_u64 vcc, exec
s_cbranch_scc0 {tag}
{tag}_X:
""")


YR, GL = 152, 164


def y_loads(A):
    A(f"""
v_and_b32 v128, 15, v0
v_lshrrev_b32 v129, 4, v0
s_lshl_b32 s57, s20, 6
s_lshl_b32 s58, s23, 4
s_add_u32 s57, s57, s58
v_add_u32 v130, s57, v128
v_sub_u32 v131, 2048, v130
v_cmp_lt_u32 vcc, 1024, v130
s_mul_i32 s58, s21, 80
s_mul_i32 s59, s24, 48
s_add_u32 s58, s58, s59
v_lshl_add_u32 v132, v129, 2, s58
v_cndmask_b32 v131, v130, v131, vcc
s_movk_i32 s59, {Y_PITCH}
v_mul_u32_u24 v131, s59, v131
v_sub_u32 v133, {640-3-32}, v132
s_mov_b32 s60, {YM}
s_mov_b32 s61, {YP}
s_cmp_ge_u32 s21, 4
s_cselect_b32 s62, s61, s60
s_cselect_b32 s63, s60, s61
s_cselect_b64 s[64:65], -1, 0
v_mov_b32 v134, s62
v_mov_b32 v135, s63
v_cndmask_b32 v134, v134, v135, vcc
v_cndmask_b32 v133, v132, v133, s[64:65]
v_lshl_add_u32 v131, v133, 2, v131
v_add_u32 v131, v131, v134
v_lshlrev_b32 v133, 2, v130
s_mov_b32 s66, {GATE}
buffer_load_dword v{GL}, v133, s[8:11], s66 offen
""")
    for j in range(3):
        A(f"buffer_load_dwordx4 {vr(YR+4*j,4)}, v131, s[8:11], 0 offen offset:{64*j} {SC}")


def gen_k23(A):
    A(khead("k23_kernel"))
    A("""
s_cmp_ge_u32 s2, 256
s_cbranch_scc1 K2_EXIT
""")
    prof_begin(A)
    A(f"""
s_load_dwordx2 s[4:5], s[0:1], {KA_WS}
s_load_dwordx2 s[6:7], s[0:1], {KA_OUT}
s_load_dwordx4 s[52:55], s[0:1], {KA_SRE}
v_lshrrev_b32 v1, 6, v0
v_and_b32 v0, 63, v0
s_and_b32 s18, s2, 7
s_lshr_b32 s19, s2, 3
v_readfirstlane_b32 s22, v1
s_lshl_b32 s20, s18, 2
s_and_b32 s21, s19, 3
s_add_u32 s20, s20, s21
s_lshr_b32 s21, s2, 5
s_mov_b32 s16, {"s19" if LOCAL else "s20"}
s_mov_b32 s17, {"s18" if LOCAL else "s21"}
s_mul_i32 s27, s16, {KV_HS}
s_add_u32 s27, s27, {KVIMG}
v_and_b32 v1, 31, v0
v_lshrrev_b32 v2, 5, v0
v_lshlrev_b32 v3, 4, v0
s_mov_b32 s15, 0x00020000
s_mov_b32 s10, {WS_SIZE}
s_mov_b32 s11, 0x00020000
s_cmp_ge_u32 s22, 8
s_cbranch_scc1 K2_AUX
""")
    A(f"""
s_and_b32 s23, s22, 3
s_lshr_b32 s24, s22, 2
s_lshl_b32 s25, s17, 3
s_lshl_b32 s26, s23, 1
s_add_u32 s25, s25, s26
v_lshlrev_b32 v4, 3, v1
v_lshlrev_b32 v5, 2, v0
s_mul_i32 s28, s16, {Q_HS}
s_mul_i32 s29, s25, {Q_TS}
s_add_u32 s28, s28, s29
s_add_u32 s28, s28, {QIMG}
s_add_u32 s29, s24, 62
s_mul_i32 s29, s29, {KV_TS}
s_add_u32 s29, s29, s27
s_lshl_b32 s30, s16, 8
s_add_u32 s30, s30, {KMAX}
s_waitcnt lgkmcnt(0)
s_mov_b32 s8, s4
s_and_b32 s9, s5, 0xffff
buffer_load_dwordx4 {vr(QA1,4)}, v3, s[8:11], s28 offen
buffer_load_dwordx2 {vr(QA2,2)}, v4, s[8:11], s28 offen offset:1024
buffer_load_dword v13, v5, s[8:11], s30 offen
buffer_load_dwordx4 {vr(QB1,4)}, v3, s[8:11], s28 offen offset:1280
buffer_load_dwordx2 {vr(QB2,2)}, v4, s[8:11], s28 offen offset:2304
buffer_load_dwordx4 {vr(K1F,4)}, v3, s[8:11], s29 offen
buffer_load_dwordx2 {vr(K2F,2)}, v4, s[8:11], s29 offen offset:1024
s_mul_i32 s32, s24, {KV_TS}
v_add_u32 v{KA1}, s32, v3
v_add_u32 v14, 1024, v4
v_mov_b32 v15, {1280+320}
v_cmp_gt_u32 s[50:51], 32, v0
v_mul_u32_u24 v16, 336, v2
v_lshl_add_u32 v16, v1, 4, v16
v_cndmask_b32 v14, v15, v14, s[50:51]
v_add_u32 v{KA2}, s32, v14
v_add_u32 v16, 1280, v16
v_add_u32 v{VA}, s32, v16
s_mov_b32 s48, 0x001fffff
s_mov_b32 s49, 0x001fffff
v_mov_b32 v{DV}, {PROG + 32}
s_lshl_b32 s33, s22, 2
s_add_u32 s33, s33, {PROG}
v_mov_b32 v{PW}, s33
v_and_b32 v{PRD}, 7, v0
v_lshlrev_b32 v{PRD}, 2, v{PRD}
v_add_u32 v{PRD}, {PROG}, v{PRD}
v_mov_b32 v{PV_}, 0
ds_write_b32 v{PW}, v{PV_}
""")
    for i in range(32):
        A(f"v_mov_b32 v{OA+i}, 0")
    for i in range(8):
        A(f"v_mov_b32 v{PB+i}, 0")
        A(f"v_mov_b32 v{V0+i}, 0")
    stamp(A, 1)
    A("s_waitcnt vmcnt(0)")
    A("v_mov_b32 v15, 0x3f803f80")
    for r in (QA2, QA2 + 1, QB2, QB2 + 1):
        A(f"v_cndmask_b32 v{r}, 0, v{r}, s[50:51]")
    for r in (K2F, K2F + 1):
        A(f"v_cndmask_b32 v{r}, v15, v{r}, s[50:51]")
    dpp = [f"v_max_f32_dpp v13, v13, v13 row_ror:{ror} row_mask:0xf bank_mask:0xf" for ror in (1, 2, 4, 8)]
    dpp += ["v_max_f32_dpp v13, v13, v13 row_bcast:15 row_mask:0xa bank_mask:0xf",
            "v_max_f32_dpp v13, v13, v13 row_bcast:31 row_mask:0xc bank_mask:0xf"]
    for j, (ra, rb) in enumerate([(QA1 + i, QB1 + i) for i in range(4)] + [(QA2 + i, QB2 + i) for i in range(2)]):
        ca = "0" if j == 0 else "v16"
        cb = "0" if j == 0 else "v18"
        A(dpp[j])
        A(f"v_dot2_f32_bf16 v16, v{ra}, v{ra}, {ca}")
        A(f"v_dot2_f32_bf16 v18, v{rb}, v{rb}, {cb}")
    A("""
v_readlane_b32 s33, v13, 63
s_nop 2
v_mov_b32 v17, v16
v_mov_b32 v19, v18
s_nop 1
v_permlane32_swap_b32 v16, v17
v_permlane32_swap_b32 v18, v19
s_nop 1
v_add_f32 v16, v16, v17
v_add_f32 v18, v18, v19
v_mul_f32 v16, s33, v16
v_mul_f32 v18, s33, v18
v_sqrt_f32 v16, v16
v_sqrt_f32 v18, v18
s_nop 0
v_sub_f32 v16, 0x42800000, v16
v_sub_f32 v18, 0x42800000, v18
""")
    for (m, Q2) in ((16, QA2), (18, QB2)):
        A(f"""
v_and_b32 v20, 0xffff0000, v{m}
v_sub_f32 v21, v{m}, v20
v_and_b32 v22, 0xffff0000, v21
v_sub_f32 v23, v21, v22
v_lshrrev_b32 v20, 16, v20
v_or_b32 v20, v20, v22
v_lshrrev_b32 v23, 16, v23
v_cndmask_b32 v{Q2}, v20, v{Q2}, s[50:51]
v_cndmask_b32 v{Q2+1}, v23, v{Q2+1}, s[50:51]
""")
    A("s_nop 1")
    for m in qk(SA, QA1, QA2):
        A(m)
    A("s_mov_b32 s42, 0")
    A("s_mov_b32 s44, 0")
    A("s_mov_b32 s68, 0")

    def tile(t, extra_k=None, mid_a=None, end_b=None, nl=0):
        off = t * 2 * KV_TS
        if PRIO:
            A(f"s_setprio {3-t}")
        g = softmax_groups(SA, PA)
        m = qk(SB, QB1, QB2) + pv(OB, PB)
        A(m[0])
        A("\n".join(g[0]))
        A(m[1])
        A(f"ds_read_b128 {vr(K1F,4)}, v{KA1} offset:{off}")
        A(f"ds_read_b64 {vr(K2F,2)}, v{KA2} offset:{off}")
        A("\n".join(g[1]))
        A(m[2])
        A("\n".join(g[2]))
        A(m[3])
        A("s_mov_b64 exec, s[48:49]")
        A(f"ds_read_b128 {vr(V0,4)}, v{VA} offset:{off}")
        A(f"ds_read_b128 {vr(V1,4)}, v{VA} offset:{off+672}")
        A("s_mov_b64 exec, -1")
        A("\n".join(g[3]))
        if mid_a:
            mid_a()
        g = softmax_groups(SB, PB)
        m = qk(SA, QA1, QA2) + pv(OA, PA)
        A(f"s_waitcnt lgkmcnt({2+nl})")
        A(m[0])
        A("\n".join(g[0]))
        A(m[1])
        A("\n".join(g[1]))
        A(f"s_waitcnt lgkmcnt({nl})")
        A(m[2])
        if extra_k:
            extra_k()
        A("\n".join(g[2]))
        A(m[3])
        if end_b:
            end_b()
        A("\n".join(g[3]))

    def sig_enter():
        A(f"v_add_u32 v{PV_}, 1, v{PV_}")
        A(f"ds_write_b32 v{PW}, v{PV_}")

    def ctl():
        A(f"""
s_add_u32 s42, s42, 1
s_add_u32 s44, s44, 1
s_cmp_eq_u32 s44, 3
s_cselect_b32 s44, 0, s44
s_mov_b32 s43, {SLOT}
s_cselect_b32 s43, {(-2*SLOT) & 0xffffffff}, s43
s_cmp_eq_u32 s42, 8
s_cbranch_scc1 K2_YREQ
K2_YDONE:
""")

    def chk_read():
        A(f"ds_read_b32 v{PCK}, v{DV}")

    def upd():
        A(f"v_add_u32 v{KA1}, s43, v{KA1}")
        A(f"v_add_u32 v{KA2}, s43, v{KA2}")
        A(f"v_add_u32 v{VA}, s43, v{VA}")

    A("s_waitcnt lgkmcnt(0)")
    A("s_barrier")
    stamp(A, 2)
    A("s_nop 7")
    A.label("K2_LOOP")
    if PROF and LPROF:
        for it, sl in ((1, 1), (2, 3), (4, 4), (6, 5), (7, 6)):
            A(f"s_cmp_eq_u32 s42, {it}")
            A(f"s_cbranch_scc0 K2_NS{it}")
            stamp(A, sl)
            A.label(f"K2_NS{it}")
    tile(0, mid_a=sig_enter, nl=1)
    tile(1, mid_a=ctl)
    tile(2)
    tile(3, extra_k=chk_read, end_b=upd)
    A(f"""
s_waitcnt lgkmcnt(0)
v_cmp_gt_u32 vcc, v{PCK}, v{PV_}
s_cmp_lt_u32 s42, 8
s_cbranch_vccz K2_SPIN
s_cbranch_scc1 K2_LOOP
s_branch K2_LOOPEND
K2_SPIN:
s_sleep 2
ds_read_b32 v{PCK}, v{DV}
s_waitcnt lgkmcnt(0)
v_cmp_gt_u32 vcc, v{PCK}, v{PV_}
s_nop 1
s_cbranch_vccz K2_SPIN
s_cbranch_scc1 K2_LOOP
s_branch K2_LOOPEND
K2_YREQ:
ds_read_b32 v129, v{DV} offset:4
s_waitcnt lgkmcnt(0)
v_cmp_eq_u32 vcc, 3, v129
s_nop 1
s_cbranch_vccz K2_YDONE
s_mov_b32 s68, 1
""")
    y_loads(A)
    A("s_branch K2_YDONE")
    A.label("K2_LOOPEND")
    if not LPROF: stamp(A, 3)
    for m in pv(OB, PB):
        A(m)
    A(f"""
s_mul_i32 s34, s23, 3072
s_mul_i32 s47, s24, {2*SLOT}
s_add_u32 s56, s34, s47
v_add_u32 v13, s56, v3
s_sub_u32 s47, {2*SLOT}, s47
s_add_u32 s56, s34, s47
v_add_u32 v14, s56, v3
s_add_u32 s46, s25, s24
s_mul_i32 s35, s46, 40960
s_mul_i32 s36, s16, 1280
s_add_u32 s36, s36, s35
s_add_u32 s36, s36, {OIMG}
s_nop 3
s_cmp_eq_u32 s24, 0
s_cbranch_scc0 K2_X1
""")
    for q in range(3):
        A(f"ds_write_b128 v13, {vr(OB+4*q,4)} offset:{1024*q}")
    A("s_branch K2_X2")
    A.label("K2_X1")
    for q in range(3):
        A(f"ds_write_b128 v13, {vr(OA+4*q,4)} offset:{1024*q}")
    A("s_nop 4")
    for i in range(12):
        A(f"v_mov_b32 v{OA+i}, v{OB+i}")
    A.label("K2_X2")
    A("s_waitcnt lgkmcnt(0)")
    A("s_barrier")
    if not LPROF: stamp(A, 4)
    for q in range(3):
        A(f"ds_read_b128 {vr(16+4*q,4)}, v14 offset:{1024*q}")
    A("s_waitcnt lgkmcnt(0)")
    for i in (8, 0, 1, 2, 3, 4, 5, 6, 7, 9, 10, 11):
        A(f"v_add_f32 v{OA+i}, v{OA+i}, v{16+i}")
        if i == 8:
            A(f"v_mov_b32 v28, v{OA+8}")
            A(f"v_mov_b32 v29, v{OA+8}")
        if i == 1:
            A("v_permlane32_swap_b32 v28, v29")
        if i == 4:
            A("v_cmp_nle_f32 vcc, 0x0d800000, v29")
            A("v_rcp_f32 v29, v29")
    A("s_cbranch_vccnz K2_SLOW")
    A.label("K2_FINAL")
    for i in range(12):
        A(f"v_mul_f32 v{OA+i}, v{OA+i}, v29")
    for i in range(6):
        A(f"v_cvt_pk_bf16_f32 v{52+i}, v{OA+2*i}, v{OA+2*i+1}")
    A(f"""
buffer_store_dwordx4 v[52:55], v3, s[8:11], s36 offen {OSC}
s_mov_b64 exec, s[50:51]
buffer_store_dwordx2 v[56:57], v4, s[8:11], s36 offen offset:1024 {OSC}
s_mov_b64 exec, -1
s_nop 0
""")
    ACC, OF, WF = 32, 52, 92
    A(f"""
s_lshl_b32 s56, s24, 13
v_add_u32 v4, s56, v3
v_add_u32 v5, {WOTL}, v4
v_add_u32 v6, {WOTL + 61440}, v4
s_lshl_b32 s56, s24, 11
v_add_u32 v4, s56, v3
v_add_u32 v12, {WOTL + 16384}, v4
v_add_u32 v14, {WOTL + 16384 + 61440}, v4
s_mul_i32 s67, s21, 102400
s_add_u32 s67, s67, {WOT}
""")
    ORDER = [4, 5, 6, 7, 8, 9, 0, 1, 2, 3]

    def wo_read(i, slot, skip0=False):
        for cb in range(5):
            if skip0 and cb == 0:
                continue
            if i < 8:
                a, off = ("v5", cb * 20480) if cb < 3 else ("v6", (cb - 3) * 20480)
                off += i * 1024
            else:
                a, off = ("v12", cb * 20480) if cb < 3 else ("v14", (cb - 3) * 20480)
                off += (i - 8) * 1024
            A(f"ds_read_b128 {vr(WF+20*slot+4*cb,4)}, {a} offset:{off}")
    A(f"""
v_and_b32 v9, 15, v0
v_lshrrev_b32 v10, 4, v0
s_lshl_b32 s57, s20, 6
s_lshl_b32 s58, s23, 4
s_add_u32 s57, s57, s58
v_add_u32 v11, s57, v9
s_mul_i32 s58, s21, 80
s_mul_i32 s59, s24, 48
s_add_u32 s58, s58, s59
v_lshl_add_u32 v13, v10, 2, s58
s_movk_i32 s59, 1280
v_mul_u32_u24 v11, s59, v11
v_lshl_add_u32 v11, v13, 1, v11
s_mov_b32 s12, s6
s_and_b32 s13, s7, 0xffff
s_mov_b32 s14, {S*D*2}
s_lshl_b32 s57, s20, 1
s_lshr_b32 s58, s23, 1
s_add_u32 s57, s57, s58
s_mul_i32 s51, s57, 40960
s_add_u32 s51, s51, {OIMG}
s_and_b32 s58, s23, 1
s_lshl_b32 s58, s58, 4
v_add_u32 v9, s58, v9
v_lshrrev_b32 v15, 1, v10
v_mul_u32_u24 v15, 1280, v15
v_and_b32 v13, 1, v10
v_lshl_add_u32 v15, v13, 9, v15
v_lshl_add_u32 v7, v9, 4, v15
v_mul_u32_u24 v8, 2560, v10
v_lshl_add_u32 v8, v9, 3, v8
v_add_u32 v8, 1024, v8
s_mul_i32 s58, s24, 20480
s_add_u32 s52, s51, s58
s_mov_b32 s69, 0
s_cmp_eq_u32 s24, 0
s_cbranch_scc0 K3_W1
""")
    for k in range(4):
        A(f"buffer_load_dwordx4 {vr(16+4*k,4)}, v3, s[8:11], s67 offen offset:{1024*k}")
    A("s_branch K3_W2")
    A.label("K3_W1")
    for k in range(4):
        A(f"ds_read_b128 {vr(16+4*k,4)}, v5 offset:{k*1024}")
    A.label("K3_W2")
    for n in range(3):
        wo_read(ORDER[n], n)
    if not LPROF: stamp(A, 5)
    A("s_barrier")
    if not LPROF: stamp(A, 6)
    A.label("K3_RETRY")
    NLD = []
    for n, i in enumerate(ORDER):
        if i < 8:
            A(f"s_add_u32 s53, s52, {2560*i}")
            A(f"buffer_load_dwordx4 {vr(OF+4*n,4)}, v7, s[8:11], s53 offen {SC}")
            NLD.append(1)
        else:
            A(f"s_add_u32 s53, s52, {10240*(i-8)}")
            A(f"buffer_load_dwordx2 {vr(OF+4*n,2)}, v8, s[8:11], s53 offen {SC}")
            A(f"buffer_load_dwordx2 {vr(OF+4*n+2,2)}, v8, s[8:11], s53 offen offset:1280 {SC}")
            NLD.append(2)
    A("v_mov_b32 v166, 0")
    for n, i in enumerate(ORDER):
        slot = n % 3
        if n == 0:
            A(f"s_waitcnt vmcnt({sum(NLD[n+1:])}) lgkmcnt(0)")
        else:
            younger = sum((4 if ORDER[k] < 4 else 5) for k in (n + 1, n + 2) if 3 <= k < 10)
            A(f"s_waitcnt vmcnt({sum(NLD[n+1:])}) lgkmcnt({younger})")
        for cb in range(5):
            acc = vr(ACC + 4 * cb, 4)
            c = "0" if n == 0 else acc
            w = vr(16 + 4 * i, 4) if (i < 4 and cb == 0) else vr(WF + 20 * slot + 4 * cb, 4)
            A(f"v_mfma_f32_16x16x32_bf16 {acc}, {w}, {vr(OF+4*n,4)}, {c}")
        if n + 3 < 10:
            wo_read(ORDER[n + 3], slot, skip0=(ORDER[n + 3] < 4))
        A(f"v_max3_u32 v166, v{OF+4*n}, v{OF+4*n+1}, v166")
        A(f"v_max3_u32 v166, v{OF+4*n+2}, v{OF+4*n+3}, v166")
    A("""
v_cmp_eq_u32 vcc, -1, v166
s_add_u32 s69, s69, 1
s_cmp_gt_u32 s69, 0x4000
s_cbranch_vccz K3_VALID
s_cbranch_scc1 K3_VALID
""")
    for n in range(3):
        wo_read(ORDER[n], n)
    A("s_branch K3_RETRY")
    A.label("K3_VALID")
    if P3:
        stamp(A, 1)
    A("s_cmp_eq_u32 s68, 1")
    A("s_cbranch_scc1 K2_HAVEY")
    y_loads(A)
    A("s_waitcnt vmcnt(3)")
    A.label("K2_HAVEY")
    A(f"""
s_mul_i32 s56, s22, 3072
s_add_u32 s56, s56, {SLOT - 8192}
v_add_u32 v9, s56, v3
s_xor_b32 s57, s22, 4
s_mul_i32 s57, s57, 3072
s_add_u32 s57, s57, {SLOT - 8192}
v_add_u32 v10, s57, v3
s_nop 1
s_cmp_eq_u32 s24, 0
s_cbranch_scc0 K3_X1
""")
    for j in range(2):
        A(f"ds_write_b128 v9, {vr(ACC+12+4*j,4)} offset:{1024*j}")
    A("s_branch K3_X2")
    A.label("K3_X1")
    for j in range(3):
        A(f"ds_write_b128 v9, {vr(ACC+4*j,4)} offset:{1024*j}")
    A("s_nop 4")
    for i in range(8):
        A(f"v_mov_b32 v{ACC+i}, v{ACC+12+i}")
    A.label("K3_X2")
    A(f"""
v_mul_f32 v{GL}, 0xbfb8aa3b, v{GL}
v_exp_f32 v{GL}, v{GL}
s_nop 0
v_add_f32 v{GL}, 1.0, v{GL}
v_rcp_f32 v{GL}, v{GL}
s_nop 0
v_sub_f32 v{GL+1}, 1.0, v{GL}
""")
    A("s_waitcnt lgkmcnt(0)")
    A("s_barrier")
    if P3:
        stamp(A, 2)
    for j in range(3):
        A(f"ds_read_b128 {vr(52+4*j,4)}, v10 offset:{1024*j}")
    A("s_waitcnt lgkmcnt(0)")
    for i in range(12):
        A(f"v_add_f32 v{ACC+i}, v{ACC+i}, v{52+i}")
    for i in range(12):
        A(f"v_mul_f32 v{ACC+i}, v{ACC+i}, v{GL+1}")
    A("s_cmp_ge_u32 s21, 4")
    A("s_waitcnt vmcnt(0)")
    A("s_cbranch_scc1 K3_REV")
    for i in range(12):
        A(f"v_fmac_f32 v{ACC+i}, v{YR+i}, v{GL}")
    A("s_branch K3_ST")
    A.label("K3_REV")
    for i in range(12):
        A(f"v_fmac_f32 v{ACC+i}, v{YR+11-i}, v{GL}")
    A.label("K3_ST")
    for i in range(6):
        A(f"v_cvt_pk_bf16_f32 v{16+i}, v{ACC+2*i}, v{ACC+2*i+1}")
    A(f"""
buffer_store_dwordx2 v[16:17], v11, s[12:15], 0 offen {OUTF}
buffer_store_dwordx2 v[18:19], v11, s[12:15], 0 offen offset:32 {OUTF}
s_cmp_eq_u32 s24, 0
s_cbranch_scc0 K3_DONE
buffer_store_dwordx2 v[20:21], v11, s[12:15], 0 offen offset:64 {OUTF}
K3_DONE:
""")
    prof_end(A, 2)
    A("s_endpgm")

    A.label("K2_SLOW")
    A("s_cmp_eq_u32 s24, 0")
    A("s_cbranch_scc1 K2_SL0")
    for i in range(4):
        A(f"v_mov_b32 v{QA1+i}, v{QB1+i}")
    for i in range(2):
        A(f"v_mov_b32 v{QA2+i}, v{QB2+i}")
    A.label("K2_SL0")
    A(f"""
v_cndmask_b32 v{QA2}, 0, v{QA2}, s[50:51]
v_cndmask_b32 v{QA2+1}, 0, v{QA2+1}, s[50:51]
v_mov_b32 v128, 0xff800000
v_mov_b32 v129, 0x3f803f80
v_mul_u32_u24 v130, 336, v2
v_lshl_add_u32 v130, v1, 4, v130
v_add_u32 v130, 1280, v130
s_mov_b32 s56, s27
s_mov_b32 s57, 0
K2_SL1:
buffer_load_dwordx4 {vr(K1F,4)}, v3, s[8:11], s56 offen
buffer_load_dwordx2 {vr(K2F,2)}, v4, s[8:11], s56 offen offset:1024
s_waitcnt vmcnt(0)
""")
    for m in qk(SA, QA1, QA2):
        A(m)
    A("s_nop 15")
    A("s_nop 3")
    for i in range(8):
        A(f"v_max3_f32 v128, v{SA+2*i}, v{SA+2*i+1}, v128")
    A(f"""
s_add_u32 s56, s56, {KV_TS}
s_add_u32 s57, s57, 1
s_cmp_lt_u32 s57, 64
s_cbranch_scc1 K2_SL1
v_mov_b32 v131, v128
s_nop 1
v_permlane32_swap_b32 v128, v131
s_nop 1
v_max_f32 v128, v128, v131
v_mul_f32 v128, -1.0, v128
v_and_b32 v132, 0xffff0000, v128
v_sub_f32 v133, v128, v132
v_and_b32 v134, 0xffff0000, v133
v_sub_f32 v135, v133, v134
v_lshrrev_b32 v132, 16, v132
v_or_b32 v132, v132, v134
v_lshrrev_b32 v135, 16, v135
v_cndmask_b32 v{QA2}, v132, v{QA2}, s[50:51]
v_cndmask_b32 v{QA2+1}, v135, v{QA2+1}, s[50:51]
""")
    for i in range(16):
        A(f"v_mov_b32 v{OA+i}, 0")
    A(f"""
s_mov_b32 s57, 0
K2_SL2:
s_add_u32 s58, s57, 62
s_and_b32 s58, s58, 63
s_mul_i32 s58, s58, {KV_TS}
s_add_u32 s58, s58, s27
s_mul_i32 s56, s57, {KV_TS}
s_add_u32 s56, s56, s27
buffer_load_dwordx4 {vr(K1F,4)}, v3, s[8:11], s58 offen
buffer_load_dwordx2 {vr(K2F,2)}, v4, s[8:11], s58 offen offset:1024
buffer_load_dwordx4 {vr(V0,4)}, v130, s[8:11], s56 offen
buffer_load_dwordx4 {vr(V1,4)}, v130, s[8:11], s56 offen offset:672
s_waitcnt vmcnt(0)
v_cndmask_b32 v{K2F}, v129, v{K2F}, s[50:51]
v_cndmask_b32 v{K2F+1}, v129, v{K2F+1}, s[50:51]
s_nop 1
""")
    for m in qk(SA, QA1, QA2):
        A(m)
    A("s_nop 15")
    A("s_nop 3")
    for g in softmax_groups(SA, PA):
        A("\n".join(g))
    A("s_nop 1")
    for m in pv(OA, PA):
        A(m)
    A(f"""
s_add_u32 s57, s57, 1
s_cmp_lt_u32 s57, 64
s_cbranch_scc1 K2_SL2
s_nop 15
s_nop 3
v_mov_b32 v28, v{OA+8}
v_mov_b32 v29, v{OA+8}
s_nop 1
v_permlane32_swap_b32 v28, v29
s_nop 1
v_rcp_f32 v29, v29
s_nop 0
s_branch K2_FINAL
""")

    A.label("K2_AUX")
    A(f"""
s_sub_u32 s22, s22, 8
s_mul_i32 s46, s22, 5120
v_add_u32 v6, s46, v3
v_add_u32 v7, 4096, v6
s_mov_b32 m0, s46
s_waitcnt lgkmcnt(0)
s_mov_b32 s8, s4
s_and_b32 s9, s5, 0xffff
""")
    for q in range(4):
        A(f"buffer_load_dwordx4 v6, s[8:11], s27 offen offset:{1024*q} lds")
    A("s_add_u32 m0, m0, 4096")
    A("s_cmp_eq_u32 s22, 3")
    A(f"buffer_load_dwordx4 v7, s[8:11], s27 offen lds")
    A("s_cbranch_scc0 K2_A0")
    A(f"buffer_load_dwordx4 v7, s[8:11], s27 offen offset:1024 lds")
    A.label("K2_A0")
    A(f"""
s_mul_i32 s47, s21, 102400
s_add_u32 s47, s47, {WOT}
s_lshl_b32 s33, s22, 2
s_add_u32 s33, s33, {PROG + 32}
v_mov_b32 v6, s33
v_and_b32 v7, 3, v0
v_lshlrev_b32 v7, 2, v7
v_add_u32 v7, {PROG + 32}, v7
v_mov_b32 v146, 0
ds_write_b32 v6, v146
""")

    def wot_dma(f0, n):
        A(f"s_lshl_b32 s56, s22, 10")
        A(f"s_add_u32 s57, s56, s47")
        A(f"s_add_u32 s57, s57, {f0*1024}")
        A(f"s_add_u32 s58, s56, {WOTL + f0*1024}")
        for k in range(n):
            A("s_mov_b32 m0, s58")
            A("s_add_u32 s58, s58, 4096")
            A(f"buffer_load_dwordx4 v3, s[8:11], s57 offen lds")
            A("s_add_u32 s57, s57, 4096")
            if k >= 3:
                A("s_waitcnt vmcnt(3)")

    def aux_sync(val, tag):
        A(f"""
v_mov_b32 v146, {val}
ds_write_b32 v6, v146
{tag}:
ds_read_b32 v147, v7
s_waitcnt lgkmcnt(0)
v_cmp_le_u32 vcc, {val}, v147
s_nop 0
s_cmp_eq_u64 vcc, exec
s_cbranch_scc1 {tag}_X
s_sleep 4
s_branch {tag}
{tag}_X:
""")

    A("""
s_cmp_eq_u32 s22, 1
s_cbranch_scc1 K2_WOTW
s_cmp_ge_u32 s22, 2
s_cbranch_scc1 K2_FNW
""")
    A(f"""
v_and_b32 v7, 7, v0
v_lshlrev_b32 v7, 2, v7
v_add_u32 v7, {PROG}, v7
s_add_u32 s41, s27, {CHUNK}
s_mov_b32 s40, {SLOT}
s_mov_b32 s42, 1
s_waitcnt vmcnt(0) lgkmcnt(0)
s_barrier
K2_LDLOOP:
s_cmp_lt_u32 s42, 3
s_cbranch_scc1 K2_LDGO
s_sub_u32 s43, s42, 1
K2_LDSPIN:
ds_read_b32 v147, v7
s_waitcnt lgkmcnt(0)
v_cmp_le_u32 vcc, s43, v147
s_nop 0
s_cmp_eq_u64 vcc, exec
s_cbranch_scc1 K2_LDGO
s_sleep 2
s_branch K2_LDSPIN
K2_LDGO:
s_mov_b32 s44, s41
s_mov_b32 m0, s40
""")
    for q in range(21):
        if q and q % 4 == 0:
            A("s_add_u32 m0, m0, 4096")
            A("s_add_u32 s44, s44, 4096")
        elif q == 0:
            A("s_nop 0")
        A(f"buffer_load_dwordx4 v3, s[8:11], s44 offen offset:{1024*(q%4)} lds")
    A(f"""
s_add_u32 s41, s41, {CHUNK}
s_add_u32 s40, s40, {SLOT}
s_cmp_eq_u32 s40, {3*SLOT}
s_cselect_b32 s40, 0, s40
s_add_u32 s42, s42, 1
v_mov_b32 v146, s42
s_waitcnt vmcnt(0)
ds_write_b32 v6, v146
s_cmp_lt_u32 s42, 8
s_cbranch_scc1 K2_LDLOOP
K2_LDFIN:
ds_read_b32 v147, v7
s_waitcnt lgkmcnt(0)
v_cmp_le_u32 vcc, 8, v147
s_nop 0
s_cmp_eq_u64 vcc, exec
s_cbranch_scc1 K2_LDFIN_X
s_sleep 2
s_branch K2_LDFIN
K2_LDFIN_X:
v_mov_b32 v146, 9
ds_write_b32 v6, v146
s_mul_i32 s34, s20, 81920
s_add_u32 s34, s34, {OIMG + 1276}
v_mul_u32_u24 v4, 1280, v0
v_add_u32 v4, s34, v4
s_mov_b32 s39, 0
s_waitcnt lgkmcnt(0)
s_barrier
K2_POLL:
s_sleep {PSLEEP}
buffer_load_dword v12, v4, s[8:11], 0 offen {SC}
s_add_u32 s39, s39, 1
s_waitcnt vmcnt(0)
v_cmp_eq_u32 vcc, -1, v12
s_cmp_gt_u32 s39, 0x8000
s_cbranch_scc1 K2_POLL_X
s_cbranch_vccnz K2_POLL
K2_POLL_X:
s_barrier
s_branch K2_AUXEND
""")
    A.label("K2_WOTW")
    A(f"""
v_and_b32 v7, 1, v0
v_lshlrev_b32 v7, 2, v7
v_add_u32 v7, {PROG + 40}, v7
v_mov_b32 v13, {PROG + 32}
s_waitcnt vmcnt(0) lgkmcnt(0)
s_barrier
K2_WWAIT:
s_sleep 16
ds_read_b32 v14, v13
s_waitcnt lgkmcnt(0)
v_cmp_le_u32 vcc, {WSTART}, v14
s_nop 1
s_cbranch_vccz K2_WWAIT
s_add_u32 s57, s47, {36*1024}
s_mov_b32 s58, {WOTL + 36*1024}
s_mov_b32 s59, 16
K2_WLOOP:
s_mov_b32 m0, s58
s_add_u32 s58, s58, 4096
""")
    for q in range(4):
        A(f"buffer_load_dwordx4 v3, s[8:11], s57 offen offset:{1024*q} lds")
    A(f"""
s_add_u32 s57, s57, 4096
s_sub_u32 s59, s59, 1
s_waitcnt vmcnt(4)
s_cmp_lg_u32 s59, 0
s_cbranch_scc1 K2_WLOOP
s_cmp_eq_u32 s58, {WOTL + 36*1024}
s_cbranch_scc1 K2_WDONE
K2_WSPIN:
ds_read_b32 v147, v7
s_waitcnt lgkmcnt(0)
v_cmp_le_u32 vcc, 2, v147
s_nop 0
s_cmp_eq_u64 vcc, exec
s_cbranch_scc1 K2_WLATE
s_sleep 8
s_branch K2_WSPIN
K2_WLATE:
s_add_u32 s57, s47, {4*1024}
s_mov_b32 s58, {WOTL + 4*1024}
s_mov_b32 s59, 8
s_branch K2_WLOOP
K2_WDONE:
s_lshl_b32 s35, s20, 1
s_sub_u32 s36, 62, s35
s_cmp_lt_u32 s20, 16
s_cselect_b32 s35, s35, s36
s_mul_i32 s36, s21, 80
s_sub_u32 s37, 561, s36
s_cmp_lt_u32 s21, 4
s_cselect_b32 s36, s36, s37
s_lshr_b32 s36, s36, 6
v_bfe_u32 v5, v0, 2, 2
v_min_u32 v5, 2, v5
v_bfe_u32 v9, v0, 4, 2
v_min_u32 v9, 2, v9
v_add_u32 v5, s36, v5
v_min_u32 v5, 5, v5
v_add_u32 v9, s35, v9
v_lshlrev_b32 v9, 7, v9
v_lshl_add_u32 v5, v5, 4, v9
v_and_b32 v9, 1, v0
v_lshl_add_u32 v5, v9, 2, v5
v_add_u32 v5, {FLAGY}, v5
s_mov_b32 s39, 0
s_mov_b32 s40, 0
v_mov_b32 v13, {PROG + 32}
K2_POLLY:
buffer_load_dword v12, v5, s[8:11], 0 offen {SC}
ds_read_b32 v14, v13
s_add_u32 s39, s39, 1
s_waitcnt vmcnt(0) lgkmcnt(0)
v_cmp_eq_u32 vcc, 1, v12
s_cmp_gt_u32 s39, 0x20000
s_cbranch_scc1 K2_POLLY_X
s_cmp_eq_u64 vcc, exec
s_cbranch_scc1 K2_POLLY_OK
v_cmp_le_u32 vcc, 9, v14
s_cmp_eq_u32 s40, 1
s_cbranch_scc1 K2_POLLY_S
s_cbranch_vccz K2_POLLY_S
s_mov_b32 s40, 1
s_barrier
s_branch K2_POLLY
K2_POLLY_S:
s_sleep 8
s_branch K2_POLLY
K2_POLLY_OK:
v_mov_b32 v146, 3
ds_write_b32 v6, v146
K2_POLLY_X:
s_waitcnt lgkmcnt(0)
""")
    stamp(A, 4)
    A("""
s_cmp_eq_u32 s40, 1
s_cbranch_scc1 K2_AUXEND
s_barrier
s_branch K2_AUXEND
""")

    A.label("K2_FNW")
    A("""
s_mul_i32 s25, s19, 43
s_lshr_b32 s25, s25, 8
s_mul_i32 s26, s25, 6
s_sub_u32 s26, s19, s26
s_lshl_b32 s23, s18, 2
s_add_u32 s25, s25, s23
s_cmp_lt_u32 s19, 24
s_cbranch_scc1 KF_JOB
s_mov_b32 s25, 32
s_mov_b32 s26, s18
s_cmp_gt_u32 s19, 24
s_cbranch_scc1 KF_NOJOB
s_cmp_ge_u32 s26, 6
s_cbranch_scc1 KF_NOJOB
KF_JOB:
""")
    ACC, CF, AF = 16, 48, 64
    A(f"""
s_sub_u32 s23, s22, 2
s_mov_b32 s30, {FAC}
s_mov_b32 s31, {FAS}
s_cmp_eq_u32 s23, 0
s_cselect_b32 s60, s52, s54
s_cselect_b32 s61, s53, s55
s_cselect_b32 s30, s30, s31
s_and_b32 s61, s61, 0xffff
s_mov_b32 s62, {S*S*2}
s_mov_b32 s63, 0x00020000
s_lshl_b32 s28, s25, 5
v_lshrrev_b32 v4, 3, v0
v_add_u32 v4, s28, v4
v_lshlrev_b32 v4, 12, v4
v_and_b32 v5, 7, v0
v_lshrrev_b32 v9, 4, v0
v_xor_b32 v5, v5, v9
v_lshl_add_u32 v8, v5, 4, v4
v_xor_b32 v9, 64, v8
v_add_u32 v9, 0x8000, v9
v_add_u32 v10, 0x10000, v8
v_add_u32 v11, 0x10000, v9
s_lshl_b32 s33, s23, 14
s_add_u32 s33, s33, {XR}
v_bfe_u32 v4, v1, 1, 3
v_lshlrev_b32 v5, 2, v2
v_lshl_add_u32 v160, v1, 7, s33
""")
    for u in range(4):
        A(f"v_add_u32 v161, {u}, v5")
        A("v_xor_b32 v161, v161, v4")
        A(f"v_lshl_add_u32 v{12+u}, v161, 4, v160")
    A(f"""
s_mov_b32 s29, 0
s_lshl_b32 s31, s26, 11
s_add_u32 s30, s30, s31
v_add_u32 v4, s28, v1
v_lshlrev_b32 v5, 12, v4
v_lshl_add_u32 v5, v2, 4, v5
v_add_u32 v160, s33, v3
v_and_b32 v64, 15, v0
v_lshrrev_b32 v65, 4, v0
s_lshl_b32 s34, s23, 4
v_add_u32 v65, s34, v65
v_lshrrev_b32 v66, 1, v64
v_lshlrev_b32 v66, 10, v66
v_and_b32 v67, 1, v64
v_lshl_add_u32 v67, v67, 5, v65
v_lshl_add_u32 v161, v67, 4, v66
v_add_u32 v161, {XR}, v161
v_add_u32 v65, s28, v65
s_movk_i32 s34, {Y_PITCH}
v_mul_u32_u24 v162, s34, v65
v_lshl_add_u32 v162, v64, 4, v162
s_lshl_b32 s35, s26, 8
s_add_u32 s36, s35, {YP}
s_add_u32 s35, s35, {YM}
s_mov_b32 s64, 0x00ff00ff
s_cmp_eq_u32 s26, 5
s_cselect_b32 s64, s64, -1
s_cselect_b32 s32, s23, 0
s_mov_b32 s65, s64
v_and_b32 v7, 1, v0
v_lshlrev_b32 v7, 2, v7
v_add_u32 v7, {PROG + 40}, v7
""")
    for i in range(32):
        A(f"v_mov_b32 v{ACC+i}, 0")
    A("s_waitcnt vmcnt(0) lgkmcnt(0)")
    A("s_barrier")
    A("s_cmp_eq_u32 s32, 1")
    A("s_cbranch_scc1 KF_NO65")

    def issue_c(buf):
        for q in range(4):
            A(f"s_add_u32 m0, s33, {buf*4096 + q*1024}")
            A("s_nop 0")
            A(f"buffer_load_dwordx4 v{8+q}, s[60:63], s29 offen lds")
        A("s_add_u32 s29, s29, 128")

    def issue_a(st):
        for u in range(4):
            reg = AF + 32 * st + 8 * u
            A(f"buffer_load_dwordx4 {vr(reg,4)}, v3, s[8:11], s30 offen")
            A(f"buffer_load_dwordx4 {vr(reg+4,4)}, v3, s[8:11], s30 offen offset:1024")
            A(f"s_add_u32 s30, s30, {FA_KS}")

    def rnd(st):
        A("s_waitcnt vmcnt(24)")
        for u in range(4):
            A(f"ds_read_b128 {vr(CF+4*u,4)}, v{12+u} offset:{st*4096}")
        for u in range(4):
            A(f"s_waitcnt lgkmcnt({3-u})")
            reg = AF + 32 * st + 8 * u
            for b in range(2):
                acc = vr(ACC + 16 * b, 16)
                A(f"v_mfma_f32_32x32x16_bf16 {acc}, {vr(reg+4*b,4)}, {vr(CF+4*u,4)}, {acc}")
                A(f"buffer_load_dwordx4 {vr(reg+4*b,4)}, v3, s[8:11], s30 offen offset:{1024*b}")
            A(f"s_add_u32 s30, s30, {FA_KS}")
        issue_c(st)

    A("buffer_load_dwordx4 v[164:167], v5, s[60:63], 0 offen offset:2048")
    for st in range(3):
        issue_c(st); issue_a(st)
    A("s_mov_b32 s42, 0")
    stamp(A, 1)
    A.label("KF_LOOP")
    for st in range(3):
        rnd(st)
    A("""
s_add_u32 s42, s42, 1
s_cmp_lt_u32 s42, 5
s_cbranch_scc1 KF_LOOP
s_waitcnt vmcnt(24)
""")
    for u in range(4):
        A(f"ds_read_b128 {vr(CF+4*u,4)}, v{12+u}")
    for u in range(4):
        A(f"s_waitcnt lgkmcnt({3-u})")
        for b in range(2):
            acc = vr(ACC + 16 * b, 16)
            A(f"v_mfma_f32_32x32x16_bf16 {acc}, {vr(AF+8*u+4*b,4)}, {vr(CF+4*u,4)}, {acc}")
    stamp(A, 2)
    A(f"""
s_cmp_eq_u32 s23, 0
s_cbranch_scc0 KF_NO65
s_waitcnt vmcnt(12)
v_mfma_f32_32x32x16_bf16 {vr(ACC,16)}, {vr(AF+32,4)}, v[164:167], {vr(ACC,16)}
v_mfma_f32_32x32x16_bf16 {vr(ACC+16,16)}, {vr(AF+36,4)}, v[164:167], {vr(ACC+16,16)}
KF_NO65:
s_setprio 3
s_waitcnt vmcnt(0)
s_nop 15
""")
    for q in range(8):
        A(f"ds_write_b128 v160, {vr(ACC+4*q,4)} offset:{1024*q}")
    A("s_waitcnt lgkmcnt(0)")
    aux_sync(1, "KF_S1")
    for w in range(2):
        for j in range(4):
            A(f"ds_read_b128 {vr(48+16*w+4*j,4)}, v161 offset:{16384*w + 64*j}")
    A("s_waitcnt lgkmcnt(0)")
    A("v_mov_b32 v146, 2")
    A("ds_write_b32 v6, v146")
    for i in range(16):
        A(f"v_sub_f32 v{80+i}, v{48+i}, v{64+i}")
        A(f"v_add_f32 v{96+i}, v{48+i}, v{64+i}")
    A("s_mov_b64 exec, s[64:65]")
    for j in range(4):
        A(f"buffer_store_dwordx4 {vr(80+4*j,4)}, v162, s[8:11], s35 offen {SC}")
        A(f"buffer_store_dwordx4 {vr(96+4*j,4)}, v162, s[8:11], s36 offen {SC}")
        A(f"s_add_u32 s35, s35, {4*Y_PITCH}")
        A(f"s_add_u32 s36, s36, {4*Y_PITCH}")
    A(f"""
s_lshl_b32 s34, s25, 7
s_lshl_b32 s35, s26, 4
s_add_u32 s34, s34, s35
s_lshl_b32 s35, s23, 2
s_add_u32 s34, s34, s35
s_add_u32 s34, s34, {FLAGY}
s_mov_b64 exec, 1
v_mov_b32 v4, 0
v_mov_b32 v5, 1
s_waitcnt vmcnt(0) lgkmcnt(0)
buffer_store_dword v5, v4, s[8:11], s34 offen {SC}
s_mov_b64 exec, -1
""")
    stamp(A, 3)
    A("s_branch K2_AUXEND")
    A.label("KF_NOJOB")
    A("""
v_mov_b32 v146, 2
ds_write_b32 v6, v146
s_waitcnt vmcnt(0) lgkmcnt(0)
s_barrier
""")
    A.label("K2_AUXEND")
    prof_end(A, 1)
    A.label("K2_EXIT")
    A("s_endpgm")
```

```python
S, D, H, DH = 2048, 640, 32, 20

QIMG   = 0x0
Q_HS, Q_TS = 81920, 1280
KVIMG  = 0x300000
KV_HS, KV_TS = 172032, 2688
KMAX   = 0x840000
GATE   = 0x850000
FAC    = 0x860000
FAS    = 0x920000
FA_KS  = 11264
WOT    = 0x9E0000
OIMG   = 0xAC0000
YM     = 0xD40000
YP     = 0xEC0000
Y_PITCH = 352 * 4
WS_SIZE = 0x1100000

KA_X, KA_SRE, KA_SIM, KA_HRE, KA_HIM, KA_BX, KA_WQKV, KA_WO, KA_GATE, KA_OUT, KA_DBG, KA_WS = [8 * i for i in range(12)]


class Asm:
    def __init__(self):
        self.lines = []

    def __call__(self, s):
        for ln in s.strip("\n").split("\n"):
            self.lines.append(ln if ln.rstrip().endswith(":") else "    " + ln.strip())

    def label(self, l):
        self.lines.append(l + ":")

    def text(self):
        return "\n".join(self.lines) + "\n"


def vr(a, n=1):
    return f"v{a}" if n == 1 else f"v[{a}:{a+n-1}]"


def sr(a, n=1):
    return f"s{a}" if n == 1 else f"s[{a}:{a+n-1}]"


def srd(A, d, base, size):
    A(f"s_mov_b32 s{d}, s{base}")
    A(f"s_and_b32 s{d+1}, s{base+1}, 0xffff")
    A(f"s_mov_b32 s{d+2}, {size}")
    A(f"s_mov_b32 s{d+3}, 0x00020000")


def kd(name, vgpr, sgpr=96, agpr=0):
    acc = (vgpr + 3) // 4 * 4
    nfv = acc + agpr if agpr else vgpr
    return f""".p2align 6
.amdhsa_kernel {name}
  .amdhsa_next_free_vgpr {nfv}
  .amdhsa_next_free_sgpr {sgpr}
  .amdhsa_accum_offset {acc}
  .amdhsa_group_segment_fixed_size 0
  .amdhsa_kernarg_size 96
  .amdhsa_user_sgpr_count 2
  .amdhsa_user_sgpr_kernarg_segment_ptr 1
  .amdhsa_system_sgpr_workgroup_id_x 1
.end_amdhsa_kernel
"""


def khead(name):
    return f""".globl {name}
.p2align 8
.type {name},@function
{name}:
"""


import os
PROF = os.environ.get("KPROF", "0") == "1"
PROF_BASE = 0x2000000


def stamp(A, i):
    if PROF:
        A(f"s_memtime s[{80+2*i}:{81+2*i}]")


def prof_begin(A):
    if PROF:
        A("s_memrealtime s[76:77]")
        A("s_mov_b32 s75, s2")
        A("v_lshrrev_b32 v1, 6, v0")
        A("s_nop 0")
        A("v_readfirstlane_b32 s74, v1")
        for i in range(1, 8):
            A(f"s_mov_b32 s{80+2*i}, 0")
        A("s_memtime s[80:81]")


def prof_end(A, kidx):
    if PROF:
        A("s_mov_b64 exec, -1")
        A("s_waitcnt vmcnt(0) lgkmcnt(0)")
        A("s_memtime s[94:95]")
        A("s_memrealtime s[78:79]")
        A(f"s_load_dwordx2 s[68:69], s[0:1], {KA_WS}")
        A("s_waitcnt lgkmcnt(0)")
        A("s_and_b32 s69, s69, 0xffff")
        A("s_mov_b32 s70, 0x10000000")
        A("s_mov_b32 s71, 0x00020000")
        A("s_lshl_b32 s72, s75, 4")
        A("s_add_u32 s72, s72, s74")
        A("s_lshl_b32 s72, s72, 6")
        A(f"s_add_u32 s72, s72, {PROF_BASE + kidx * 0x100000}")
        A("v_mov_b32 v0, 0")
        for i in range(8):
            A(f"v_mov_b32 v{4+i}, s{80+2*i}")
        A("v_mov_b32 v12, s76")
        A("v_mov_b32 v13, s78")
        A("s_getreg_b32 s73, hwreg(HW_REG_HW_ID)")
        A("v_mov_b32 v14, s73")
        A("s_getreg_b32 s73, hwreg(HW_REG_XCC_ID)")
        A("v_mov_b32 v15, s73")
        A("buffer_store_dwordx4 v[4:7], v0, s[68:71], s72 offen")
        A("buffer_store_dwordx4 v[8:11], v0, s[68:71], s72 offen offset:16")
        A("buffer_store_dwordx4 v[12:15], v0, s[68:71], s72 offen offset:32")


DBGT = os.environ.get("KDBGT", "0") == "1"
if DBGT:
    def prof_begin(A):
        A("s_memrealtime s[76:77]")
        A("s_memtime s[80:81]")
        A("s_mov_b32 s75, s2")
        A("v_lshrrev_b32 v1, 6, v0")
        A("s_nop 0")
        A("v_readfirstlane_b32 s74, v1")

    def prof_end(A, kidx):
        wg = 5 if kidx != 1 else 256 + 5
        A(f"s_cmp_eq_u32 s75, {wg}")
        A(f"s_cbranch_scc0 DBGT_SKIP{kidx}")
        A(f"s_cmp_eq_u32 s74, 0")
        A(f"s_cbranch_scc0 DBGT_SKIP{kidx}")
        A("s_mov_b64 exec, -1")
        A("s_waitcnt vmcnt(0) lgkmcnt(0)")
        A("s_memtime s[94:95]")
        A("s_memrealtime s[78:79]")
        A(f"s_load_dwordx2 s[68:69], s[0:1], {KA_WS}")
        A(f"s_load_dwordx2 s[84:85], s[0:1], {KA_DBG}")
        A("s_waitcnt lgkmcnt(0)")
        A("s_and_b32 s69, s69, 0xffff")
        A("s_mov_b32 s70, 0x10000000")
        A("s_mov_b32 s71, 0x00020000")
        A("s_and_b32 s85, s85, 0xffff")
        A("s_mov_b32 s86, 256")
        A("s_mov_b32 s87, 0x00020000")
        A("s_sub_u32 s73, s94, s80")
        A(f"s_mov_b32 s72, {PROF_BASE}")
        A("v_mov_b32 v0, 0")
        A("v_mov_b32 v4, s76")
        A("v_mov_b32 v5, s78")
        A("v_mov_b32 v6, s73")
        A("v_mov_b32 v7, 0")
        A(f"buffer_store_dwordx4 v[4:7], v0, s[68:71], s72 offen offset:{16*kidx}")
        A(f"buffer_store_dwordx4 v[4:7], v0, s[84:87], 0 offen offset:{16*kidx}")
        if kidx == 3:
            for j in range(3):
                A(f"buffer_load_dwordx4 v[8:11], v0, s[68:71], s72 offen offset:{16*j}")
                A("s_waitcnt vmcnt(0)")
                A(f"buffer_store_dwordx4 v[8:11], v0, s[84:87], 0 offen offset:{16*j}")
                A("s_waitcnt vmcnt(0)")
        A.label(f"DBGT_SKIP{kidx}")

FLAGO = 0x848000
FLAGY = 0x84A000

LFG = 0x84C000
GFG = 0x84D000
XFG = 0x84E000
XCNT = 163840 - 64
GVAL = 0x7F


def prof_mid(A):
    if PROF:
        A("s_memrealtime s[78:79]")
        A(f"s_load_dwordx2 s[64:65], s[0:1], {KA_WS}")
        A("s_waitcnt lgkmcnt(0)")
        A("s_and_b32 s65, s65, 0xffff")
        A("s_mov_b32 s66, 0x10000000")
        A("s_mov_b32 s67, 0x00020000")
        A("s_lshl_b32 s72, s75, 4")
        A("s_add_u32 s72, s72, s74")
        A("s_lshl_b32 s72, s72, 6")
        A(f"s_add_u32 s72, s72, {PROF_BASE}")
        A("v_mov_b32 v140, 0")
        for i in range(8):
            A(f"v_mov_b32 v{144+i}, s{80+2*i}")
        A("v_mov_b32 v152, s76")
        A("v_mov_b32 v153, s78")
        A("v_mov_b32 v154, 0")
        A("v_mov_b32 v155, 0")
        A("buffer_store_dwordx4 v[144:147], v140, s[64:67], s72 offen")
        A("buffer_store_dwordx4 v[148:151], v140, s[64:67], s72 offen offset:16")
        A("buffer_store_dwordx4 v[152:155], v140, s[64:67], s72 offen offset:32")
        for i in range(1, 8):
            A(f"s_mov_b32 s{80+2*i}, 0")
```

```python
from common import *
from p1 import xsignal

SA, SB, PA, PB, OA, OB = 16, 32, 48, 56, 64, 80
QA1, QB1, QA2, QB2 = 96, 100, 104, 106
K1F, K2F, V0, V1 = 108, 112, 116, 120
KA1, KA2, VA = 9, 10, 11
DV, PW, PRD, PV_, PCK = 12, 124, 125, 126, 127
K23_VGPR = 168
SLOT = 21504
CHUNK = 8 * KV_TS
PROG = 3 * SLOT
XR = PROG + 1024
WOTL = XR - 4096
K23_LDS = 163840
SC = "sc1"
FPRIO = int(os.environ.get("FPRIO", "0"))
HSC = os.environ.get("HSC", "sc1")
P2P = os.environ.get("P2P", "0") == "1"
OUTF = os.environ.get("K23_OUTF", "")
WSTART = int(os.environ.get("K23_WSTART", "5"))
LOCAL = os.environ.get("K23_LOCAL", "0") == "1"
OSC = os.environ.get("K23_OSC", "sc1")
LSC = os.environ.get("K23_LSC", "sc1")
LPROF = os.environ.get("LPROF", "0") == "1"
DIAG = os.environ.get("DIAG", "")
P3 = os.environ.get("P3PROF", "0") == "1"
PRIO = os.environ.get("K23_PRIO", "1") == "1"
PSLEEP = int(os.environ.get("K23_PSLEEP", "4"))
assert WOTL + 100 * 1024 == K23_LDS


def softmax_groups(Sx, Px):
    gs = []
    for g in range(4):
        l = [f"v_exp_f32 v{Sx+4*g+i}, v{Sx+4*g+i}" for i in range(4)]
        l += [f"v_cvt_pk_bf16_f32 v{Px+2*g+i}, v{Sx+4*g+2*i}, v{Sx+4*g+2*i+1}" for i in range(2)]
        gs.append(l)
    return gs


def qk(Sx, Q1, Q2):
    return [f"v_mfma_f32_32x32x8_bf16 {vr(Sx,16)}, {vr(K2F,2)}, {vr(Q2,2)}, 0",
            f"v_mfma_f32_32x32x16_bf16 {vr(Sx,16)}, {vr(K1F,4)}, {vr(Q1,4)}, {vr(Sx,16)}"]


def pv(Ox, Px):
    return [f"v_mfma_f32_32x32x16_bf16 {vr(Ox,16)}, {vr(V0,4)}, {vr(Px,4)}, {vr(Ox,16)}",
            f"v_mfma_f32_32x32x16_bf16 {vr(Ox,16)}, {vr(V1,4)}, {vr(Px+4,4)}, {vr(Ox,16)}"]


def poll(A, tag, vaddr, vtmp, sc):
    A(f"""
s_mov_b32 s{sc}, 0
{tag}:
buffer_load_dword v{vtmp}, v{vaddr}, s[8:11], 0 offen {SC}
s_add_u32 s{sc}, s{sc}, 1
s_waitcnt vmcnt(0)
v_cmp_eq_u32 vcc, 1, v{vtmp}
s_cmp_gt_u32 s{sc}, 0x40000
s_cbranch_scc1 {tag}_X
s_cmp_eq_u64 vcc, exec
s_cbranch_scc0 {tag}
{tag}_X:
""")


YR, GL = 152, 164
WBAFTER = int(os.environ.get("WBAFTER", "96"))


def wb_flag(A):
    A(f"""
buffer_wbl2 sc1
s_lshl_b32 s60, s18, 9
s_lshl_b32 s61, s19, 4
s_add_u32 s60, s60, s61
s_add_u32 s60, s60, {GFG}
v_mov_b32 v8, 0
v_mov_b32 v12, {GVAL}
v_mov_b32 v13, {GVAL}
v_mov_b32 v14, {GVAL}
v_mov_b32 v15, {GVAL}
s_waitcnt vmcnt(0)
s_mov_b64 exec, 1
buffer_store_dwordx4 v[12:15], v8, s[8:11], s60 offen {SC}
s_mov_b64 exec, -1
""")


def xwait(A, tag, va, vt):
    A(f"""
v_add_u32 v{va}, {XFG}, v3
s_mov_b32 s39, 0
{tag}:
buffer_load_dwordx4 {vr(vt,4)}, v{va}, s[8:11], 0 offen {SC}
s_add_u32 s39, s39, 1
s_waitcnt vmcnt(0)
v_and_b32 v{vt}, v{vt}, v{vt+1}
v_and_b32 v{vt+2}, v{vt+2}, v{vt+3}
v_and_b32 v{vt}, v{vt}, v{vt+2}
v_cmp_ne_u32 vcc, 1, v{vt}
s_cmp_gt_u32 s39, 0x8000
s_cbranch_scc1 {tag}_X
s_cbranch_vccz {tag}_X
s_sleep 8
s_branch {tag}
{tag}_X:
""")


def tok_calc(A, vs, vt, t0, t1):
    A(f"""
s_lshl_b32 s56, s20, 1
s_lshr_b32 s57, s23, 1
s_add_u32 s56, s56, s57
s_lshr_b32 s57, s56, 2
s_lshl_b32 s57, s57, 6
s_and_b32 s56, s56, 3
s_lshl_b32 s56, s56, 3
s_add_u32 s56, s56, s57
v_and_b32 v{vs}, 3, v0
v_bfe_u32 v{t0}, v0, 2, 1
v_lshl_add_u32 v{vs}, v{t0}, 5, v{vs}
v_bfe_u32 v{t0}, v0, 3, 1
v_lshl_add_u32 v{vs}, v{t0}, 2, v{vs}
v_add_u32 v{vs}, s56, v{vs}
v_mov_b32 v{vt}, v{vs}
s_and_b32 s57, s23, 1
s_cmp_eq_u32 s57, 0
s_cbranch_scc1 TOK{vs}_D
v_cmp_eq_u32 vcc, 0, v{vs}
v_mov_b32 v{t0}, 1024
s_nop 0
v_cndmask_b32 v{vs}, v{vs}, v{t0}, vcc
v_sub_u32 v{vt}, 2048, v{vs}
TOK{vs}_D:
""")


YCNT = [0]


def y_loads(A):
    YCNT[0] += 1
    vs = 128 + 2 * YCNT[0]
    tok_calc(A, vs, vs + 1, 136, 137)
    A(f"""
v_lshrrev_b32 v129, 4, v0
s_mul_i32 s58, s21, 80
s_mul_i32 s59, s24, 48
s_add_u32 s58, s58, s59
v_lshl_add_u32 v128, v129, 2, s58
s_movk_i32 s59, {Y_PITCH}
v_mul_u32_u24 v{vs}, s59, v{vs}
v_sub_u32 v129, {640-3-32}, v128
s_cmp_ge_u32 s21, 4
s_cselect_b64 s[64:65], -1, 0
s_cselect_b32 s58, 1, 0
s_xor_b32 s58, s58, s57
s_mul_i32 s58, s58, {YP - YM}
s_add_u32 s58, s58, {YM}
v_cndmask_b32 v129, v128, v129, s[64:65]
v_lshl_add_u32 v{vs}, v129, 2, v{vs}
v_add_u32 v{vs}, s58, v{vs}
v_lshlrev_b32 v{vs+1}, 2, v{vs+1}
s_mov_b32 s66, {GATE}
buffer_load_dword v{GL}, v{vs+1}, s[8:11], s66 offen
""")
    for j in range(3):
        A(f"buffer_load_dwordx4 {vr(YR+4*j,4)}, v{vs}, s[8:11], 0 offen offset:{64*j} {SC}")


def gen_k23(A):
    A(f"""
s_load_dwordx2 s[4:5], s[0:1], {KA_WS}
s_load_dwordx2 s[6:7], s[0:1], {KA_OUT}
s_load_dwordx4 s[52:55], s[0:1], {KA_SRE}
v_lshrrev_b32 v1, 6, v0
v_and_b32 v0, 63, v0
s_and_b32 s18, s2, 7
s_lshr_b32 s19, s2, 3
v_readfirstlane_b32 s22, v1
s_lshl_b32 s20, s18, 2
s_and_b32 s21, s19, 3
s_add_u32 s20, s20, s21
s_lshr_b32 s21, s2, 5
s_mov_b32 s16, {"s19" if LOCAL else "s20"}
s_mov_b32 s17, {"s18" if LOCAL else "s21"}
s_mul_i32 s27, s16, {KV_HS}
s_add_u32 s27, s27, {KVIMG}
v_and_b32 v1, 31, v0
v_lshrrev_b32 v2, 5, v0
v_lshlrev_b32 v3, 4, v0
s_mov_b32 s15, 0x00020000
s_mov_b32 s10, {WS_SIZE}
s_mov_b32 s11, 0x00020000
s_cmp_ge_u32 s22, 8
s_cbranch_scc1 K2_AUX
""")
    A(f"""
s_and_b32 s23, s22, 3
s_lshr_b32 s24, s22, 2
s_lshl_b32 s25, s17, 3
s_lshl_b32 s26, s23, 1
s_add_u32 s25, s25, s26
v_lshlrev_b32 v4, 3, v1
v_lshlrev_b32 v5, 4, v1
s_mul_i32 s28, s16, {Q_HS}
s_mul_i32 s29, s25, {Q_TS}
s_add_u32 s28, s28, s29
s_add_u32 s28, s28, {QIMG}
s_add_u32 s29, s24, 62
s_mul_i32 s29, s29, {KV_TS}
s_add_u32 s29, s29, s27
s_waitcnt lgkmcnt(0)
s_mov_b32 s8, s4
s_and_b32 s9, s5, 0xffff
s_mul_i32 s32, s24, {KV_TS}
v_add_u32 v{KA1}, s32, v3
v_add_u32 v14, 1024, v4
v_mov_b32 v15, {1280+320}
v_cmp_gt_u32 s[50:51], 32, v0
v_mul_u32_u24 v16, 336, v2
v_lshl_add_u32 v16, v1, 4, v16
v_cndmask_b32 v14, v15, v14, s[50:51]
v_add_u32 v{KA2}, s32, v14
v_add_u32 v16, 1280, v16
v_add_u32 v{VA}, s32, v16
s_mov_b32 s48, 0x001fffff
s_mov_b32 s49, 0x001fffff
v_mov_b32 v{DV}, {PROG + 32}
s_lshl_b32 s33, s22, 2
s_add_u32 s33, s33, {PROG}
v_mov_b32 v{PW}, s33
v_and_b32 v{PRD}, 7, v0
v_lshlrev_b32 v{PRD}, 2, v{PRD}
v_add_u32 v{PRD}, {PROG}, v{PRD}
v_mov_b32 v{PV_}, 0
ds_write_b32 v{PW}, v{PV_}
""")
    for i in range(32):
        A(f"v_mov_b32 v{OA+i}, 0")
    for i in range(8):
        A(f"v_mov_b32 v{PB+i}, 0")
        A(f"v_mov_b32 v{V0+i}, 0")
    A("s_cmp_eq_u32 s70, 1")
    A("s_cbranch_scc0 K2_NOTF")
    A("s_waitcnt vmcnt(0)")
    xsignal(A, "F", 8)
    A.label("K2_NOTF")
    A("s_barrier")
    stamp(A, 1)
    A(f"""
buffer_load_dwordx4 {vr(QA1,4)}, v3, s[8:11], s28 offen {HSC}
buffer_load_dwordx4 {vr(QA2,4)}, v5, s[8:11], s28 offen offset:2048 {HSC}
buffer_load_dwordx4 {vr(QB1,4)}, v3, s[8:11], s28 offen offset:1024 {HSC}
ds_read_b32 v13, v{DV} offset:16
buffer_load_dwordx4 {vr(K1F,4)}, v3, s[8:11], s29 offen {HSC}
buffer_load_dwordx2 {vr(K2F,2)}, v4, s[8:11], s29 offen offset:1024 {HSC}
""")
    A("s_waitcnt vmcnt(0)")
    if P2P: stamp(A, 3)
    A("v_mov_b32 v15, 0x3f803f80")
    for r in (QA2, QA2 + 1, QB2, QB2 + 1):
        A(f"v_cndmask_b32 v{r}, 0, v{r}, s[50:51]")
    for r in (K2F, K2F + 1):
        A(f"v_cndmask_b32 v{r}, v15, v{r}, s[50:51]")
    for j, (ra, rb) in enumerate([(QA1 + i, QB1 + i) for i in range(4)] + [(QA2 + i, QB2 + i) for i in range(2)]):
        ca = "0" if j == 0 else "v16"
        cb = "0" if j == 0 else "v18"
        A(f"v_dot2_f32_bf16 v16, v{ra}, v{ra}, {ca}")
        A(f"v_dot2_f32_bf16 v18, v{rb}, v{rb}, {cb}")
    A("""
s_waitcnt lgkmcnt(0)
s_nop 2
v_mov_b32 v17, v16
v_mov_b32 v19, v18
s_nop 1
v_permlane32_swap_b32 v16, v17
v_permlane32_swap_b32 v18, v19
s_nop 1
v_add_f32 v16, v16, v17
v_add_f32 v18, v18, v19
v_mul_f32 v16, v13, v16
v_mul_f32 v18, v13, v18
v_sqrt_f32 v16, v16
v_sqrt_f32 v18, v18
s_nop 0
v_sub_f32 v16, 0x42800000, v16
v_sub_f32 v18, 0x42800000, v18
""")
    for (m, Q2) in ((16, QA2), (18, QB2)):
        A(f"""
v_and_b32 v20, 0xffff0000, v{m}
v_sub_f32 v21, v{m}, v20
v_and_b32 v22, 0xffff0000, v21
v_sub_f32 v23, v21, v22
v_lshrrev_b32 v20, 16, v20
v_or_b32 v20, v20, v22
v_lshrrev_b32 v23, 16, v23
v_cndmask_b32 v{Q2}, v20, v{Q2}, s[50:51]
v_cndmask_b32 v{Q2+1}, v23, v{Q2+1}, s[50:51]
""")
    A("s_nop 1")
    for m in qk(SA, QA1, QA2):
        A(m)
    A("s_mov_b32 s42, 0")
    A("s_mov_b32 s44, 0")
    A("s_mov_b32 s68, 0")

    def tile(t, extra_k=None, mid_a=None, end_b=None, nl=0):
        off = t * 2 * KV_TS
        if PRIO:
            A(f"s_setprio {3-t}")
        g = softmax_groups(SA, PA)
        m = qk(SB, QB1, QB2) + pv(OB, PB)
        A(m[0])
        A("\n".join(g[0]))
        A(m[1])
        A(f"ds_read_b128 {vr(K1F,4)}, v{KA1} offset:{off}")
        A(f"ds_read_b64 {vr(K2F,2)}, v{KA2} offset:{off}")
        A("\n".join(g[1]))
        A(m[2])
        A("\n".join(g[2]))
        A(m[3])
        A("s_mov_b64 exec, s[48:49]")
        A(f"ds_read_b128 {vr(V0,4)}, v{VA} offset:{off}")
        A(f"ds_read_b128 {vr(V1,4)}, v{VA} offset:{off+672}")
        A("s_mov_b64 exec, -1")
        A("\n".join(g[3]))
        if mid_a:
            mid_a()
        g = softmax_groups(SB, PB)
        m = qk(SA, QA1, QA2) + pv(OA, PA)
        A(f"s_waitcnt lgkmcnt({2+nl})")
        A(m[0])
        A("\n".join(g[0]))
        A(m[1])
        A("\n".join(g[1]))
        A(f"s_waitcnt lgkmcnt({nl})")
        A(m[2])
        if extra_k:
            extra_k()
        A("\n".join(g[2]))
        A(m[3])
        if end_b:
            end_b()
        A("\n".join(g[3]))

    def sig_enter():
        A(f"v_add_u32 v{PV_}, 1, v{PV_}")
        A(f"ds_write_b32 v{PW}, v{PV_}")

    def ctl():
        A(f"""
s_add_u32 s42, s42, 1
s_add_u32 s44, s44, 1
s_cmp_eq_u32 s44, 3
s_cselect_b32 s44, 0, s44
s_mov_b32 s43, {SLOT}
s_cselect_b32 s43, {(-2*SLOT) & 0xffffffff}, s43
s_cmp_eq_u32 s42, 8
s_cbranch_scc1 K2_YREQ
K2_YDONE:
""")

    def chk_read():
        A(f"ds_read_b32 v{PCK}, v{DV}")

    def upd():
        A(f"v_add_u32 v{KA1}, s43, v{KA1}")
        A(f"v_add_u32 v{KA2}, s43, v{KA2}")
        A(f"v_add_u32 v{VA}, s43, v{VA}")

    if P2P: stamp(A, 4)
    A("s_waitcnt lgkmcnt(0)")
    A("s_barrier")
    stamp(A, 2)
    A("s_nop 7")
    A.label("K2_LOOP")
    if PROF and LPROF:
        for it, sl in ((1, 1), (2, 3), (4, 4), (6, 5), (7, 6)):
            A(f"s_cmp_eq_u32 s42, {it}")
            A(f"s_cbranch_scc0 K2_NS{it}")
            stamp(A, sl)
            A.label(f"K2_NS{it}")
    tile(0, mid_a=sig_enter, nl=1)
    tile(1, mid_a=ctl)
    tile(2)
    tile(3, extra_k=chk_read, end_b=upd)
    A(f"""
s_waitcnt lgkmcnt(0)
v_cmp_gt_u32 vcc, v{PCK}, v{PV_}
s_cmp_lt_u32 s42, 8
s_cbranch_vccz K2_SPIN
s_cbranch_scc1 K2_LOOP
s_branch K2_LOOPEND
K2_SPIN:
s_sleep 2
ds_read_b32 v{PCK}, v{DV}
s_waitcnt lgkmcnt(0)
v_cmp_gt_u32 vcc, v{PCK}, v{PV_}
s_nop 1
s_cbranch_vccz K2_SPIN
s_cbranch_scc1 K2_LOOP
s_branch K2_LOOPEND
K2_YREQ:
ds_read_b32 v129, v{DV} offset:4
s_waitcnt lgkmcnt(0)
v_cmp_eq_u32 vcc, 3, v129
s_nop 1
s_cbranch_vccz K2_YDONE
s_mov_b32 s68, 1
""")
    y_loads(A)
    A("s_branch K2_YDONE")
    A.label("K2_LOOPEND")
    if not (LPROF or P2P): stamp(A, 3)
    for m in pv(OB, PB):
        A(m)
    A(f"""
s_mul_i32 s34, s23, 3072
s_mul_i32 s47, s24, {2*SLOT}
s_add_u32 s56, s34, s47
v_add_u32 v13, s56, v3
s_sub_u32 s47, {2*SLOT}, s47
s_add_u32 s56, s34, s47
v_add_u32 v14, s56, v3
s_add_u32 s46, s25, s24
s_mul_i32 s35, s46, 40960
s_mul_i32 s36, s16, 1280
s_add_u32 s36, s36, s35
s_add_u32 s36, s36, {OIMG}
s_nop 3
s_cmp_eq_u32 s24, 0
s_cbranch_scc0 K2_X1
""")
    for q in range(3):
        A(f"ds_write_b128 v13, {vr(OB+4*q,4)} offset:{1024*q}")
    A("s_branch K2_X2")
    A.label("K2_X1")
    for q in range(3):
        A(f"ds_write_b128 v13, {vr(OA+4*q,4)} offset:{1024*q}")
    A("s_nop 4")
    for i in range(12):
        A(f"v_mov_b32 v{OA+i}, v{OB+i}")
    A.label("K2_X2")
    A("s_waitcnt lgkmcnt(0)")
    A("s_barrier")
    if not (LPROF or P2P): stamp(A, 4)
    for q in range(3):
        A(f"ds_read_b128 {vr(16+4*q,4)}, v14 offset:{1024*q}")
    A("s_waitcnt lgkmcnt(0)")
    for i in (8, 0, 1, 2, 3, 4, 5, 6, 7, 9, 10, 11):
        A(f"v_add_f32 v{OA+i}, v{OA+i}, v{16+i}")
        if i == 8:
            A(f"v_mov_b32 v28, v{OA+8}")
            A(f"v_mov_b32 v29, v{OA+8}")
        if i == 1:
            A("v_permlane32_swap_b32 v28, v29")
        if i == 4:
            A("v_cmp_nle_f32 vcc, 0x0d800000, v29")
            A("v_rcp_f32 v29, v29")
    A("s_cbranch_vccnz K2_SLOW")
    A.label("K2_FINAL")
    for i in range(12):
        A(f"v_mul_f32 v{OA+i}, v{OA+i}, v29")
    for i in range(6):
        A(f"v_cvt_pk_bf16_f32 v{52+i}, v{OA+2*i}, v{OA+2*i+1}")
    A(f"""
buffer_store_dwordx4 v[52:55], v3, s[8:11], s36 offen {OSC}
s_mov_b64 exec, s[50:51]
buffer_store_dwordx2 v[56:57], v4, s[8:11], s36 offen offset:1024 {OSC}
s_mov_b64 exec, -1
s_nop 0
""")
    ACC, OF, WF = 32, 52, 92
    A(f"""
s_lshl_b32 s56, s24, 13
v_add_u32 v4, s56, v3
v_add_u32 v5, {WOTL}, v4
v_add_u32 v6, {WOTL + 61440}, v4
s_lshl_b32 s56, s24, 11
v_add_u32 v4, s56, v3
v_add_u32 v12, {WOTL + 16384}, v4
v_add_u32 v14, {WOTL + 16384 + 61440}, v4
s_mul_i32 s67, s21, 102400
s_add_u32 s67, s67, {WOT}
""")
    ORDER = [4, 5, 6, 7, 8, 9, 0, 1, 2, 3]

    def wo_read(i, slot, skip0=False):
        for cb in range(5):
            if skip0 and cb == 0:
                continue
            if i < 8:
                a, off = ("v5", cb * 20480) if cb < 3 else ("v6", (cb - 3) * 20480)
                off += i * 1024
            else:
                a, off = ("v12", cb * 20480) if cb < 3 else ("v14", (cb - 3) * 20480)
                off += (i - 8) * 1024
            A(f"ds_read_b128 {vr(WF+20*slot+4*cb,4)}, {a} offset:{off}")
    tok_calc(A, 13, 11, 9, 10)
    A(f"""
v_and_b32 v9, 15, v0
v_lshrrev_b32 v10, 4, v0
s_mul_i32 s58, s21, 80
s_mul_i32 s59, s24, 48
s_add_u32 s58, s58, s59
v_lshl_add_u32 v13, v10, 2, s58
s_movk_i32 s59, 1280
v_mul_u32_u24 v11, s59, v11
v_lshl_add_u32 v11, v13, 1, v11
s_mov_b32 s12, s6
s_and_b32 s13, s7, 0xffff
s_mov_b32 s14, {S*D*2}
s_lshl_b32 s57, s20, 1
s_lshr_b32 s58, s23, 1
s_add_u32 s57, s57, s58
s_mul_i32 s51, s57, 40960
s_add_u32 s51, s51, {OIMG}
s_and_b32 s58, s23, 1
s_lshl_b32 s58, s58, 4
v_add_u32 v9, s58, v9
v_lshrrev_b32 v15, 1, v10
v_mul_u32_u24 v15, 1280, v15
v_and_b32 v13, 1, v10
v_lshl_add_u32 v15, v13, 9, v15
v_lshl_add_u32 v7, v9, 4, v15
v_mul_u32_u24 v8, 2560, v10
v_lshl_add_u32 v8, v9, 3, v8
v_add_u32 v8, 1024, v8
s_mul_i32 s58, s24, 20480
s_add_u32 s52, s51, s58
s_mov_b32 s69, 0
s_cmp_eq_u32 s24, 0
s_cbranch_scc0 K3_W1
""")
    for k in range(4):
        A(f"buffer_load_dwordx4 {vr(16+4*k,4)}, v3, s[8:11], s67 offen offset:{1024*k}")
    A("s_branch K3_W2")
    A.label("K3_W1")
    for k in range(4):
        A(f"ds_read_b128 {vr(16+4*k,4)}, v5 offset:{k*1024}")
    A.label("K3_W2")
    for n in range(3):
        wo_read(ORDER[n], n)
    if not LPROF: stamp(A, 5)
    A("s_barrier")
    if not LPROF: stamp(A, 6)
    A.label("K3_RETRY")
    NLD = []
    for n, i in enumerate(ORDER):
        if i < 8:
            A(f"s_add_u32 s53, s52, {2560*i}")
            A(f"buffer_load_dwordx4 {vr(OF+4*n,4)}, v7, s[8:11], s53 offen {SC}")
            NLD.append(1)
        else:
            A(f"s_add_u32 s53, s52, {10240*(i-8)}")
            A(f"buffer_load_dwordx2 {vr(OF+4*n,2)}, v8, s[8:11], s53 offen {SC}")
            A(f"buffer_load_dwordx2 {vr(OF+4*n+2,2)}, v8, s[8:11], s53 offen offset:1280 {SC}")
            NLD.append(2)
    A("v_mov_b32 v166, 0")
    for n, i in enumerate(ORDER):
        slot = n % 3
        if n == 0:
            A(f"s_waitcnt vmcnt({sum(NLD[n+1:])}) lgkmcnt(0)")
        else:
            younger = sum((4 if ORDER[k] < 4 else 5) for k in (n + 1, n + 2) if 3 <= k < 10)
            A(f"s_waitcnt vmcnt({sum(NLD[n+1:])}) lgkmcnt({younger})")
        for cb in range(5):
            acc = vr(ACC + 4 * cb, 4)
            c = "0" if n == 0 else acc
            w = vr(16 + 4 * i, 4) if (i < 4 and cb == 0) else vr(WF + 20 * slot + 4 * cb, 4)
            A(f"v_mfma_f32_16x16x32_bf16 {acc}, {w}, {vr(OF+4*n,4)}, {c}")
        if n + 3 < 10:
            wo_read(ORDER[n + 3], slot, skip0=(ORDER[n + 3] < 4))
        A(f"v_max3_u32 v166, v{OF+4*n}, v{OF+4*n+1}, v166")
        A(f"v_max3_u32 v166, v{OF+4*n+2}, v{OF+4*n+3}, v166")
    A("""
v_cmp_eq_u32 vcc, -1, v166
s_add_u32 s69, s69, 1
s_cmp_gt_u32 s69, 0x4000
s_cbranch_vccz K3_VALID
s_cbranch_scc1 K3_VALID
""")
    for n in range(3):
        wo_read(ORDER[n], n)
    A("s_branch K3_RETRY")
    A.label("K3_VALID")
    if P3:
        stamp(A, 1)
    A("s_cmp_eq_u32 s68, 1")
    A("s_cbranch_scc1 K2_HAVEY")
    y_loads(A)
    A("s_waitcnt vmcnt(3)")
    A.label("K2_HAVEY")
    A(f"""
s_mul_i32 s56, s22, 3072
s_add_u32 s56, s56, {SLOT - 8192}
v_add_u32 v9, s56, v3
s_xor_b32 s57, s22, 4
s_mul_i32 s57, s57, 3072
s_add_u32 s57, s57, {SLOT - 8192}
v_add_u32 v10, s57, v3
s_nop 1
s_cmp_eq_u32 s24, 0
s_cbranch_scc0 K3_X1
""")
    for j in range(2):
        A(f"ds_write_b128 v9, {vr(ACC+12+4*j,4)} offset:{1024*j}")
    A("s_branch K3_X2")
    A.label("K3_X1")
    for j in range(3):
        A(f"ds_write_b128 v9, {vr(ACC+4*j,4)} offset:{1024*j}")
    A("s_nop 4")
    for i in range(8):
        A(f"v_mov_b32 v{ACC+i}, v{ACC+12+i}")
    A.label("K3_X2")
    A(f"""
v_mul_f32 v{GL}, 0xbfb8aa3b, v{GL}
v_exp_f32 v{GL}, v{GL}
s_nop 0
v_add_f32 v{GL}, 1.0, v{GL}
v_rcp_f32 v{GL}, v{GL}
s_nop 0
v_sub_f32 v{GL+1}, 1.0, v{GL}
""")
    A("s_waitcnt lgkmcnt(0)")
    A("s_barrier")
    if P3:
        stamp(A, 2)
    for j in range(3):
        A(f"ds_read_b128 {vr(52+4*j,4)}, v10 offset:{1024*j}")
    A("s_waitcnt lgkmcnt(0)")
    for i in range(12):
        A(f"v_add_f32 v{ACC+i}, v{ACC+i}, v{52+i}")
    for i in range(12):
        A(f"v_mul_f32 v{ACC+i}, v{ACC+i}, v{GL+1}")
    A("s_cmp_ge_u32 s21, 4")
    A("s_waitcnt vmcnt(0)")
    A("s_cbranch_scc1 K3_REV")
    for i in range(12):
        A(f"v_fmac_f32 v{ACC+i}, v{YR+i}, v{GL}")
    A("s_branch K3_ST")
    A.label("K3_REV")
    for i in range(12):
        A(f"v_fmac_f32 v{ACC+i}, v{YR+11-i}, v{GL}")
    A.label("K3_ST")
    for i in range(6):
        A(f"v_cvt_pk_bf16_f32 v{16+i}, v{ACC+2*i}, v{ACC+2*i+1}")
    A(f"""
buffer_store_dwordx2 v[16:17], v11, s[12:15], 0 offen {OUTF}
buffer_store_dwordx2 v[18:19], v11, s[12:15], 0 offen offset:32 {OUTF}
s_cmp_eq_u32 s24, 0
s_cbranch_scc0 K3_DONE
buffer_store_dwordx2 v[20:21], v11, s[12:15], 0 offen offset:64 {OUTF}
K3_DONE:
""")
    prof_end(A, 2)
    A("s_endpgm")

    A.label("K2_SLOW")
    A("s_cmp_eq_u32 s24, 0")
    A("s_cbranch_scc1 K2_SL0")
    for i in range(4):
        A(f"v_mov_b32 v{QA1+i}, v{QB1+i}")
    for i in range(2):
        A(f"v_mov_b32 v{QA2+i}, v{QB2+i}")
    A.label("K2_SL0")
    A(f"""
v_cndmask_b32 v{QA2}, 0, v{QA2}, s[50:51]
v_cndmask_b32 v{QA2+1}, 0, v{QA2+1}, s[50:51]
v_mov_b32 v128, 0xff800000
v_mov_b32 v129, 0x3f803f80
v_mul_u32_u24 v130, 336, v2
v_lshl_add_u32 v130, v1, 4, v130
v_add_u32 v130, 1280, v130
s_mov_b32 s56, s27
s_mov_b32 s57, 0
K2_SL1:
buffer_load_dwordx4 {vr(K1F,4)}, v3, s[8:11], s56 offen
buffer_load_dwordx2 {vr(K2F,2)}, v4, s[8:11], s56 offen offset:1024
s_waitcnt vmcnt(0)
""")
    for m in qk(SA, QA1, QA2):
        A(m)
    A("s_nop 15")
    A("s_nop 3")
    for i in range(8):
        A(f"v_max3_f32 v128, v{SA+2*i}, v{SA+2*i+1}, v128")
    A(f"""
s_add_u32 s56, s56, {KV_TS}
s_add_u32 s57, s57, 1
s_cmp_lt_u32 s57, 64
s_cbranch_scc1 K2_SL1
v_mov_b32 v131, v128
s_nop 1
v_permlane32_swap_b32 v128, v131
s_nop 1
v_max_f32 v128, v128, v131
v_mul_f32 v128, -1.0, v128
v_and_b32 v132, 0xffff0000, v128
v_sub_f32 v133, v128, v132
v_and_b32 v134, 0xffff0000, v133
v_sub_f32 v135, v133, v134
v_lshrrev_b32 v132, 16, v132
v_or_b32 v132, v132, v134
v_lshrrev_b32 v135, 16, v135
v_cndmask_b32 v{QA2}, v132, v{QA2}, s[50:51]
v_cndmask_b32 v{QA2+1}, v135, v{QA2+1}, s[50:51]
""")
    for i in range(16):
        A(f"v_mov_b32 v{OA+i}, 0")
    A(f"""
s_mov_b32 s57, 0
K2_SL2:
s_add_u32 s58, s57, 62
s_and_b32 s58, s58, 63
s_mul_i32 s58, s58, {KV_TS}
s_add_u32 s58, s58, s27
s_mul_i32 s56, s57, {KV_TS}
s_add_u32 s56, s56, s27
buffer_load_dwordx4 {vr(K1F,4)}, v3, s[8:11], s58 offen
buffer_load_dwordx2 {vr(K2F,2)}, v4, s[8:11], s58 offen offset:1024
buffer_load_dwordx4 {vr(V0,4)}, v130, s[8:11], s56 offen
buffer_load_dwordx4 {vr(V1,4)}, v130, s[8:11], s56 offen offset:672
s_waitcnt vmcnt(0)
v_cndmask_b32 v{K2F}, v129, v{K2F}, s[50:51]
v_cndmask_b32 v{K2F+1}, v129, v{K2F+1}, s[50:51]
s_nop 1
""")
    for m in qk(SA, QA1, QA2):
        A(m)
    A("s_nop 15")
    A("s_nop 3")
    for g in softmax_groups(SA, PA):
        A("\n".join(g))
    A("s_nop 1")
    for m in pv(OA, PA):
        A(m)
    A(f"""
s_add_u32 s57, s57, 1
s_cmp_lt_u32 s57, 64
s_cbranch_scc1 K2_SL2
s_nop 15
s_nop 3
v_mov_b32 v28, v{OA+8}
v_mov_b32 v29, v{OA+8}
s_nop 1
v_permlane32_swap_b32 v28, v29
s_nop 1
v_rcp_f32 v29, v29
s_nop 0
s_branch K2_FINAL
""")

    A.label("K2_AUX")
    A(f"""
s_load_dwordx2 s[56:57], s[0:1], {KA_DBG}
s_sub_u32 s22, s22, 8
s_mul_i32 s46, s22, 5120
v_add_u32 v6, s46, v3
v_add_u32 v7, 4096, v6
s_mov_b32 m0, s46
s_waitcnt lgkmcnt(0)
s_mov_b32 s8, s4
s_and_b32 s9, s5, 0xffff
s_cmp_eq_u32 s22, 0
s_cbranch_scc0 K2_P0X
s_and_b32 s57, s57, 0xffff
s_mov_b32 s58, 256
s_mov_b32 s59, 0x00020000
v_and_b32 v8, 7, v0
v_lshlrev_b32 v8, 4, v8
s_getreg_b32 s60, hwreg(HW_REG_XCC_ID, 0, 4)
s_add_u32 s60, s60, 1
s_lshl_b32 s63, s18, 9
s_add_u32 s63, s63, {LFG}
v_lshlrev_b32 v9, 4, v1
v_lshl_add_u32 v9, v2, 12, v9
v_mov_b32 v10, s60
v_mov_b32 v11, {GVAL}
v_cmp_gt_u32 vcc, 32, v0
s_mov_b32 s39, 0
s_nop 0
v_cndmask_b32 v10, v11, v10, vcc
s_lshl_b32 s30, s18, 12
s_and_b32 s31, s16, 3
s_lshl_b32 s31, s31, 4
s_add_u32 s30, s30, s31
s_add_u32 s30, s30, {KMAX}
v_lshlrev_b32 v16, 7, v1
K2_PC:
buffer_load_dword v12, v8, s[56:59], 0 offen {SC}
s_add_u32 s39, s39, 1
s_waitcnt vmcnt(0)
v_cmp_ne_u32 vcc, 32, v12
s_cmp_gt_u32 s39, 0x8000
s_cbranch_scc1 K2_P0S
s_cbranch_vccnz K2_PC
K2_P0S:
s_mov_b32 s39, 0
K2_P0:
buffer_load_dwordx4 v[12:15], v9, s[8:11], s63 offen {SC}
buffer_load_dwordx4 v[20:23], v16, s[8:11], s30 offen {SC}
s_add_u32 s39, s39, 1
s_waitcnt vmcnt(0)
v_xor_b32 v12, v12, v10
v_xor_b32 v13, v13, v10
v_xor_b32 v14, v14, v10
v_xor_b32 v15, v15, v10
v_or3_b32 v12, v12, v13, v14
v_or_b32 v12, v12, v15
v_cmp_eq_u32 vcc, 0, v12
s_cmp_gt_u32 s39, 0x10000
s_cbranch_scc1 K2_P0K
s_or_b32 s62, vcc_lo, vcc_hi
s_cmp_eq_u32 s62, -1
s_cbranch_scc1 K2_P0K
s_cmp_eq_u32 s39, {WBAFTER}
s_cbranch_scc0 K2_P0
""")
    wb_flag(A)
    A("s_branch K2_P0")
    A.label("K2_P0K")
    for m in [f"row_ror:{ror} row_mask:0xf bank_mask:0xf" for ror in (1, 2, 4, 8)] + ["row_bcast:15 row_mask:0xa bank_mask:0xf"]:
        for q in range(3):
            A(f"v_max_f32_dpp v{20+q}, v{20+q}, v{20+q} {m}")
    A(f"""
v_add_f32 v20, v20, v21
v_mov_b32 v24, {PROG + 48}
v_add_f32 v20, v20, v22
s_mov_b32 exec_lo, 0x80000000
s_mov_b32 exec_hi, 0
ds_write_b32 v24, v20
s_mov_b64 exec, -1
s_waitcnt lgkmcnt(0)
K2_P0X:
s_setprio 3
s_barrier
""")
    for q in range(4):
        A(f"buffer_load_dwordx4 v6, s[8:11], s27 offen offset:{1024*q} {HSC} lds")
    A("s_add_u32 m0, m0, 4096")
    A("s_cmp_eq_u32 s22, 3")
    A(f"buffer_load_dwordx4 v7, s[8:11], s27 offen {HSC} lds")
    A("s_cbranch_scc0 K2_A0")
    A(f"buffer_load_dwordx4 v7, s[8:11], s27 offen offset:1024 {HSC} lds")
    A.label("K2_A0")
    A("s_setprio 0")
    A(f"""
s_mul_i32 s47, s21, 102400
s_add_u32 s47, s47, {WOT}
s_lshl_b32 s33, s22, 2
s_add_u32 s33, s33, {PROG + 32}
v_mov_b32 v6, s33
v_and_b32 v7, 3, v0
v_lshlrev_b32 v7, 2, v7
v_add_u32 v7, {PROG + 32}, v7
v_mov_b32 v146, 0
ds_write_b32 v6, v146
""")

    def wot_dma(f0, n):
        A(f"s_lshl_b32 s56, s22, 10")
        A(f"s_add_u32 s57, s56, s47")
        A(f"s_add_u32 s57, s57, {f0*1024}")
        A(f"s_add_u32 s58, s56, {WOTL + f0*1024}")
        for k in range(n):
            A("s_mov_b32 m0, s58")
            A("s_add_u32 s58, s58, 4096")
            A(f"buffer_load_dwordx4 v3, s[8:11], s57 offen lds")
            A("s_add_u32 s57, s57, 4096")
            if k >= 3:
                A("s_waitcnt vmcnt(3)")

    def aux_sync(val, tag):
        A(f"""
v_mov_b32 v146, {val}
ds_write_b32 v6, v146
{tag}:
ds_read_b32 v147, v7
s_waitcnt lgkmcnt(0)
v_cmp_le_u32 vcc, {val}, v147
s_nop 0
s_cmp_eq_u64 vcc, exec
s_cbranch_scc1 {tag}_X
s_sleep 4
s_branch {tag}
{tag}_X:
""")

    A("""
s_cmp_eq_u32 s22, 1
s_cbranch_scc1 K2_WOTW
s_cmp_ge_u32 s22, 2
s_cbranch_scc1 K2_FNW
""")
    A(f"""
v_and_b32 v7, 7, v0
v_lshlrev_b32 v7, 2, v7
v_add_u32 v7, {PROG}, v7
s_add_u32 s41, s27, {CHUNK}
s_mov_b32 s40, {SLOT}
s_mov_b32 s42, 1
""")
    stamp(A, 1)
    A("s_waitcnt vmcnt(0) lgkmcnt(0)")
    stamp(A, 2)
    A(f"""
s_barrier
K2_LDLOOP:
s_cmp_lt_u32 s42, 3
s_cbranch_scc1 K2_LDGO
s_sub_u32 s43, s42, 1
K2_LDSPIN:
ds_read_b32 v147, v7
s_waitcnt lgkmcnt(0)
v_cmp_le_u32 vcc, s43, v147
s_nop 0
s_cmp_eq_u64 vcc, exec
s_cbranch_scc1 K2_LDGO
s_sleep 2
s_branch K2_LDSPIN
K2_LDGO:
s_mov_b32 s44, s41
s_mov_b32 m0, s40
""")
    for q in range(21):
        if q and q % 4 == 0:
            A("s_add_u32 m0, m0, 4096")
            A("s_add_u32 s44, s44, 4096")
        elif q == 0:
            A("s_nop 0")
        A(f"buffer_load_dwordx4 v3, s[8:11], s44 offen offset:{1024*(q%4)} {HSC} lds")
    A(f"""
s_add_u32 s41, s41, {CHUNK}
s_add_u32 s40, s40, {SLOT}
s_cmp_eq_u32 s40, {3*SLOT}
s_cselect_b32 s40, 0, s40
s_add_u32 s42, s42, 1
v_mov_b32 v146, s42
s_waitcnt vmcnt(0)
ds_write_b32 v6, v146
s_cmp_lt_u32 s42, 8
s_cbranch_scc1 K2_LDLOOP
K2_LDFIN:
ds_read_b32 v147, v7
s_waitcnt lgkmcnt(0)
v_cmp_le_u32 vcc, 8, v147
s_nop 0
s_cmp_eq_u64 vcc, exec
s_cbranch_scc1 K2_LDFIN_X
s_sleep 2
s_branch K2_LDFIN
K2_LDFIN_X:
v_mov_b32 v146, 9
ds_write_b32 v6, v146
s_mul_i32 s34, s20, 81920
s_add_u32 s34, s34, {OIMG + 1276}
v_mul_u32_u24 v4, 1280, v0
v_add_u32 v4, s34, v4
s_mov_b32 s39, 0
s_waitcnt lgkmcnt(0)
s_barrier
K2_POLL:
s_sleep {PSLEEP}
buffer_load_dword v12, v4, s[8:11], 0 offen {SC}
s_add_u32 s39, s39, 1
s_waitcnt vmcnt(0)
v_cmp_eq_u32 vcc, -1, v12
s_cmp_gt_u32 s39, 0x8000
s_cbranch_scc1 K2_POLL_X
s_cbranch_vccnz K2_POLL
K2_POLL_X:
s_barrier
s_branch K2_AUXEND
""")
    A.label("K2_WOTW")
    A(f"""
v_and_b32 v7, 1, v0
v_lshlrev_b32 v7, 2, v7
v_add_u32 v7, {PROG + 40}, v7
v_mov_b32 v13, {PROG + 32}
s_waitcnt vmcnt(0) lgkmcnt(0)
s_barrier
K2_WWAIT:
s_sleep 16
ds_read_b32 v14, v13
s_waitcnt lgkmcnt(0)
v_cmp_le_u32 vcc, {WSTART}, v14
s_nop 1
s_cbranch_vccz K2_WWAIT
""")
    xwait(A, "K2_XW1", 8, 16)
    A(f"""
s_add_u32 s57, s47, {36*1024}
s_mov_b32 s58, {WOTL + 36*1024}
s_mov_b32 s59, 16
K2_WLOOP:
s_mov_b32 m0, s58
s_add_u32 s58, s58, 4096
""")
    for q in range(4):
        A(f"buffer_load_dwordx4 v3, s[8:11], s57 offen offset:{1024*q} lds")
    A(f"""
s_add_u32 s57, s57, 4096
s_sub_u32 s59, s59, 1
s_waitcnt vmcnt(4)
s_cmp_lg_u32 s59, 0
s_cbranch_scc1 K2_WLOOP
K2_WSPIN:
ds_read_b32 v147, v7
s_waitcnt lgkmcnt(0)
v_cmp_le_u32 vcc, 2, v147
s_nop 0
s_cmp_eq_u64 vcc, exec
s_cbranch_scc1 K2_WLATE
s_sleep 8
s_branch K2_WSPIN
K2_WLATE:
s_add_u32 s57, s47, {4*1024}
s_mov_b32 s58, {WOTL + 4*1024}
s_mov_b32 s59, 8
K2_WLOOP2:
s_mov_b32 m0, s58
s_add_u32 s58, s58, 4096
buffer_load_dwordx4 v3, s[8:11], s57 offen lds
buffer_load_dwordx4 v3, s[8:11], s57 offen offset:1024 lds
buffer_load_dwordx4 v3, s[8:11], s57 offen offset:2048 lds
buffer_load_dwordx4 v3, s[8:11], s57 offen offset:3072 lds
s_add_u32 s57, s57, 4096
s_sub_u32 s59, s59, 1
s_cmp_lg_u32 s59, 0
s_cbranch_scc1 K2_WLOOP2
K2_WDONE:
s_and_b32 s35, s20, 30
s_cmp_eq_u32 s35, 0
s_cselect_b32 s38, 32, s35
s_mul_i32 s36, s21, 80
s_sub_u32 s37, 561, s36
s_cmp_lt_u32 s21, 4
s_cselect_b32 s36, s36, s37
s_lshr_b32 s36, s36, 6
v_bfe_u32 v5, v0, 2, 2
v_min_u32 v5, 2, v5
v_bfe_u32 v9, v0, 4, 1
v_add_u32 v5, s36, v5
v_min_u32 v5, 5, v5
v_add_u32 v9, s35, v9
v_mov_b32 v10, s38
v_cmp_lt_u32 vcc, 31, v0
s_nop 1
v_cndmask_b32 v9, v9, v10, vcc
v_lshlrev_b32 v9, 7, v9
v_lshl_add_u32 v5, v5, 4, v9
v_and_b32 v9, 1, v0
v_lshl_add_u32 v5, v9, 2, v5
v_add_u32 v5, {FLAGY}, v5
s_mov_b32 s39, 0
s_mov_b32 s40, 0
v_mov_b32 v13, {PROG + 32}
K2_POLLY:
buffer_load_dword v12, v5, s[8:11], 0 offen {SC}
ds_read_b32 v14, v13
s_add_u32 s39, s39, 1
s_waitcnt vmcnt(0) lgkmcnt(0)
v_cmp_eq_u32 vcc, 1, v12
s_cmp_gt_u32 s39, 0x20000
s_cbranch_scc1 K2_POLLY_X
s_cmp_eq_u64 vcc, exec
s_cbranch_scc1 K2_POLLY_OK
v_cmp_le_u32 vcc, 9, v14
s_cmp_eq_u32 s40, 1
s_cbranch_scc1 K2_POLLY_S
s_cbranch_vccz K2_POLLY_S
s_mov_b32 s40, 1
s_barrier
s_branch K2_POLLY
K2_POLLY_S:
s_sleep 8
s_branch K2_POLLY
K2_POLLY_OK:
v_mov_b32 v146, 3
ds_write_b32 v6, v146
K2_POLLY_X:
s_waitcnt lgkmcnt(0)
""")
    stamp(A, 4)
    A("""
s_cmp_eq_u32 s40, 1
s_cbranch_scc1 K2_AUXEND
s_barrier
s_branch K2_AUXEND
""")

    A.label("K2_FNW")
    A("""
s_mul_i32 s25, s19, 43
s_lshr_b32 s25, s25, 8
s_mul_i32 s26, s25, 6
s_sub_u32 s26, s19, s26
s_lshl_b32 s23, s18, 2
s_add_u32 s25, s25, s23
s_cmp_lt_u32 s19, 24
s_cbranch_scc1 KF_JOB
s_mov_b32 s25, 32
s_mov_b32 s26, s18
s_cmp_gt_u32 s19, 24
s_cbranch_scc1 KF_NOJOB
s_cmp_ge_u32 s26, 6
s_cbranch_scc1 KF_NOJOB
KF_JOB:
""")
    ACC, CF, AF = 16, 48, 64
    A(f"""
s_sub_u32 s23, s22, 2
s_mov_b32 s30, {FAC}
s_mov_b32 s31, {FAS}
s_cmp_eq_u32 s23, 0
s_cselect_b32 s60, s52, s54
s_cselect_b32 s61, s53, s55
s_cselect_b32 s30, s30, s31
s_and_b32 s61, s61, 0xffff
s_mov_b32 s62, {S*S*2}
s_mov_b32 s63, 0x00020000
s_lshl_b32 s28, s25, 5
v_lshrrev_b32 v4, 3, v0
v_add_u32 v4, s28, v4
v_lshlrev_b32 v4, 12, v4
v_and_b32 v5, 7, v0
v_lshrrev_b32 v9, 4, v0
v_xor_b32 v5, v5, v9
v_lshl_add_u32 v8, v5, 4, v4
v_xor_b32 v9, 64, v8
v_add_u32 v9, 0x8000, v9
v_add_u32 v10, 0x10000, v8
v_add_u32 v11, 0x10000, v9
s_lshl_b32 s33, s23, 14
s_add_u32 s33, s33, {XR}
v_bfe_u32 v4, v1, 1, 3
v_lshlrev_b32 v5, 2, v2
v_lshl_add_u32 v160, v1, 7, s33
""")
    for u in range(4):
        A(f"v_add_u32 v161, {u}, v5")
        A("v_xor_b32 v161, v161, v4")
        A(f"v_lshl_add_u32 v{12+u}, v161, 4, v160")
    A(f"""
s_mov_b32 s29, 0
s_lshl_b32 s31, s26, 11
s_add_u32 s30, s30, s31
v_add_u32 v4, s28, v1
v_lshlrev_b32 v5, 12, v4
v_lshl_add_u32 v5, v2, 4, v5
v_add_u32 v160, s33, v3
v_and_b32 v64, 15, v0
v_lshrrev_b32 v65, 4, v0
s_lshl_b32 s34, s23, 4
v_add_u32 v65, s34, v65
v_lshrrev_b32 v66, 1, v64
v_lshlrev_b32 v66, 10, v66
v_and_b32 v67, 1, v64
v_lshl_add_u32 v67, v67, 5, v65
v_lshl_add_u32 v161, v67, 4, v66
v_add_u32 v161, {XR}, v161
v_add_u32 v65, s28, v65
s_movk_i32 s34, {Y_PITCH}
v_mul_u32_u24 v162, s34, v65
v_lshl_add_u32 v162, v64, 4, v162
s_lshl_b32 s35, s26, 8
s_add_u32 s36, s35, {YP}
s_add_u32 s35, s35, {YM}
s_mov_b32 s64, 0x00ff00ff
s_cmp_eq_u32 s26, 5
s_cselect_b32 s64, s64, -1
s_cselect_b32 s32, s23, 0
s_mov_b32 s65, s64
v_and_b32 v7, 1, v0
v_lshlrev_b32 v7, 2, v7
v_add_u32 v7, {PROG + 40}, v7
""")
    for i in range(32):
        A(f"v_mov_b32 v{ACC+i}, 0")
    A("s_waitcnt vmcnt(0) lgkmcnt(0)")
    A("s_barrier")
    A("s_cmp_eq_u32 s32, 1")
    A("s_cbranch_scc1 KF_NO65")
    xwait(A, "K2_XW2", 163, 64)
    if FPRIO:
        A(f"s_setprio {FPRIO}")

    def issue_c(buf):
        for q in range(4):
            A(f"s_add_u32 m0, s33, {buf*4096 + q*1024}")
            A("s_nop 0")
            A(f"buffer_load_dwordx4 v{8+q}, s[60:63], s29 offen lds")
        A("s_add_u32 s29, s29, 128")

    def issue_a(st):
        for u in range(4):
            reg = AF + 32 * st + 8 * u
            A(f"buffer_load_dwordx4 {vr(reg,4)}, v3, s[8:11], s30 offen")
            A(f"buffer_load_dwordx4 {vr(reg+4,4)}, v3, s[8:11], s30 offen offset:1024")
            A(f"s_add_u32 s30, s30, {FA_KS}")

    def rnd(st):
        A("s_waitcnt vmcnt(24)")
        for u in range(4):
            A(f"ds_read_b128 {vr(CF+4*u,4)}, v{12+u} offset:{st*4096}")
        for u in range(4):
            A(f"s_waitcnt lgkmcnt({3-u})")
            reg = AF + 32 * st + 8 * u
            for b in range(2):
                acc = vr(ACC + 16 * b, 16)
                A(f"v_mfma_f32_32x32x16_bf16 {acc}, {vr(reg+4*b,4)}, {vr(CF+4*u,4)}, {acc}")
                A(f"buffer_load_dwordx4 {vr(reg+4*b,4)}, v3, s[8:11], s30 offen offset:{1024*b}")
            A(f"s_add_u32 s30, s30, {FA_KS}")
        issue_c(st)

    A("buffer_load_dwordx4 v[164:167], v5, s[60:63], 0 offen offset:2048")
    for st in range(3):
        issue_c(st); issue_a(st)
    A("s_mov_b32 s42, 0")
    stamp(A, 1)
    A.label("KF_LOOP")
    for st in range(3):
        rnd(st)
    A("""
s_add_u32 s42, s42, 1
s_cmp_lt_u32 s42, 5
s_cbranch_scc1 KF_LOOP
s_waitcnt vmcnt(24)
""")
    for u in range(4):
        A(f"ds_read_b128 {vr(CF+4*u,4)}, v{12+u}")
    for u in range(4):
        A(f"s_waitcnt lgkmcnt({3-u})")
        for b in range(2):
            acc = vr(ACC + 16 * b, 16)
            A(f"v_mfma_f32_32x32x16_bf16 {acc}, {vr(AF+8*u+4*b,4)}, {vr(CF+4*u,4)}, {acc}")
    stamp(A, 2)
    A(f"""
s_cmp_eq_u32 s23, 0
s_cbranch_scc0 KF_NO65
s_waitcnt vmcnt(12)
v_mfma_f32_32x32x16_bf16 {vr(ACC,16)}, {vr(AF+32,4)}, v[164:167], {vr(ACC,16)}
v_mfma_f32_32x32x16_bf16 {vr(ACC+16,16)}, {vr(AF+36,4)}, v[164:167], {vr(ACC+16,16)}
KF_NO65:
s_setprio 3
s_waitcnt vmcnt(0)
s_nop 15
""")
    for q in range(8):
        A(f"ds_write_b128 v160, {vr(ACC+4*q,4)} offset:{1024*q}")
    A("s_waitcnt lgkmcnt(0)")
    aux_sync(1, "KF_S1")
    for w in range(2):
        for j in range(4):
            A(f"ds_read_b128 {vr(48+16*w+4*j,4)}, v161 offset:{16384*w + 64*j}")
    A("s_waitcnt lgkmcnt(0)")
    A("v_mov_b32 v146, 2")
    A("ds_write_b32 v6, v146")
    for i in range(16):
        A(f"v_sub_f32 v{80+i}, v{48+i}, v{64+i}")
        A(f"v_add_f32 v{96+i}, v{48+i}, v{64+i}")
    A("s_mov_b64 exec, s[64:65]")
    for j in range(4):
        A(f"buffer_store_dwordx4 {vr(80+4*j,4)}, v162, s[8:11], s35 offen {SC}")
        A(f"buffer_store_dwordx4 {vr(96+4*j,4)}, v162, s[8:11], s36 offen {SC}")
        A(f"s_add_u32 s35, s35, {4*Y_PITCH}")
        A(f"s_add_u32 s36, s36, {4*Y_PITCH}")
    A(f"""
s_lshl_b32 s34, s25, 7
s_lshl_b32 s35, s26, 4
s_add_u32 s34, s34, s35
s_lshl_b32 s35, s23, 2
s_add_u32 s34, s34, s35
s_add_u32 s34, s34, {FLAGY}
s_mov_b64 exec, 1
v_mov_b32 v4, 0
v_mov_b32 v5, 1
s_waitcnt vmcnt(0) lgkmcnt(0)
buffer_store_dword v5, v4, s[8:11], s34 offen {SC}
s_mov_b64 exec, -1
""")
    stamp(A, 3)
    A("s_branch K2_AUXEND")
    A.label("KF_NOJOB")
    A("""
v_mov_b32 v146, 2
ds_write_b32 v6, v146
s_waitcnt vmcnt(0) lgkmcnt(0)
s_barrier
""")
    A.label("K2_AUXEND")
    prof_end(A, 1)
    A.label("K2_EXIT")
    A("s_endpgm")
```

```python
from common import *
import struct, math


def f32hex(x):
    return "0x%08x" % struct.unpack("<I", struct.pack("<f", x))[0]


QSCALE = (DH ** -0.5) * math.log2(math.e)
ACC = 16
SET = [96, 132]
XB, WB = 4, 6
XA, WA = 10, 12
P1_VGPR = 168
P1_LDS = 65536 + 4 * 20480
NPH = os.environ.get("P1_NPH", "10")
ONE = os.environ.get("ONE", "1") == "1"


def reads(kind, k2, st):
    b0 = SET[st]
    out = []
    for tb in range(4):
        if kind == 0:
            out.append(f"ds_read_b128 {vr(b0+4*tb,4)}, v{XA + (k2 ^ (tb >> 1))} offset:{tb*2048}")
        else:
            out.append(f"ds_read_b128 {vr(b0+4*tb,4)}, v{XA + (k2 ^ (tb & 1))} offset:{tb*1024}")
    for cb in range(5):
        for rd in range(2):
            if kind == 0:
                a, off = (WA + rd, 80 * (cb >> 1) + 8 * (cb & 1)) if cb < 4 else (WA + 2 + rd, 0)
            else:
                a, off = WA + rd, 32 * cb
            out.append(f"ds_read_b64_tr_b16 {vr(b0+16+4*cb+2*rd,2)}, v{a} offset:{k2*5120 + off}")
    return out


def mfmas(kind, st):
    b0 = SET[st]
    out = []
    for cb in range(5):
        for tb in range(4):
            acc = vr(ACC + 16 * cb + 4 * tb, 4)
            xf, wf = vr(b0 + 4 * tb, 4), vr(b0 + 16 + 4 * cb, 4)
            a, b = (wf, xf) if kind == 0 else (xf, wf)
            out.append(f"v_mfma_f32_16x16x32_bf16 {acc}, {a}, {b}, {acc}")
    return out


def step(A, mf, rd, extra=()):
    A("s_waitcnt lgkmcnt(0)")
    ex = list(extra)
    for i, m in enumerate(mf):
        A(m)
        if i < 7:
            A(rd[2 * i]); A(rd[2 * i + 1])
        elif ex:
            A(ex.pop(0))
    assert not ex


def mainloop(A, kind):
    L = f"P1_LOOP{kind}"
    A("""
v_and_b32 v1, 15, v0
v_lshrrev_b32 v2, 4, v0
v_bfe_u32 v3, v1, 1, 3
v_xor_b32 v3, v3, v2
s_lshl_b32 s48, s36, 13
""")
    if kind == 0:
        A("v_lshlrev_b32 v16, 7, v1")
    else:
        A("v_lshrrev_b32 v17, 3, v1")
        A("v_and_b32 v16, 7, v1")
        A("v_lshl_add_u32 v16, v17, 5, v16")
        A("v_lshlrev_b32 v16, 7, v16")
    A(f"""
v_add_u32 v16, s48, v16
v_lshl_add_u32 v{XB}, v3, 4, v16
v_xor_b32 v{XB+1}, 64, v{XB}
v_lshrrev_b32 v17, 2, v1
v_and_b32 v18, 3, v1
v_mul_u32_u24 v19, 1280, v2
v_mul_u32_u24 v17, 320, v17
s_mul_i32 s48, s37, 10240
s_add_u32 s48, s48, 0x10000
v_add3_u32 v19, v19, v17, s48
v_and_b32 v20, 1, v2
v_mul_u32_u24 v20, 160, v20
v_sub_u32 v21, 160, v20
""")
    if kind == 1:
        A(f"""
v_lshl_add_u32 v19, v18, 3, v19
v_add_u32 v{WB}, v19, v20
v_add_u32 v{WB+1}, v19, v21
v_mov_b32 v{WB+2}, v{WB}
v_mov_b32 v{WB+3}, v{WB}
""")
    else:
        A(f"""
v_lshrrev_b32 v22, 1, v18
v_mul_u32_u24 v22, 40, v22
v_and_b32 v23, 1, v18
v_lshl_add_u32 v22, v23, 4, v22
v_add_u32 v22, v22, v19
v_add_u32 v{WB}, v22, v20
v_add_u32 v{WB+1}, v22, v21
v_mul_u32_u24 v22, 40, v18
v_add3_u32 v22, v22, v19, 32
v_add_u32 v{WB+2}, v22, v20
v_add_u32 v{WB+3}, v22, v21
""")
    for i in range(6):
        A(f"v_mov_b32 v{XA+i}, v{XB+i}")
    for i in range(80):
        A(f"v_mov_b32 v{ACC+i}, 0")
    for i in range(36):
        A(f"v_mov_b32 v{SET[1]+i}, 0")
    A("s_mov_b32 s60, 0")
    stamp(A, 1)
    if PROF:
        A("s_barrier")
        stamp(A, 2)
        A(f"s_branch {L}_B")
    A.label(L)
    A("s_barrier")
    A.label(L + "_B")
    step(A, mfmas(kind, 1), reads(kind, 0, 0),
         extra=["s_add_u32 s60, s60, 1", "s_and_b32 s61, s60, 3", "s_lshl_b32 s62, s61, 14", "s_mul_i32 s63, s61, 20480"])
    upd = [f"v_add_u32 v{XA+i}, s62, v{XB+i}" for i in range(2)] + [f"v_add_u32 v{WA+i}, s63, v{WB+i}" for i in range(4)]
    step(A, mfmas(kind, 0), reads(kind, 1, 1), extra=upd + ["s_cmp_lt_u32 s60, 10"])
    A(f"s_cbranch_scc1 {L}")
    stamp(A, 3)
    A("s_waitcnt lgkmcnt(0)")
    for m in mfmas(kind, 1):
        A(m)


def xsignal(A, tag, ws):
    A(f"""
v_mov_b32 v128, {XCNT}
v_mov_b32 v129, 1
s_mov_b64 exec, 1
ds_add_rtn_u32 v130, v128, v129
s_waitcnt lgkmcnt(0)
v_cmp_eq_u32 vcc, s71, v130
s_lshl_b32 s72, s2, 2
s_add_u32 s72, s72, {XFG}
s_cbranch_vccz XSIG_{tag}
v_mov_b32 v128, 0
buffer_store_dword v129, v128, s[{ws}:{ws+3}], s72 offen sc1
XSIG_{tag}:
s_mov_b64 exec, -1
""")


def gen_p1(A, name="k1_kernel"):
    A(khead(name))
    A("""
s_cmp_ge_u32 s2, 256
s_cbranch_scc1 K2_EXIT
""")
    prof_begin(A)
    A(f"""
s_load_dwordx2 s[4:5], s[0:1], {KA_X}
s_load_dwordx4 s[20:23], s[0:1], {KA_HRE}
s_load_dwordx4 s[24:27], s[0:1], {KA_WQKV}
s_load_dwordx2 s[28:29], s[0:1], {KA_GATE}
s_load_dwordx2 s[30:31], s[0:1], {KA_WS}
v_lshrrev_b32 v1, 6, v0
v_and_b32 v0, 63, v0
s_and_b32 s46, s2, 7
s_lshr_b32 s47, s2, 3
v_readfirstlane_b32 s34, v1
s_and_b32 s32, s47, 15
s_lshr_b32 s33, s47, 4
s_mov_b32 s3, s34
s_mov_b32 s70, 0
s_lshl_b32 s71, s33, 1
s_add_u32 s71, s71, 3
s_cmp_lt_u32 s34, 4
s_cbranch_scc1 K1_COMPUTE
""")
    if ONE:
        A("s_cmp_ge_u32 s34, 8")
        A("s_cbranch_scc1 K1_AUX")
    A("""
s_sub_u32 s34, s34, 4
s_mul_i32 s38, s33, 5
s_add_u32 s38, s38, s32
s_add_u32 s38, s38, s46
s_mul_i32 s39, s38, 26
s_lshr_b32 s39, s39, 8
s_mul_i32 s39, s39, 10
s_sub_u32 s38, s38, s39
""")
    if NPH == "2":
        A("s_mul_i32 s38, s33, 5")
    elif NPH == "4":
        A("s_and_b32 s38, s32, 1")
        A("s_lshl_b32 s38, s38, 1")
        A("s_mul_i32 s39, s33, 5")
        A("s_add_u32 s38, s38, s39")
    A("""
s_lshr_b32 s35, s34, 1
s_lshl_b32 s49, s33, 1
s_add_u32 s35, s35, s49
s_movk_i32 s54, 1280
s_movk_i32 s55, 3840
s_mul_i32 s56, s35, 1280
s_mul_i32 s57, s46, 160
s_add_u32 s56, s56, s57
s_and_b32 s57, s46, 3
s_mul_i32 s57, s57, 160
s_cmp_eq_u32 s35, 3
s_cselect_b32 s36, s54, s55
s_cselect_b32 s37, s57, s56
v_lshrrev_b32 v1, 3, v0
v_and_b32 v2, 7, v0
v_lshrrev_b32 v3, 4, v0
v_xor_b32 v4, v2, v3
v_lshlrev_b32 v4, 4, v4
s_and_b32 s49, s34, 1
s_lshl_b32 s50, s49, 6
v_xor_b32 v4, s50, v4
v_xor_b32 v5, 64, v4
s_movk_i32 s48, 1280
s_lshl_b32 s50, s32, 6
s_lshl_b32 s51, s34, 3
s_add_u32 s50, s50, s51
v_and_b32 v6, 3, v1
v_and_b32 v7, 32, v0
v_add3_u32 v6, v6, v7, s50
v_add_u32 v7, 4, v6
v_sub_u32 v8, 2048, v6
v_sub_u32 v9, 2048, v7
v_cmp_eq_u32 vcc, 0, v6
v_mov_b32 v14, 1024
v_mul_u32_u24 v6, s48, v6
v_mul_u32_u24 v7, s48, v7
v_cndmask_b32 v8, v8, v14, vcc
v_mul_u32_u24 v9, s48, v9
v_mul_u32_u24 v8, s48, v8
v_add_u32 v10, v6, v4
v_add_u32 v11, v7, v5
v_add_u32 v12, v8, v4
v_add_u32 v13, v9, v5
s_mul_i32 s49, s49, 320
v_add_u32 v6, s49, v0
""")
    for q in range(5):
        if q:
            A("v_add_u32 v6, 64, v6")
        A(f"""
v_mul_u32_u24 v7, 3277, v6
v_lshrrev_b32 v7, 16, v7
v_mul_u32_u24 v8, 20, v7
v_sub_u32 v8, v6, v8
v_mul_u32_u24 v9, 13, v8
v_lshrrev_b32 v9, 7, v9
v_mul_u32_u24 v1, 10, v9
v_sub_u32 v8, v8, v1
v_lshrrev_b32 v1, 2, v7
v_xor_b32 v9, v9, v1
v_and_b32 v9, 1, v9
v_and_b32 v7, 3, v7
v_lshl_add_u32 v7, v9, 2, v7
v_lshl_add_u32 v7, v1, 3, v7
v_mul_u32_u24 v7, s36, v7
v_lshl_add_u32 v8, v8, 4, s37
v_add_u32 v{14+q}, v7, v8
""")
    A("""
s_lshl_b32 s52, s34, 12
s_mul_i32 s53, s34, 5120
s_lshl_b32 s55, s36, 6
s_lshl_b32 s51, s38, 7
s_mul_i32 s54, s38, s55
s_mov_b32 s56, 819200
s_mov_b32 s57, 2457600
s_mov_b32 s10, 2621440
s_mov_b32 s11, 0x00020000
s_mov_b32 s15, 0x00020000
s_waitcnt lgkmcnt(0)
s_mov_b32 s8, s4
s_and_b32 s9, s5, 0xffff
s_cmp_lt_u32 s46, 4
s_cselect_b32 s6, s20, s22
s_cselect_b32 s7, s21, s23
s_cmp_eq_u32 s35, 3
s_cselect_b32 s12, s6, s24
s_cselect_b32 s13, s7, s25
s_cselect_b32 s14, s56, s57
s_and_b32 s13, s13, 0xffff
""")

    def issue(c):
        slot = c & 3
        for q in range(4):
            A(f"s_add_u32 m0, s52, {slot*16384 + q*1024}")
            A("s_nop 0")
            A(f"buffer_load_dwordx4 v{10+q}, s[8:11], s51 offen lds")
        for q in range(5):
            A(f"s_add_u32 m0, s53, {65536 + slot*20480 + q*1024}")
            A("s_nop 0")
            A(f"buffer_load_dwordx4 v{14+q}, s[12:15], s54 offen lds")
        A("s_add_u32 s38, s38, 1")
        A("s_cmp_eq_u32 s38, 10")
        A("s_cselect_b32 s38, 0, s38")
        A("s_lshl_b32 s51, s38, 7")
        A("s_mul_i32 s54, s38, s55")

    def side_loads():
        srd(A, 40, 26, D * D * 2)
        srd(A, 64, 28, D * 2)
        A("""
s_lshl_b32 s56, s2, 2
s_add_u32 s56, s56, s34
s_sub_u32 s57, 2048, s56
s_cmp_eq_u32 s56, 0
s_cselect_b32 s57, 1024, s57
s_mul_i32 s58, s56, 1280
s_mul_i32 s59, s57, 1280
v_mul_u32_u24 v20, 20, v0
buffer_load_dwordx4 v[24:27], v20, s[8:11], s58 offen
buffer_load_dword v28, v20, s[8:11], s58 offen offset:16
buffer_load_dwordx4 v[32:35], v20, s[8:11], s59 offen
buffer_load_dword v36, v20, s[8:11], s59 offen offset:16
buffer_load_dwordx4 v[40:43], v20, s[64:67], 0 offen
buffer_load_dword v44, v20, s[64:67], 0 offen offset:16
s_mul_i32 s60, s56, 3277
s_lshr_b32 s60, s60, 16
s_mul_i32 s61, s60, 20
s_sub_u32 s61, s56, s61
v_lshrrev_b32 v21, 4, v0
v_and_b32 v22, 15, v0
s_cmp_lt_u32 s61, 16
s_cbranch_scc0 K1_WOT_HI
s_mul_i32 s62, s61, 40
v_lshrrev_b32 v23, 1, v21
v_mul_u32_u24 v23, 20, v23
v_and_b32 v29, 1, v21
v_lshl_add_u32 v23, v29, 2, v23
v_add_u32 v23, s62, v23
s_movk_i32 s63, 10240
s_branch K1_WOT_GO
K1_WOT_HI:
s_sub_u32 s62, s61, 16
s_mul_i32 s62, s62, 160
s_add_u32 s62, s62, 16
v_mul_u32_u24 v23, 40, v21
v_add_u32 v23, s62, v23
s_movk_i32 s63, 25600
K1_WOT_GO:
v_mul_u32_u24 v23, s48, v23
s_lshl_b32 s60, s60, 5
v_lshl_add_u32 v23, v22, 1, v23
v_add_u32 v23, s60, v23
v_add_u32 v29, s63, v23
""")
        for half, a in ((0, 23), (1, 29)):
            for j in range(4):
                reg = (68 if (j & 1) else 48) + 2 * half + (j >> 1)
                A(f"buffer_load_ushort v{reg}, v{a}, s[40:43], 0 offen offset:{1280*j}")

    stamp(A, 1)
    issue(0)
    issue(1)
    stamp(A, 2)
    for c in range(10):
        A(f"s_waitcnt vmcnt({9 if c < 9 else 0})")
        if c in (0, 1, 4, 9):
            stamp(A, {0: 3, 1: 4, 4: 5, 9: 6}[c])
        A("s_barrier")
        if c + 2 <= 9:
            issue(c + 2)
    A("s_branch K1_DONE")

    A.label("K1_AUX")
    A(f"""
s_sub_u32 s34, s34, 8
s_movk_i32 s48, 1280
s_load_dwordx2 s[6:7], s[0:1], {KA_DBG}
v_mov_b32 v92, {XCNT}
v_mov_b32 v93, 0
ds_write_b32 v92, v93
s_waitcnt lgkmcnt(0)
""")
    srd(A, 8, 4, S * D * 2)
    srd(A, 16, 30, WS_SIZE)
    srd(A, 12, 6, 256)
    A(f"""
s_lshl_b32 s56, s2, 2
s_add_u32 s56, s56, s34
s_mul_i32 s49, s56, 2560
s_add_u32 s49, s49, {OIMG}
v_lshlrev_b32 v84, 4, v0
v_lshlrev_b32 v85, 3, v0
v_mov_b32 v88, -1
v_mov_b32 v89, -1
v_mov_b32 v90, -1
v_mov_b32 v91, -1
v_mov_b32 v72, 0
v_mov_b32 v73, 0
v_mov_b32 v74, 0
v_mov_b32 v75, 0
s_barrier
s_barrier
buffer_store_dwordx4 v[88:91], v84, s[16:19], s49 offen sc1
buffer_store_dwordx4 v[88:91], v84, s[16:19], s49 offen offset:1024 sc1
buffer_store_dwordx2 v[88:89], v85, s[16:19], s49 offen offset:2048 sc1
s_cmp_lt_u32 s56, 4
s_cbranch_scc0 K1_NO_FLG
s_lshl_b32 s60, s56, 11
s_add_u32 s60, s60, {FLAGY}
buffer_store_dwordx4 v[72:75], v84, s[16:19], s60 offen sc1
buffer_store_dwordx4 v[72:75], v84, s[16:19], s60 offen offset:1024 sc1
K1_NO_FLG:
s_cmp_eq_u32 s34, 0
s_cbranch_scc0 K1_NO_CLR
s_lshl_b32 s60, s46, 9
s_lshl_b32 s61, s47, 4
s_add_u32 s60, s60, s61
s_add_u32 s61, s60, {GFG}
s_add_u32 s60, s60, {LFG}
s_lshl_b32 s62, s2, 2
s_add_u32 s62, s62, {XFG}
s_mov_b64 exec, 1
buffer_store_dwordx4 v[72:75], v72, s[16:19], s60 offen sc1
buffer_store_dwordx4 v[72:75], v72, s[16:19], s61 offen sc1
buffer_store_dword v72, v72, s[16:19], s62 offen sc1
s_mov_b64 exec, -1
K1_NO_CLR:
s_barrier
""")
    side_loads()
    A("""
s_barrier
s_barrier
s_waitcnt vmcnt(0)
s_barrier
s_cmp_eq_u32 s34, 0
s_cbranch_scc0 K1_NO_CNT
v_mov_b32 v76, 1
s_and_b32 s60, s2, 7
s_lshl_b32 s60, s60, 4
s_mov_b64 exec, 1
buffer_atomic_add v76, v72, s[12:15], s60 offen sc1
s_mov_b64 exec, -1
K1_NO_CNT:
""")
    A("v_mov_b32 v56, 0xbf803f80")
    for i in range(4):
        A(f"v_lshl_or_b32 v{48+i}, v{68+i}, 16, v{48+i}")
    xs, xm, gw = [24, 25, 26, 27, 28], [32, 33, 34, 35, 36], [40, 41, 42, 43, 44]
    for j in range(5):
        for acc, a, b in ((52, xs[j], gw[j]), (53, xm[j], gw[j]), (54, xs[j], 56), (55, xm[j], 56)):
            cc = "0" if j == 0 else f"v{acc}"
            A(f"v_dot2_f32_bf16 v{acc}, v{a}, v{b}, {cc}")
    A("s_nop 3")
    for ror in (1, 2, 4, 8):
        for i in range(4):
            A(f"v_add_f32_dpp v{52+i}, v{52+i}, v{52+i} row_ror:{ror} row_mask:0xf bank_mask:0xf")
        A("s_nop 1")
    for i in range(4):
        A(f"v_add_f32_dpp v{52+i}, v{52+i}, v{52+i} row_bcast:15 row_mask:0xa bank_mask:0xf")
    A("s_nop 1")
    for i in range(4):
        A(f"v_add_f32_dpp v{52+i}, v{52+i}, v{52+i} row_bcast:31 row_mask:0xc bank_mask:0xf")
    A("s_nop 1")
    A(f"""
s_lshl_b32 s60, s56, 10
s_add_u32 s60, s60, {WOT}
v_lshlrev_b32 v20, 4, v0
s_cmp_lt_u32 s56, 800
s_cbranch_scc0 K1_NO_WOT
buffer_store_dwordx4 v[48:51], v20, s[16:19], s60 offen sc1
K1_NO_WOT:
v_mov_b32 v20, 0
v_cmp_eq_u32 vcc, 63, v0
s_and_saveexec_b64 s[64:65], vcc
s_lshl_b32 s60, s56, 2
s_add_u32 s60, s60, {GATE}
s_lshl_b32 s61, s57, 2
s_add_u32 s61, s61, {GATE}
buffer_store_dword v52, v20, s[16:19], s60 offen sc1
buffer_store_dword v53, v20, s[16:19], s61 offen sc1
s_lshr_b32 s60, s56, 6
s_lshl_b32 s60, s60, 2
s_bfe_u32 s61, s56, 0x20003
s_add_u32 s60, s60, s61
s_mul_i32 s60, s60, {FA_KS}
s_bfe_u32 s61, s56, 0x10005
s_lshl_b32 s61, s61, 9
s_add_u32 s60, s60, s61
s_and_b32 s61, s56, 7
s_lshl_b32 s61, s61, 1
s_add_u32 s60, s60, s61
s_add_u32 s60, s60, {FAC + 10*1024}
s_cmp_eq_u32 s56, 0
s_cbranch_scc1 K1_ALT0
v_add_f32 v54, v54, v55
v_cvt_pk_bf16_f32 v54, v54, v54
buffer_store_short v54, v20, s[16:19], s60 offen sc1
s_branch K1_AUXEND
K1_ALT0:
v_cvt_pk_bf16_f32 v54, v54, v54
buffer_store_short v54, v20, s[16:19], s60 offen sc1
v_cvt_pk_bf16_f32 v60, v55, 0
v_mov_b32 v61, 0
v_mov_b32 v62, 0
v_mov_b32 v63, 0
v_mov_b32 v64, 0
s_mov_b32 s60, {FAC + 64*FA_KS + 10*1024}
buffer_store_dwordx4 v[60:63], v20, s[16:19], s60 offen sc1
v_mov_b32 v66, 0
v_mov_b32 v67, 0
v_mov_b32 v65, 0
buffer_store_dwordx4 v[64:67], v20, s[16:19], s60 offen offset:512 sc1
s_branch K1_AUXEND
""")

    A.label("K1_AUXEND")
    A(f"""
s_mov_b64 exec, -1
s_barrier
s_barrier
s_barrier
s_waitcnt vmcnt(0)
""")
    xsignal(A, "A", 16)
    A("s_barrier")
    A("s_branch K1_DONE")

    A.label("K1_COMPUTE")
    A("""
s_and_b32 s36, s34, 1
s_lshr_b32 s37, s34, 1
s_waitcnt lgkmcnt(0)
""")
    srd(A, 16, 30, WS_SIZE)
    A("""
s_cmp_eq_u32 s33, 1
s_cbranch_scc1 K1_VF
""")
    PK = 96
    mainloop(A, 0)
    A(f"""
s_lshl_b32 s48, s32, 2
s_lshl_b32 s49, s36, 1
s_add_u32 s48, s48, s49
s_mov_b32 s50, {Q_HS}
s_mov_b32 s51, {KV_HS}
s_mul_i32 s52, s48, {Q_TS}
s_add_u32 s52, s52, {QIMG}
s_add_u32 s53, s48, 62
s_and_b32 s53, s53, 63
s_mul_i32 s53, s53, {KV_TS}
s_add_u32 s53, s53, {KVIMG}
s_movk_i32 s54, 1024
s_movk_i32 s55, {KV_TS}
s_cmp_eq_u32 s37, 0
s_cselect_b32 s56, s50, s51
s_cselect_b32 s57, s52, s53
s_cselect_b32 s58, s54, s55
s_lshl_b32 s59, s46, 2
s_mul_i32 s59, s59, s56
s_add_u32 s57, s57, s59
s_add_u32 s58, s58, s57
s_lshl_b32 s59, s56, 1
s_add_u32 s60, s57, s59
s_add_u32 s61, s58, s59
s_mov_b32 s62, {f32hex(QSCALE)}
s_mov_b32 s63, s62
v_lshrrev_b32 v3, 1, v2
v_mul_u32_u24 v3, s56, v3
v_and_b32 v4, 1, v2
v_lshl_add_u32 v3, v4, 9, v3
v_lshl_add_u32 v3, v1, 4, v3
v_mul_u32_u24 v4, s56, v2
v_lshl_add_u32 v5, v1, 4, v4
v_lshl_add_u32 v4, v1, 3, v4
s_cmp_eq_u32 s37, 0
s_cbranch_scc0 K1_NOSCALE
""")
    so = {(0, 0): 57, (0, 1): 58, (1, 0): 60, (1, 1): 61}
    for scale in (True, False):
        if not scale:
            A.label("K1_NOSCALE")
        for p in range(2):
            for tb in range(4):
                regs = [ACC + 32 * p + 4 * tb, ACC + 32 * p + 4 * tb + 2, ACC + 32 * p + 16 + 4 * tb, ACC + 32 * p + 16 + 4 * tb + 2]
                d = PK + 16 * p + 4 * tb
                if scale:
                    for r in regs:
                        A(f"v_pk_mul_f32 {vr(r,2)}, {vr(r,2)}, s[62:63]")
                for i, r in enumerate(regs):
                    A(f"v_cvt_pk_bf16_f32 v{d+i}, v{r}, v{r+1}")
                A(f"buffer_store_dwordx4 {vr(d,4)}, v3, s[16:19], s{so[(p, tb >> 1)]} offen offset:{256*(tb & 1)}")
        if scale:
            for t2 in range(2):
                regs = [ACC + 64 + 4 * t2, ACC + 64 + 4 * t2 + 2, ACC + 72 + 4 * t2, ACC + 72 + 4 * t2 + 2]
                d = PK + 32 + 4 * t2
                for r in regs:
                    A(f"v_pk_mul_f32 {vr(r,2)}, {vr(r,2)}, s[62:63]")
                for i, r in enumerate(regs):
                    A(f"v_cvt_pk_bf16_f32 v{d+i}, v{r}, v{r+1}")
                A(f"buffer_store_dwordx4 {vr(d,4)}, v5, s[16:19], s57 offen offset:{2048 + 256*t2}")
            A("s_branch K1_END")
        else:
            for tb in range(4):
                regs = [ACC + 64 + 4 * tb, ACC + 64 + 4 * tb + 2]
                d = PK + 32 + 2 * tb
                for i, r in enumerate(regs):
                    A(f"v_cvt_pk_bf16_f32 v{d+i}, v{r}, v{r+1}")
                A(f"buffer_store_dwordx2 {vr(d,2)}, v4, s[16:19], s{57 + (tb >> 1)} offen offset:{1024 + 128*(tb & 1)}")
    for j in range(4):
        for p in range(2):
            for tb in range(4):
                src = PK + 16 * p + 4 * tb + j
                acc = 16 + 4 * p + tb
                A(f"v_dot2_f32_bf16 v{acc}, v{src}, v{src}, {'0' if j == 0 else f'v{acc}'}")
    for j in range(2):
        for tb in range(4):
            src = PK + 32 + 2 * tb + j
            A(f"v_dot2_f32_bf16 v{24+tb}, v{src}, v{src}, {'0' if j == 0 else f'v{24+tb}'}")
    A(f"""
s_lshl_b32 s50, s46, 5
s_lshl_b32 s51, s32, 1
s_add_u32 s50, s50, s51
s_add_u32 s50, s50, s36
s_lshl_b32 s50, s50, 7
s_add_u32 s50, s50, {KMAX}
""")
    for q in range(3):
        A(f"v_max3_f32 v{16+4*q}, v{16+4*q}, v{17+4*q}, v{18+4*q}")
    for q in range(3):
        A(f"v_max_f32 v{16+4*q}, v{16+4*q}, v{19+4*q}")
    for ror in (1, 2, 4, 8):
        A("s_nop 0")
        for q in range(3):
            A(f"v_max_f32_dpp v{16+4*q}, v{16+4*q}, v{16+4*q} row_ror:{ror} row_mask:0xf bank_mask:0xf")
    A("""
v_lshrrev_b32 v5, 1, v2
v_lshlrev_b32 v5, 4, v5
v_and_b32 v6, 1, v2
v_lshl_add_u32 v5, v6, 2, v5
v_lshlrev_b32 v6, 4, v2
v_cmp_eq_u32 vcc, 0, v1
s_and_saveexec_b64 s[64:65], vcc
buffer_store_dword v16, v5, s[16:19], s50 offen
buffer_store_dword v20, v5, s[16:19], s50 offen offset:32
buffer_store_dword v24, v6, s[16:19], s50 offen offset:8
s_branch K1_END
""")

    A.label("K1_VF")
    mainloop(A, 1)
    A(f"""
s_lshl_b32 s48, s32, 2
s_lshl_b32 s49, s36, 1
s_add_u32 s48, s48, s49
v_lshrrev_b32 v3, 1, v2
v_and_b32 v4, 1, v2
s_cmp_eq_u32 s37, 1
s_cbranch_scc1 K1_F
s_mul_i32 s49, s46, {4*KV_HS}
s_mul_i32 s50, s48, {KV_TS}
s_add_u32 s60, s49, s50
s_add_u32 s60, s60, {KVIMG + 1280}
s_mov_b32 s51, {KV_HS}
v_mul_u32_u24 v3, {KV_TS}, v3
v_mul_u32_u24 v4, 336, v4
v_add_u32 v3, v3, v4
""")
    for cb in range(5):
        A(f"v_add_u32 v4, {16*cb}, v1")
        A("v_mul_u32_u24 v5, 3277, v4")
        A("v_lshrrev_b32 v5, 16, v5")
        A("v_mul_u32_u24 v6, 20, v5")
        A("v_sub_u32 v6, v4, v6")
        A("v_mul_u32_u24 v5, s51, v5")
        A("v_lshl_add_u32 v6, v6, 4, v3")
        A(f"v_add_u32 v{8+cb}, v5, v6")
        for j in range(2):
            d = PK + 8 * cb + 4 * j
            for i in range(4):
                r = ACC + 16 * cb + 8 * j + 2 * i
                A(f"v_cvt_pk_bf16_f32 v{d+i}, v{r}, v{r+1}")
            A(f"buffer_store_dwordx4 {vr(d,4)}, v{8+cb}, s[16:19], s60 offen offset:{672*j}")
    A(f"""
v_lshrrev_b32 v4, 3, v0
v_mul_u32_u24 v4, s51, v4
v_bfe_u32 v5, v0, 2, 1
v_mul_u32_u24 v5, {KV_TS}, v5
v_and_b32 v6, 3, v0
v_mul_u32_u24 v6, 336, v6
v_add3_u32 v4, v4, v5, v6
v_mov_b32 v16, 0x3f803f80
v_mov_b32 v17, 0x3f803f80
v_mov_b32 v18, 0x3f803f80
v_mov_b32 v19, 0x3f803f80
v_cmp_gt_u32 vcc, 32, v0
s_and_saveexec_b64 s[64:65], vcc
buffer_store_dwordx4 v[16:19], v4, s[16:19], s60 offen offset:320
s_branch K1_END
""")
    A.label("K1_F")
    A(f"""
s_mov_b32 s50, {FAC}
s_mov_b32 s51, {FAS}
s_mov_b32 s52, 1.0
s_mov_b32 s53, -1.0
s_cmp_lt_u32 s46, 4
s_cselect_b32 s54, s50, s51
s_cselect_b32 s55, s52, s53
s_and_b32 s49, s46, 3
s_mul_i32 s49, s49, 5
s_mul_i32 s60, s48, {FA_KS}
s_add_u32 s60, s60, s54
v_lshlrev_b32 v5, 9, v4
v_lshl_add_u32 v5, v1, 4, v5
v_mul_u32_u24 v3, {FA_KS}, v3
v_add_u32 v3, v3, v5
""")
    for cb in range(5):
        A(f"s_add_u32 s50, s49, {cb}")
        A(f"s_lshr_b32 s51, s50, 1")
        A(f"s_lshl_b32 s51, s51, 10")
        A(f"s_and_b32 s50, s50, 1")
        A(f"s_lshl_b32 s50, s50, 8")
        A(f"s_add_u32 s{64+cb}, s50, s51")
    A(f"""
s_cmp_lg_u32 s48, 0
s_cbranch_scc1 K1_F_NOSPECIAL
s_add_u32 s61, s54, {64*FA_KS}
v_cmp_gt_u32 vcc, 16, v0
v_mov_b32 v133, 0
v_mov_b32 v134, 0
v_mov_b32 v135, 0
""")
    for cb in range(5):
        r8 = ACC + 16 * cb + 8
        A(f"v_cndmask_b32 v8, 0, v{r8}, vcc")
        A("v_cvt_pk_bf16_f32 v132, v8, 0")
        A(f"v_cndmask_b32 v{r8}, v{r8}, v133, vcc")
        A(f"s_add_u32 s62, s61, s{64+cb}")
        A("s_mov_b32 exec_hi, 0")
        A("buffer_store_dwordx4 v[132:135], v5, s[16:19], s62 offen sc1")
        A("s_mov_b32 exec_hi, -1")
        A("s_nop 1")
    A.label("K1_F_NOSPECIAL")
    for cb in range(5):
        for r in range(8):
            a = ACC + 16 * cb + r
            A(f"v_fma_f32 v{a}, v{a+8}, s55, v{a}")
        for i in range(4):
            a = ACC + 16 * cb + 2 * i
            A(f"v_cvt_pk_bf16_f32 v{PK+4*cb+i}, v{a}, v{a+1}")
        A(f"s_add_u32 s62, s60, s{64+cb}")
        A(f"buffer_store_dwordx4 {vr(PK+4*cb,4)}, v3, s[16:19], s62 offen sc1")
    A("s_mov_b32 s70, 1")
    A("s_branch K1_FLAG")
    A.label("K1_END")
    A("s_mov_b64 exec, -1")
    A("s_waitcnt vmcnt(0)")
    A.label("K1_FLAG")
    A(f"""
s_getreg_b32 s60, hwreg(HW_REG_XCC_ID, 0, 4)
s_add_u32 s60, s60, 1
s_lshl_b32 s61, s46, 9
s_lshl_b32 s62, s47, 4
s_add_u32 s61, s61, s62
s_lshl_b32 s62, s34, 2
s_add_u32 s61, s61, s62
s_add_u32 s61, s61, {LFG}
v_mov_b32 v4, 0
v_mov_b32 v5, s60
s_mov_b64 exec, 1
buffer_store_dword v5, v4, s[16:19], s61 offen
s_mov_b64 exec, -1
""")
    A.label("K1_DONE")
    stamp(A, 7)
    prof_mid(A)
    A("s_barrier")
    A("v_lshl_add_u32 v0, s3, 6, v0")
```

```python
import sys, os, re
sys.path.insert(0, os.path.dirname(os.path.abspath(__file__)))
from common import *
import p1, k23
NAME = "gated_mix__spectral_fnet__mha_block__prompt_kernel"

def build():
    A = Asm()
    p1.gen_p1(A, NAME)
    k23.gen_k23(A)
    lst = os.environ.get("ASLIST", "0") == "1"
    head = "; gated_mix(spectral_fnet, mha_block): generated by gen2/gen.py (hand-designed single persistent kernel)\n"
    head += f"; @launch {'kernel=' + NAME + ' ' if lst else ''}grid=(256,1,1) block=(768,1,1) lds={k23.K23_LDS}\n"
    head += '.amdgcn_target "amdgcn-amd-amdhsa--gfx950"\n.text\n'
    tail = '.section .rodata,"a"\n' + kd(NAME, 168)
    return head + A.text() + tail

if __name__ == "__main__":
    out = sys.argv[1]
    open(out, "w").write(build())
    print("wrote", out)
```
